```python
import torch

def _softmax(x, axis=-1):
    return torch.softmax(x, dim=axis)
def _gelu(x):
    return torch.nn.functional.gelu(x, approximate="tanh")
def _silu(x):
    return torch.nn.functional.silu(x)
def _sigmoid(x):
    return torch.sigmoid(x)
def _layernorm(x, axis=-1, eps=1e-5):
    m = x.mean(dim=axis, keepdim=True)
    v = x.var(dim=axis, keepdim=True, unbiased=False)
    return (x - m) / torch.sqrt(v + eps)
def _scatter_add(tgt, idx, src, axis=0):
    return tgt.clone().index_add_(axis, idx, src)
def _segment_sum(src, seg, n):
    out = torch.zeros((n,) + src.shape[1:], dtype=src.dtype)
    return out.index_add_(0, seg, src)
def _pad(x, pw):
    flat = tuple(v for pair in reversed(pw) for v in pair)
    return torch.nn.functional.pad(x, flat)

kernel_name = 'sequential_preLN__softmax_full_mha__glu_gated_swiglu__prompt'

def setup_inputs():

    _w = (lambda a: (lambda t: t.to(torch.bfloat16) if t.is_floating_point() else t)(torch.as_tensor(a)))
    def _A_setup():
        B, S, D = 1, 2048, 640
        return {
            "x": _w((lambda *s: torch.randn(*s, dtype=torch.bfloat16) * 0.05)(B, S, D)),
            "wqkv": _w((lambda *s: torch.randn(*s, dtype=torch.bfloat16) * 0.05)(D, 3 * D)),
            "wo": _w((lambda *s: torch.randn(*s, dtype=torch.bfloat16) * 0.05)(D, D)),
        }
    _A_in = _A_setup()

    def _B_setup():
        B, S, D, F = 1, 2048, 640, 1728
        return {
            "x": _w((lambda *s: torch.randn(*s, dtype=torch.bfloat16) * 0.05)(B, S, D)),
            "w1": _w((lambda *s: torch.randn(*s, dtype=torch.bfloat16) * 0.4)(D, F) * (2.0 / D) ** 0.5),
            "w3": _w((lambda *s: torch.randn(*s, dtype=torch.bfloat16) * 0.4)(D, F) * (2.0 / D) ** 0.5),
            "w2": _w((lambda *s: torch.randn(*s, dtype=torch.bfloat16) * 0.4)(F, D) * (2.0 / F) ** 0.5),
        }
    _B_in = _B_setup()

    return {
        "A_x": _A_in["x"],
        "A_wqkv": _A_in["wqkv"],
        "A_wo": _A_in["wo"],
        "B_x": _B_in["x"],
        "B_w1": _B_in["w1"],
        "B_w3": _B_in["w3"],
        "B_w2": _B_in["w2"],
    }

def reference(A_x, A_wqkv, A_wo, B_x, B_w1, B_w3, B_w2):
    def _A_ref(x, wqkv, wo):
        B, S, D = x.shape
        H = 32; Dh = D // H
        qkv = (lambda x, *d: x.permute(*d))((x @ wqkv).reshape(B, S, 3, H, Dh), 2, 0, 3, 1, 4)
        q, k, v = qkv[0], qkv[1], qkv[2]
        scale = Dh ** -0.5
        scores = torch.einsum("bhqd,bhkd->bhqk", q, k) * scale
        p = _softmax(scores, axis=-1)
        o = torch.einsum("bhqk,bhkd->bhqd", p, v)
        return (lambda x, *d: x.permute(*d))(o, 0, 2, 1, 3).reshape(B, S, D) @ wo

    def _B_ref(x, w1, w3, w2):
        gate = torch.einsum("bsd,df->bsf", x, w1)
        up = torch.einsum("bsd,df->bsf", x, w3)
        h = _silu(gate) * up
        out = torch.einsum("bsf,fd->bsd", h, w2)
        return out

    x = A_x
    h = x + _A_ref(_layernorm(x, axis=-1), A_wqkv, A_wo)
    h2 = h + _B_ref(_layernorm(h, axis=-1), B_w1, B_w3, B_w2)
    return h2
```

```python
import re

def v(b, n=1):
    return f"v{b}" if n == 1 else f"v[{b}:{b+n-1}]"
def a(b, n=1):
    return f"a{b}" if n == 1 else f"a[{b}:{b+n-1}]"
def s(b, n=1):
    return f"s{b}" if n == 1 else f"s[{b}:{b+n-1}]"

class Alloc:
    def __init__(self, start=0, limit=256):
        self.next = start; self.limit = limit; self.names = {}
    def __call__(self, name, n=1, align=1):
        b = (self.next + align - 1) // align * align
        self.next = b + n
        assert self.next <= self.limit, f"out of registers allocating {name}: {self.next}"
        self.names[name] = (b, n)
        return b

class Kernel:
    def __init__(self, name):
        self.name = name; self.lines = []; self.uid = 0
    def __call__(self, txt):
        for t in txt.split("\n"):
            t = t.strip()
            if t: self.lines.append("  " + t)
    def label(self, l): self.lines.append(f"{l}:")
    def L(self, base):
        self.uid += 1
        return f"L_{self.name}_{base}_{self.uid}"
    def c(self, txt): self.lines.append(f"  ; {txt}")
    def nop(self, n):
        while n > 0:
            k = min(n, 16); self(f"s_nop {k-1}"); n -= k
    prof = False
    def stamp(self, i):
        if self.prof:
            self(f"s_memtime s[{64+2*i}:{65+2*i}]")
    def stamp_real(self, i):
        if self.prof:
            self(f"s_memrealtime s[{64+2*i}:{65+2*i}]")
    def prof_store(self, n, ws_pair, off, vtmp, wave_sgpr):
        if not self.prof: return
        self("s_waitcnt lgkmcnt(0)")
        self(f"s_add_u32 s96, s{ws_pair}, {off}\ns_addc_u32 s97, s{ws_pair+1}, 0\ns_and_b32 s97, s97, 0xffff\ns_mov_b32 s98, 0x100000\ns_mov_b32 s99, 0x20000")
        self(f"s_lshl_b32 s62, s2, 4\ns_add_u32 s62, s62, s{wave_sgpr}\ns_lshl_b32 s62, s62, 6")
        self("s_mov_b64 exec, 1")
        for i in range(n):
            self(f"v_mov_b32 v{vtmp}, s{64+2*i}")
            self(f"v_mov_b32 v{vtmp+1}, {4*i}")
            self(f"buffer_store_dword v{vtmp}, v{vtmp+1}, s[96:99], s62 offen")
            self("s_waitcnt vmcnt(0)")
        self("s_mov_b64 exec, -1")
    def text(self, nvgpr, nsgpr, accum_offset=None, extra=()):
        nv = nvgpr
        ao = accum_offset if accum_offset is not None else (nv + 3) // 4 * 4
        head = f""".text
.globl {self.name}
.p2align 8
.type {self.name},@function
{self.name}:
"""
        tail = f"""
.section .rodata,"a"
.p2align 6
.amdhsa_kernel {self.name}
  .amdhsa_next_free_vgpr {nv}
  .amdhsa_next_free_sgpr {nsgpr}
  .amdhsa_accum_offset {ao}
  .amdhsa_group_segment_fixed_size 0
  .amdhsa_kernarg_size 80
  .amdhsa_user_sgpr_count 2
  .amdhsa_user_sgpr_kernarg_segment_ptr 1
  .amdhsa_system_sgpr_workgroup_id_x 1
  .amdhsa_float_denorm_mode_32 3
  .amdhsa_float_denorm_mode_16_64 3
.end_amdhsa_kernel
"""
        return head + "\n".join(self.lines) + "\n" + tail

_reg_re = re.compile(r"\b([vas])(\d+)\b|\b([vas])\[(\d+):(\d+)\]")
def regs_of(op):
    out = []
    op = op.strip()
    m = re.fullmatch(r"-?\|?(?:abs\()?([vas])(\d+)\)?\|?", op)
    if m: return [(m.group(1), int(m.group(2)))]
    m = re.fullmatch(r"-?([vas])\[(\d+):(\d+)\]", op)
    if m: return [(m.group(1), i) for i in range(int(m.group(2)), int(m.group(3)) + 1)]
    if op in ("vcc", "vcc_lo", "vcc_hi"): return [("s", "vcc")]
    if op in ("exec", "exec_lo", "exec_hi"): return [("s", "exec")]
    if op == "m0": return [("s", "m0")]
    return []

TRANS = ("v_exp_f32", "v_log_f32", "v_rcp_f32", "v_rsq_f32", "v_sqrt_f32", "v_sin_f32", "v_cos_f32", "v_exp_f16", "v_rcp_iflag_f32")
def parse(line):
    t = line.split(";")[0].strip()
    if not t or t.endswith(":") or t.startswith("."): return None
    parts = t.split(None, 1)
    opc = parts[0]
    ops = []
    if len(parts) > 1:
        cur = ""; depth = 0
        for ch in parts[1]:
            if ch in "[(": depth += 1
            if ch in "])": depth -= 1
            if ch == "," and depth == 0: ops.append(cur.strip()); cur = ""
            else: cur += ch
        ops.append(cur.strip())
        last = ops[-1].split()
        ops[-1] = last[0]; mods = last[1:]
    else:
        mods = []
    return opc, ops, mods

def passes(opc):
    if "32x32x16" in opc or "32x32x8" in opc: return 8
    if "16x16x32" in opc or "16x16x16" in opc: return 4
    raise ValueError(opc)

class Ins:
    __slots__ = ("opc", "dst", "src", "srcc", "kind", "states", "line", "mods", "ops")

def decode(line):
    p = parse(line)
    if p is None: return None
    opc, ops, mods = p
    I = Ins(); I.opc = opc; I.line = line.strip(); I.mods = mods; I.ops = ops
    I.dst = []; I.src = []; I.srcc = []; I.states = 1
    base = opc.replace("_e32", "").replace("_e64", "").replace("_dpp", "").replace("_sdwa", "")
    if opc == "s_nop":
        I.kind = "nop"; I.states = int(ops[0], 0) + 1; return I
    if opc.startswith("v_mfma"):
        I.kind = "mfma"; I.dst = regs_of(ops[0]); I.src = regs_of(ops[1]) + regs_of(ops[2]); I.srcc = regs_of(ops[3]); return I
    if opc.startswith("v_"):
        I.kind = "valu"
        if base in TRANS: I.kind = "trans"
        if base.startswith("v_cmp"):
            I.dst = regs_of(ops[0]); I.src = sum((regs_of(o) for o in ops[1:]), [])
            if base.startswith("v_cmpx"): I.dst += [("s", "exec")]
        elif base in ("v_readfirstlane_b32", "v_readlane_b32"):
            I.dst = regs_of(ops[0]); I.src = sum((regs_of(o) for o in ops[1:]), []); I.kind = "readlane"
        elif base in ("v_permlane32_swap_b32", "v_permlane16_swap_b32", "v_swap_b32"):
            I.dst = regs_of(ops[0]) + regs_of(ops[1]); I.src = list(I.dst)
            I.kind = "permlane" if "permlane" in base else "valu"
        elif base in ("v_add_co_u32", "v_sub_co_u32", "v_addc_co_u32", "v_subb_co_u32", "v_div_scale_f32", "v_mad_u64_u32"):
            I.dst = regs_of(ops[0]) + regs_of(ops[1]); I.src = sum((regs_of(o) for o in ops[2:]), [])
        else:
            I.dst = regs_of(ops[0]); I.src = sum((regs_of(o) for o in ops[1:]), [])
            if base in ("v_fmac_f32", "v_dot2c_f32_bf16", "v_writelane_b32", "v_pk_fmac_f16") or "UNUSED_PRESERVE" in " ".join(mods):
                I.src += I.dst
            if base == "v_cndmask_b32" and len(ops) == 3: I.src += [("s", "vcc")]
        if "dpp" in opc or any(m.startswith(("quad_perm", "row_", "wave_")) for m in mods):
            I.kind = "dpp" if I.kind == "valu" else I.kind
        return I
    if opc.startswith("ds_"):
        I.kind = "ds"
        if opc.startswith(("ds_read", "ds_bpermute", "ds_permute", "ds_swizzle")):
            I.dst = regs_of(ops[0]); I.src = sum((regs_of(o) for o in ops[1:]), [])
        else:
            I.src = sum((regs_of(o) for o in ops), [])
        return I
    if opc.startswith(("buffer_", "global_")):
        I.kind = "vmem"
        islds = "lds" in mods or "load_lds" in opc
        if "load" in opc and not islds:
            I.dst = regs_of(ops[0]); I.src = sum((regs_of(o) for o in ops[1:]), [])
        else:
            I.src = sum((regs_of(o) for o in ops), [])
        if islds: I.src += [("s", "m0")]; I.kind = "vmem_lds"
        if "store" in opc: I.kind = "vmem_store"
        return I
    if opc.startswith("s_"):
        I.kind = "salu"
        if opc.startswith(("s_cmp", "s_cbranch", "s_branch", "s_waitcnt", "s_barrier", "s_endpgm", "s_setprio", "s_sleep", "s_bitcmp")):
            I.src = sum((regs_of(o) for o in ops), [])
        else:
            I.dst = regs_of(ops[0]) if ops else []; I.src = sum((regs_of(o) for o in ops[1:]), [])
            if "saveexec" in opc: I.dst += [("s", "exec")]
        return I
    raise ValueError("unknown instr: " + line)

def isv(r): return r[0] in ("v", "a")

def check_seq(ins, name, problems):
    n = len(ins)
    for i, I in enumerate(ins):
        dist = 0
        D = set(I.dst)
        for j in range(i + 1, min(n, i + 40)):
            J = ins[j]
            need = 0; why = ""
            Jsrc = set(J.src); Jc = set(J.srcc); Jd = set(J.dst)
            if I.kind == "mfma":
                p = passes(I.opc)
                tbl = {4: (6, 8, 8, 3), 8: (10, 12, 12, 7)}[p]
                if J.kind == "mfma":
                    if D & Jc:
                        exact = (list(I.dst) == list(J.srcc)) and passes(J.opc) == p
                        if not exact: need = max(need, tbl[0]); why = "mfma D->mfma C partial"
                    if D & Jsrc: need = max(need, tbl[1]); why = "mfma D->mfma A/B"
                else:
                    if D & (Jsrc | Jd) and J.kind in ("valu", "trans", "dpp", "permlane", "readlane", "vmem", "vmem_store", "vmem_lds", "ds"):
                        need = max(need, tbl[2]); why = "mfma D->valu/mem"
                    if set(I.srcc) & Jd and J.kind in ("valu", "trans", "dpp", "permlane") :
                        need = max(need, tbl[3]); why = why or "mfma C read -> valu write (WAR)"
            if I.kind in ("valu", "trans", "dpp", "permlane", "readlane"):
                Dv = {r for r in D if isv(r)}; Ds = {r for r in D if not isv(r)}
                if J.kind == "mfma" and Dv & (Jsrc | Jc): need = max(need, 2); why = "valu->mfma operand"
                if I.kind == "trans" and J.kind in ("valu", "dpp", "permlane", "readlane", "mfma") and Dv & (Jsrc | Jc) : need = max(need, 1); why = why or "trans->use"
                if J.kind == "dpp" and Dv & Jsrc: need = max(need, 2); why = "valu->dpp"
                if J.kind == "permlane" and Dv & Jsrc: need = max(need, 2); why = "valu->permlane"
                if J.kind == "readlane" and Dv & Jsrc: need = max(need, 1); why = "valu->readlane"
                if Ds:
                    if J.kind in ("vmem", "vmem_store", "vmem_lds") and Ds & Jsrc: need = max(need, 5); why = "valu sgpr write->vmem"
                    if J.kind in ("valu", "trans", "dpp", "permlane", "mfma") and Ds & Jsrc and ("s", "exec") not in Ds: need = max(need, 2); why = "valu sgpr write->valu read"
                    if J.kind == "readlane" and Ds & Jsrc: need = max(need, 4); why = "valu sgpr->readlane sel"
                    if ("s", "exec") in Ds and J.kind == "mfma": need = max(need, 4); why = "valu exec->mfma"
                    if ("s", "exec") in Ds and J.kind in ("dpp",): need = max(need, 5); why = "valu exec->dpp"
                    if ("s", "exec") in Ds and J.kind in ("readlane", "permlane"): need = max(need, 4); why = "valu exec->lane op"
            if I.kind == "salu" and ("s", "m0") in D and J.kind == "vmem_lds": need = max(need, 1); why = "m0->lds dma"
            if I.kind == "vmem_store" and ("x4" in I.opc or "x3" in I.opc):
                data = set(regs_of(I.ops[0])) if I.opc.startswith("buffer") else set(regs_of(I.ops[1]))
                if data & Jd:
                    need = max(need, 2 if J.kind in ("valu", "trans", "dpp", "permlane") else 1); why = "wide store data WAR"
            if need > dist:
                problems.append(f"[{name}] {why}: need {need} have {dist}\n    {I.line}\n    {J.line}")
            dist += J.states
            if dist >= 21: break

def check_kernel(k):
    items = []
    labels = {}
    for ln in k.lines:
        t = ln.split(";")[0].strip()
        if t.endswith(":"):
            labels[t[:-1]] = len(items); continue
        I = decode(ln)
        if I is not None: items.append(I)
    problems = []
    check_seq(items, k.name + ":linear", problems)
    for i, I in enumerate(items):
        if I.opc.startswith(("s_cbranch", "s_branch")):
            tgt = labels.get(I.ops[0])
            if tgt is None: raise ValueError("label? " + I.line)
            seq = items[max(0, i - 40): i + 1] + items[tgt: tgt + 40]
            check_seq(seq, k.name + f":branch@{I.line}", problems)
    seen = [];
    for p in problems:
        key = p.split("\n", 1)[1]
        if key not in seen: seen.append(key); print("HAZARD", p)
    return len(seen)
```

```python
from asm import *
from layout import *
HEADER = """; Kernarg layout for this problem (80 bytes, ptrs only, base s[0:1]):
"""
def assemble(kernels):
    out = HEADER
    for (k, nv, ns, grid, block, lds) in kernels:
        out += f"; @launch kernel={k.name} grid=({grid},1,1) block=({block},1,1) lds={lds}\n"
    out += '.amdgcn_target "amdgcn-amd-amdhsa--gfx950"\n'
    seen = set()
    for (k, nv, ns, grid, block, lds) in kernels:
        if k.name in seen: continue
        seen.add(k.name)
        nh = check_kernel(k)
        assert nh == 0, f"hazards in {k.name}"
        out += k.text(nv, ns)
    return out
```

```python
from asm import *
from layout import *
import struct
def fbits(x): return struct.unpack("<I", struct.pack("<f", x))[0]

def gen_attn(name="attn_kernel", prof=False):
    k = Kernel(name); k.prof = prof
    V = Alloc(1, 256)
    lane = V("lane"); tmp = [V(f"t{i}") for i in range(8)]
    aK1 = V("aK1"); aK2 = V("aK2"); aV = V("aV"); vl16 = V("lane16")
    QA1 = V("QA1", 4, 4); QA2 = V("QA2", 4, 4); QB1 = V("QB1", 4, 4); QB2 = V("QB2", 4, 4)
    Kf = [(V(f"K{i}f1", 4, 4), V(f"K{i}f2", 4, 4)) for i in range(2)]
    Vf = [(V(f"V{i}f1", 4, 4), V(f"V{i}f2", 4, 4)) for i in range(2)]
    PA = V("PA", 8, 4); PB = V("PB", 8, 4)
    NA = V("negmA", 16, 4); NB = V("negmB", 16, 4)
    SA = V("SA", 16, 4); SB = V("SB", 16, 4)
    OA = V("OA", 16, 4); OB = V("OB", 16, 4)
    nv = V.next
    sW, sG, sKH, sH, sQB = 16, 17, 18, 19, 20
    sT0, sT1, sT2, sT3 = 21, 22, 23, 28
    sVM = 24
    sIt, sNmax, sBar = 26, 27, 29
    sThr = 30; sT = 31; sLB = 32
    done = k.L("done")
    k(f"s_cmp_ge_u32 s2, 256\ns_cbranch_scc1 {done}")
    k.stamp(0); k.stamp_real(6)
    k(f"s_load_dwordx2 s[4:5], s[0:1], {KA_WS}")
    k(f"v_and_b32 {v(lane)}, 63, v0")
    k(f"v_lshrrev_b32 {v(tmp[0])}, 6, v0")
    k(f"v_lshlrev_b32 {v(vl16)}, 4, {v(lane)}")
    k(f"v_readfirstlane_b32 s{sW}, {v(tmp[0])}")
    k(f"s_and_b32 s{sT0}, s2, 7\ns_lshl_b32 s{sT0}, s{sT0}, 2\ns_lshr_b32 s{sT1}, s2, 6\ns_add_u32 s{sH}, s{sT0}, s{sT1}")
    k(f"s_lshr_b32 s{sT1}, s2, 3\ns_and_b32 s{sQB}, s{sT1}, 7")
    k(f"s_and_b32 s{sG}, s{sW}, 3\ns_lshr_b32 s{sKH}, s{sW}, 2")
    k(f"s_mul_i32 s{sT0}, s{sH}, {HEAD_STRIDE}")
    k("s_waitcnt lgkmcnt(0)")
    k(f"s_add_u32 s8, s4, s{sT0}\ns_addc_u32 s9, s5, 0\ns_and_b32 s9, s9, 0xffff\ns_mov_b32 s10, {HEAD_STRIDE}\ns_mov_b32 s11, 0x20000")
    k(f"s_add_u32 s12, s4, {WS_O}\ns_addc_u32 s13, s5, 0\ns_and_b32 s13, s13, 0xffff\ns_mov_b32 s14, {O_BYTES}\ns_mov_b32 s15, 0x20000")
    k(f"s_mul_i32 s{sT0}, s{sQB}, {BLK_STRIDE}")
    k(f"s_lshl_b32 s{sT1}, s{sG}, 11\ns_add_u32 s{sT1}, s{sT1}, s{sT0}\ns_add_u32 s{sT1}, s{sT1}, {Q1OFF}")
    k(f"s_lshl_b32 s{sT2}, s{sG}, 9\ns_add_u32 s{sT2}, s{sT2}, s{sT0}\ns_add_u32 s{sT2}, s{sT2}, {Q2OFF}")
    k(f"buffer_load_dwordx4 {v(QA1,4)}, {v(vl16)}, s[8:11], s{sT1} offen")
    k(f"buffer_load_dwordx4 {v(QB1,4)}, {v(vl16)}, s[8:11], s{sT1} offen offset:1024")
    for q in (QA2, QB2):
        for i in range(4): k(f"v_mov_b32 {v(q+i)}, 0")
    k(f"v_and_b32 {v(tmp[0])}, 31, {v(lane)}\nv_lshlrev_b32 {v(tmp[1])}, 3, {v(tmp[0])}")
    k("s_mov_b32 exec_hi, 0")
    k(f"buffer_load_dwordx2 {v(QA2,2)}, {v(tmp[1])}, s[8:11], s{sT2} offen")
    k(f"buffer_load_dwordx2 {v(QB2,2)}, {v(tmp[1])}, s[8:11], s{sT2} offen offset:256")
    k("s_mov_b32 exec_hi, -1")
    k(f"s_lshl_b32 s{sT0}, s{sKH}, 2")
    k(f"s_mul_i32 s{sT1}, s{sT0}, {BLK_STRIDE}\ns_mul_i32 s{sT2}, s{sG}, 5120\ns_add_u32 s{sT1}, s{sT1}, s{sT2}")
    k(f"s_mul_i32 s{sLB}, s{sT0}, {LBLK}\ns_add_u32 s{sT3}, s{sLB}, s{sT2}")
    for j in range(4):
        k(f"s_mov_b32 m0, s{sT3}")
        k(f"s_add_u32 s{sT0}, s{sT1}, 4096")
        for i in range(4):
            k(f"buffer_load_dwordx4 {v(vl16)}, s[8:11], s{sT1} offen offset:{i*1024} lds")
        k(f"s_add_u32 m0, s{sT3}, 4096")
        if j < 3: k(f"s_add_u32 s{sT1}, s{sT1}, {BLK_STRIDE}")
        else: k("s_nop 0")
        k(f"buffer_load_dwordx4 {v(vl16)}, s[8:11], s{sT0} offen lds")
        if j < 3: k(f"s_add_u32 s{sT3}, s{sT3}, {LBLK}")
    k(f"v_add_u32 {v(aK1)}, s{sLB}, {v(vl16)}")
    k(f"s_add_u32 s{sT0}, s{sLB}, {K2OFF}\nv_add_u32 {v(aK2)}, s{sT0}, {v(tmp[1])}")
    k(f"v_lshrrev_b32 {v(tmp[2])}, 5, {v(lane)}")
    k(f"v_mul_u32_u24 {v(tmp[3])}, 320, {v(tmp[2])}")
    k(f"v_lshl_add_u32 {v(tmp[3])}, {v(tmp[0])}, 4, {v(tmp[3])}")
    k(f"s_add_u32 s{sT0}, s{sLB}, {VOFF}\nv_add_u32 {v(aV)}, s{sT0}, {v(tmp[3])}")
    k(f"s_mov_b32 s{sVM}, 0x000fffff\ns_mov_b32 s{sVM+1}, 0x000fffff")
    k(f"s_mov_b32 s{sThr}, 0x5f800000")
    k(f"s_mov_b32 s{sNmax}, 1\ns_mov_b32 s{sBar}, 0")
    for b in range(2):
        k(f"v_mov_b32 {v(Kf[b][1]+2)}, 0\nv_mov_b32 {v(Kf[b][1]+3)}, 0")
    k.stamp(1)
    k("s_waitcnt vmcnt(15)")
    k("s_barrier")
    k.stamp(2)
    Lmax = k.L("max"); Lmloop = k.L("mloop")
    k.label(Lmax)
    mA, mB = tmp[4], tmp[5]
    k(f"v_mov_b32 {v(mA)}, 0xff800000\nv_mov_b32 {v(mB)}, 0xff800000")
    k(f"s_mov_b32 s{sT}, 0")
    k.label(Lmloop)
    k(f"s_lshr_b32 s{sT0}, s{sT}, 3\ns_mul_i32 s{sT0}, s{sT0}, {LBLK}\ns_and_b32 s{sT1}, s{sT}, 7")
    k(f"s_lshl_b32 s{sT2}, s{sT1}, 10\ns_add_u32 s{sT2}, s{sT2}, s{sT0}")
    k(f"s_lshl_b32 s{sT3}, s{sT1}, 8\ns_add_u32 s{sT3}, s{sT3}, s{sT0}")
    k(f"v_add_u32 {v(tmp[6])}, s{sT2}, {v(aK1)}\nv_add_u32 {v(tmp[7])}, s{sT3}, {v(aK2)}")
    k(f"ds_read_b128 {v(Kf[0][0],4)}, {v(tmp[6])}\nds_read_b64 {v(Kf[0][1],2)}, {v(tmp[7])}")
    k("s_waitcnt lgkmcnt(0)")
    k(f"v_mfma_f32_32x32x16_bf16 {v(SA,16)}, {v(Kf[0][0],4)}, {v(QA1,4)}, 0")
    k(f"v_mfma_f32_32x32x16_bf16 {v(SB,16)}, {v(Kf[0][0],4)}, {v(QB1,4)}, 0")
    k(f"v_mfma_f32_32x32x16_bf16 {v(SA,16)}, {v(Kf[0][1],4)}, {v(QA2,4)}, {v(SA,16)}")
    k(f"v_mfma_f32_32x32x16_bf16 {v(SB,16)}, {v(Kf[0][1],4)}, {v(QB2,4)}, {v(SB,16)}")
    k.nop(12)
    for (m, Sx) in ((mA, SA), (mB, SB)):
        for i in range(8):
            k(f"v_max3_f32 {v(m)}, {v(Sx+2*i)}, {v(Sx+2*i+1)}, {v(m)}")
    k(f"s_add_u32 s{sT}, s{sT}, 1\ns_cmp_lt_u32 s{sT}, s{sNmax}\ns_cbranch_scc1 {Lmloop}")
    for (m, N) in ((mA, NA), (mB, NB)):
        k(f"v_mov_b32 {v(tmp[6])}, {v(m)}\nv_mov_b32 {v(tmp[7])}, {v(m)}")
        k.nop(2)
        k(f"v_permlane32_swap_b32 {v(tmp[6])}, {v(tmp[7])}")
        k.nop(1)
        k(f"v_max_f32 {v(tmp[6])}, {v(tmp[6])}, {v(tmp[7])}")
        k(f"v_sub_f32 {v(N)}, 0, {v(tmp[6])}")
        for i in range(1, 16): k(f"v_mov_b32 {v(N+i)}, {v(N)}")
    for b in range(2):
        for f in range(2):
            for i in range(4): k(f"v_mov_b32 {v(Vf[b][f]+i)}, 0x3f803f80")
    for i in range(16): k(f"v_mov_b32 {v(OA+i)}, 0\nv_mov_b32 {v(OB+i)}, 0")
    for i in range(4, 8): k(f"v_mov_b32 {v(PB+i)}, 0")
    k(f"ds_read_b128 {v(Kf[0][0],4)}, {v(aK1)}\nds_read_b64 {v(Kf[0][1],2)}, {v(aK2)}")
    k(f"s_mov_b64 exec, s[{sVM}:{sVM+1}]")
    k(f"ds_read_b128 {v(Vf[0][0],4)}, {v(aV)}\nds_read_b128 {v(Vf[0][1],4)}, {v(aV)} offset:640")
    k("s_mov_b64 exec, -1")
    k("s_waitcnt lgkmcnt(0)")
    k(f"v_mfma_f32_32x32x16_bf16 {v(SA,16)}, {v(Kf[0][0],4)}, {v(QA1,4)}, {v(NA,16)}")
    k(f"v_mfma_f32_32x32x16_bf16 {v(SA,16)}, {v(Kf[0][1],4)}, {v(QA2,4)}, {v(SA,16)}")
    k(f"s_mov_b32 s{sIt}, 0")
    k.nop(12)
    k.stamp(3)
    Lloop = k.L("loop")
    k.lines.append(".p2align 6")
    k.label(Lloop)
    def phase(Sx, Px, mf, pre):
        e = lambda i: f"v_exp_f32 {v(Sx+i)}, {v(Sx+i)}"
        c = lambda j: f"v_cvt_pk_bf16_f32 {v(Px+j)}, {v(Sx+2*j)}, {v(Sx+2*j+1)}"
        k("s_waitcnt lgkmcnt(0)")
        for p in pre: k(p)
        seq = [mf[0], e(0), e(1), e(2), e(3), c(0), mf[1], c(1), e(4), e(5), e(6), e(7), c(2),
               mf[2], c(3), e(8), e(9), e(10), e(11), c(4), mf[3], c(5), e(12), e(13), e(14), e(15), c(6), c(7)]
        for x in seq: k(x)
    M = lambda d, x, y, c: f"v_mfma_f32_32x32x16_bf16 {v(d,16)}, {v(x,4)}, {v(y,4)}, {v(c,16)}"
    for tt in range(8):
        cur = tt & 1; nxt = cur ^ 1
        n1 = tt + 1
        koff1 = n1 * 1024 if n1 < 8 else LBLK
        koff2 = n1 * 256 if n1 < 8 else LBLK
        voff = n1 * 1280 if n1 < 8 else LBLK
        pre = []
        if tt == 7:
            sk = k.L("skipbar")
            k(f"s_cmp_lg_u32 s{sIt}, s{sBar}\ns_cbranch_scc1 {sk}\ns_waitcnt vmcnt(0)\ns_barrier")
            k.label(sk)
        pre = [f"ds_read_b128 {v(Kf[nxt][0],4)}, {v(aK1)} offset:{koff1}", f"ds_read_b64 {v(Kf[nxt][1],2)}, {v(aK2)} offset:{koff2}"]
        phase(SA, PA, [M(SB, Kf[cur][0], QB1, NB), M(OB, Vf[nxt][1], PB+4, OB), M(SB, Kf[cur][1], QB2, SB), M(OA, Vf[cur][0], PA, OA)], pre)
        pre = [f"s_mov_b64 exec, s[{sVM}:{sVM+1}]", f"ds_read_b128 {v(Vf[nxt][0],4)}, {v(aV)} offset:{voff}",
               f"ds_read_b128 {v(Vf[nxt][1],4)}, {v(aV)} offset:{voff+640}", "s_mov_b64 exec, -1"]
        phase(SB, PB, [M(SA, Kf[nxt][0], QA1, NA), M(OA, Vf[cur][1], PA+4, OA), M(SA, Kf[nxt][1], QA2, SA), M(OB, Vf[cur][0], PB, OB)], pre)
    k(f"v_add_u32 {v(aK1)}, {LBLK}, {v(aK1)}\nv_add_u32 {v(aK2)}, {LBLK}, {v(aK2)}\nv_add_u32 {v(aV)}, {LBLK}, {v(aV)}")
    k(f"s_add_u32 s{sIt}, s{sIt}, 1\ns_cmp_lt_u32 s{sIt}, 4\ns_cbranch_scc1 {Lloop}")
    k(M(OB, Vf[1][1], PB+4, OB))
    k("s_waitcnt lgkmcnt(0)")
    k.nop(16)
    k.stamp(4)
    Lok = k.L("ok")
    k(f"v_cmp_ngt_f32 vcc, s{sThr}, {v(OA+8)}")
    k.nop(4)
    k(f"s_mov_b32 s{sT0}, vcc_hi")
    k(f"v_cmp_ngt_f32 vcc, s{sThr}, {v(OB+8)}")
    k.nop(4)
    k(f"s_or_b32 s{sT0}, s{sT0}, vcc_hi")
    k(f"s_cmp_eq_u32 s{sT0}, 0\ns_cbranch_scc1 {Lok}")
    k(f"s_cmp_lg_u32 s{sNmax}, 1\ns_cbranch_scc1 {Lok}")
    k(f"s_mov_b32 s{sNmax}, 32\ns_mov_b32 s{sBar}, -1")
    k(f"v_subrev_u32 {v(aK1)}, {4*LBLK}, {v(aK1)}\nv_subrev_u32 {v(aK2)}, {4*LBLK}, {v(aK2)}\nv_subrev_u32 {v(aV)}, {4*LBLK}, {v(aV)}")
    k(f"s_branch {Lmax}")
    k.label(Lok)
    Lns = k.L("noswap")
    k(f"s_cmp_eq_u32 s{sKH}, 0\ns_cbranch_scc1 {Lns}")
    for i in range(12): k(f"v_swap_b32 {v(OA+i)}, {v(OB+i)}")
    k(f"v_swap_b32 {v(NA)}, {v(NB)}")
    k.label(Lns)
    k("s_barrier")
    k(f"s_lshl_b32 s{sT0}, s{sW}, 12")
    k(f"v_add_u32 {v(tmp[0])}, s{sT0}, {v(vl16)}")
    for j in range(3): k(f"ds_write_b128 {v(tmp[0])}, {v(OB+4*j,4)} offset:{j*1024}")
    k(f"ds_write_b32 {v(tmp[0])}, {v(NB)} offset:3072")
    k("s_waitcnt lgkmcnt(0)\ns_barrier")
    k(f"s_xor_b32 s{sT0}, s{sW}, 4\ns_lshl_b32 s{sT0}, s{sT0}, 12")
    k(f"v_add_u32 {v(tmp[0])}, s{sT0}, {v(vl16)}")
    for j in range(3): k(f"ds_read_b128 {v(OB+4*j,4)}, {v(tmp[0])} offset:{j*1024}")
    k(f"ds_read_b32 {v(NB)}, {v(tmp[0])} offset:3072")
    k(f"s_lshl_b32 s{sT0}, s{sQB}, 8\ns_lshl_b32 s{sT1}, s{sG}, 6\ns_add_u32 s{sT0}, s{sT0}, s{sT1}\ns_lshl_b32 s{sT1}, s{sKH}, 5\ns_add_u32 s{sT0}, s{sT0}, s{sT1}")
    k(f"v_and_b32 {v(tmp[1])}, 31, {v(lane)}\nv_add_u32 {v(tmp[1])}, s{sT0}, {v(tmp[1])}")
    k(f"v_lshrrev_b32 {v(tmp[2])}, 4, {v(tmp[1])}\nv_mul_u32_u24 {v(tmp[2])}, 20480, {v(tmp[2])}")
    k(f"v_and_b32 {v(tmp[1])}, 15, {v(tmp[1])}\nv_lshl_add_u32 {v(tmp[2])}, {v(tmp[1])}, 4, {v(tmp[2])}")
    k(f"s_mul_i32 s{sT0}, s{sH}, 5")
    k(f"v_lshrrev_b32 {v(tmp[3])}, 5, {v(lane)}\nv_add_u32 {v(tmp[3])}, s{sT0}, {v(tmp[3])}")
    addr = [tmp[4], tmp[5], tmp[6]]
    for j in range(3):
        k(f"v_add_u32 {v(tmp[7])}, {2*j}, {v(tmp[3])}")
        k(f"v_lshrrev_b32 {v(tmp[1])}, 3, {v(tmp[7])}\nv_lshl_add_u32 {v(addr[j])}, {v(tmp[1])}, 10, {v(tmp[2])}")
        k(f"v_and_b32 {v(tmp[1])}, 3, {v(tmp[7])}\nv_lshl_add_u32 {v(addr[j])}, {v(tmp[1])}, 8, {v(addr[j])}")
        k(f"v_bfe_u32 {v(tmp[1])}, {v(tmp[7])}, 2, 1\nv_lshl_add_u32 {v(addr[j])}, {v(tmp[1])}, 3, {v(addr[j])}")
    k("s_waitcnt lgkmcnt(0)")
    f1, f2, nm = SA, SA + 1, SA + 2
    k(f"v_min_f32 {v(nm)}, {v(NA)}, {v(NB)}")
    k(f"v_sub_f32 {v(f1)}, {v(nm)}, {v(NA)}\nv_sub_f32 {v(f2)}, {v(nm)}, {v(NB)}")
    k(f"v_exp_f32 {v(f1)}, {v(f1)}\nv_exp_f32 {v(f2)}, {v(f2)}")
    k.nop(1)
    for i in range(12):
        k(f"v_mul_f32 {v(OA+i)}, {v(OA+i)}, {v(f1)}")
    for i in range(12):
        k(f"v_fmac_f32 {v(OA+i)}, {v(OB+i)}, {v(f2)}")
    t1, t2 = SA + 4, SA + 5
    k(f"v_mov_b32 {v(t1)}, {v(OA+8)}\nv_mov_b32 {v(t2)}, {v(OA+8)}")
    k.nop(2)
    k(f"v_permlane32_swap_b32 {v(t1)}, {v(t2)}")
    k.nop(1)
    k(f"v_rcp_f32 {v(t2)}, {v(t2)}")
    k.nop(1)
    for i in range(12): k(f"v_mul_f32 {v(OA+i)}, {v(OA+i)}, {v(t2)}")
    for j in range(6): k(f"v_cvt_pk_bf16_f32 {v(PA+j)}, {v(OA+2*j)}, {v(OA+2*j+1)}")
    k(f"buffer_store_dwordx2 {v(PA,2)}, {v(addr[0])}, s[12:15], 0 offen")
    k(f"buffer_store_dwordx2 {v(PA+2,2)}, {v(addr[1])}, s[12:15], 0 offen")
    k("s_mov_b32 exec_hi, 0")
    k(f"buffer_store_dwordx2 {v(PA+4,2)}, {v(addr[2])}, s[12:15], 0 offen")
    k("s_mov_b64 exec, -1")
    k.stamp(5); k.stamp_real(7)
    k.prof_store(8, 4, WS_END, tmp[0], sW)
    k.label(done)
    k("s_endpgm")
    return k, nv, (102 if prof else 48)

if __name__ == "__main__":
    k, nv, ns = gen_attn()
    print("vgprs", nv, "hazards", check_kernel(k))
```

```python
from asm import *
from layout import *
import struct, math
def fbits(x): return struct.unpack("<I", struct.pack("<f", x))[0]

NCH = 10
LDS_FFN = 163840
def gen_ffn(name="ffn_kernel", prof=False, PF=3, dbg=()):
    k = Kernel(name); k.prof = prof
    V = Alloc(1, 256)
    lane = V("lane"); tmp = [V(f"t{i}") for i in range(8)]
    dB = V("dB"); vA = V("vA")
    vB = [[V(f"vB{h}{c}") for c in range(2)] for h in range(3)]
    acc = [V(f"acc{i}", 16, 4) for i in range(4)]
    NRA = PF + 1
    FA = [[V(f"FA{r}{q}", 4, 4) for q in range(4)] for r in range(NRA)]
    FB = [[V(f"FB{b}{i}", 4, 4) for i in range(4)] for b in range(2)]
    EX = V("EX", 48, 4)
    nv = V.next
    sW, sRB, sCB = 16, 17, 18
    sT0, sT1, sT2, sT3 = 20, 21, 22, 23
    sA, sB, sL = 24, 25, 26
    done = k.L("done")
    k(f"s_cmp_ge_u32 s2, 216\ns_cbranch_scc1 {done}") if False else None
    k(f"s_cmp_ge_u32 s2, 256\ns_cbranch_scc1 {done}")
    k.stamp(0); k.stamp_real(6)
    k(f"s_load_dwordx2 s[4:5], s[0:1], {KA_WS}")
    k(f"s_load_dwordx4 s[28:31], s[0:1], {KA_W1}")
    k(f"s_and_b32 s{sT0}, s2, 7\ns_lshr_b32 s{sT1}, s2, 3")
    k(f"s_cmp_ge_u32 s{sT1}, 27\ns_cbranch_scc1 {done}")
    k(f"s_and_b32 s{sT2}, s{sT0}, 3\ns_mul_i32 s{sT2}, s{sT2}, 27\ns_add_u32 s{sT2}, s{sT2}, s{sT1}")
    k(f"s_lshr_b32 s{sCB}, s{sT2}, 2\ns_and_b32 s{sT2}, s{sT2}, 3\ns_lshr_b32 s{sT3}, s{sT0}, 2\ns_lshl_b32 s{sT3}, s{sT3}, 2\ns_add_u32 s{sRB}, s{sT3}, s{sT2}")
    k(f"v_and_b32 {v(lane)}, 63, v0\nv_lshrrev_b32 {v(tmp[0])}, 6, v0")
    k.nop(1)
    k(f"v_readfirstlane_b32 s{sW}, {v(tmp[0])}")
    k(f"v_lshrrev_b32 {v(tmp[0])}, 3, {v(lane)}\ns_lshl_b32 s{sT0}, s{sW}, 3\nv_add_u32 {v(tmp[0])}, s{sT0}, {v(tmp[0])}\nv_mul_u32_u24 {v(tmp[0])}, {F*2}, {v(tmp[0])}")
    k(f"v_bfe_u32 {v(tmp[1])}, {v(lane)}, 2, 1\nv_bfe_u32 {v(tmp[2])}, {v(lane)}, 4, 1\nv_xor_b32 {v(tmp[1])}, {v(tmp[1])}, {v(tmp[2])}")
    k(f"v_and_b32 {v(tmp[2])}, 3, {v(lane)}\nv_lshl_add_u32 {v(tmp[1])}, {v(tmp[1])}, 2, {v(tmp[2])}\nv_lshl_add_u32 {v(dB)}, {v(tmp[1])}, 4, {v(tmp[0])}")
    k(f"v_lshlrev_b32 {v(vA)}, 4, {v(lane)}")
    k(f"s_lshl_b32 s{sT0}, s{sRB}, 3\ns_add_u32 s{sT0}, s{sT0}, s{sW}\ns_mul_i32 s{sA}, s{sT0}, 40960")
    k(f"s_lshl_b32 s{sB}, s{sCB}, 7\ns_lshl_b32 s{sL}, s{sW}, 10")
    k("s_waitcnt lgkmcnt(0)")
    k(f"s_add_u32 s8, s4, {WS_H}\ns_addc_u32 s9, s5, 0\ns_and_b32 s9, s9, 0xffff\ns_mov_b32 s10, {H_BYTES}\ns_mov_b32 s11, 0x20000")
    k(f"s_mov_b32 s12, s28\ns_and_b32 s13, s29, 0xffff\ns_mov_b32 s14, {D*F*2}\ns_mov_b32 s15, 0x20000")
    k(f"s_mov_b32 s32, s30\ns_and_b32 s33, s31, 0xffff\ns_mov_b32 s34, {D*F*2}\ns_mov_b32 s35, 0x20000")
    def loads(c):
        k(f"s_add_u32 m0, s{sL}, {c*16384}\ns_add_u32 s{sT0}, s{sB}, {c*64*F*2}")
        k(f"buffer_load_dwordx4 {v(dB)}, s[12:15], s{sT0} offen lds")
        k(f"s_add_u32 m0, s{sL}, {c*16384+8192}\ns_add_u32 s{sT1}, s{sA}, {c*4096}")
        k(f"buffer_load_dwordx4 {v(dB)}, s[32:35], s{sT0} offen lds")
        for q in range(4):
            k(f"buffer_load_dwordx4 {v(FA[c % NRA][q],4)}, {v(vA)}, s[8:11], s{sT1} offen offset:{q*1024}")
    for c in range(PF): loads(c)
    k.stamp(1)
    half = tmp[4]
    k(f"v_lshrrev_b32 {v(half)}, 5, {v(lane)}\nv_bfe_u32 {v(tmp[0])}, {v(lane)}, 2, 2\nv_lshl_add_u32 {v(tmp[0])}, {v(half)}, 3, {v(tmp[0])}\nv_lshlrev_b32 {v(tmp[0])}, 7, {v(tmp[0])}")
    k(f"v_bfe_u32 {v(tmp[1])}, {v(lane)}, 3, 1\nv_lshl_add_u32 {v(tmp[0])}, {v(tmp[1])}, 6, {v(tmp[0])}")
    k(f"v_bfe_u32 {v(tmp[1])}, {v(lane)}, 4, 1\nv_lshl_add_u32 {v(tmp[0])}, {v(tmp[1])}, 5, {v(tmp[0])}")
    k(f"v_and_b32 {v(tmp[1])}, 3, {v(lane)}\nv_lshl_add_u32 {v(vB[0][0])}, {v(tmp[1])}, 3, {v(tmp[0])}\nv_xor_b32 {v(vB[0][1])}, 64, {v(vB[0][0])}")
    for h in (1, 2):
        for c in range(2): k(f"v_add_u32 {v(vB[h][c])}, {h*65536}, {v(vB[0][c])}")
    def treads(q):
        c = q >> 2; ks = q & 3; b = q & 1
        base = c * 16384 + ks * 2048
        out = []
        for mt in range(2):
            for ch in range(2):
                for rd in range(2):
                    off = base + mt * 8192 + rd * 512
                    h = off >> 16
                    out.append(f"ds_read_b64_tr_b16 {v(FB[b][2*mt+ch]+2*rd,2)}, {v(vB[h][ch])} offset:{off & 65535}")
        return out
    issued = PF - 1
    k(f"s_waitcnt vmcnt({6*issued})\ns_barrier")
    k.stamp(2)
    for x in treads(0): k(x)
    k("s_waitcnt lgkmcnt(0)")
    nextra = 0
    for q in range(40):
        c = q >> 2; ks = q & 3
        rd = []
        if q + 1 < 40:
            if ks == 3:
                k(f"s_waitcnt vmcnt({6*(issued-(c+1)) + nextra})\ns_barrier")
            rd = treads(q + 1)
        b = q & 1
        for i in range(4):
            cin = v(acc[i], 16) if q > 0 else "0"
            k(f"v_mfma_f32_32x32x16_bf16 {v(acc[i],16)}, {v(FB[b][i],4)}, {v(FA[c % NRA][ks],4)}, {cin}")
            for x in rd[2*i: 2*i+2]: k(x)
        if ks == 3 and issued + 1 < NCH:
            loads(issued + 1); issued += 1
        if q == 27:
            tok = tmp[5]
            k(f"v_and_b32 {v(tok)}, 31, {v(lane)}\ns_lshl_b32 s{sT0}, s{sRB}, 8\ns_lshl_b32 s{sT1}, s{sW}, 5\ns_add_u32 s{sT0}, s{sT0}, s{sT1}\nv_add_u32 {v(tok)}, s{sT0}, {v(tok)}")
            k(f"s_add_u32 s44, s4, {WS_ST}\ns_addc_u32 s45, s5, 0\ns_and_b32 s45, s45, 0xffff\ns_mov_b32 s46, {ST_BYTES + HH_BYTES + CS_BYTES}\ns_mov_b32 s47, 0x20000")
            k(f"v_lshlrev_b32 {v(tmp[6])}, 6, {v(tok)}")
            for j in range(4): k(f"buffer_load_dwordx4 {v(EX+4*j,4)}, {v(tmp[6])}, s[44:47], 0 offen offset:{16*j}")
            k(f"s_lshl_b32 s{sT0}, s{sCB}, 8\ns_add_u32 s48, s{sT0}, {ST_BYTES + HH_BYTES}\ns_add_u32 s49, s48, {F*4}")
            k(f"v_lshlrev_b32 {v(tmp[7])}, 4, {v(half)}")
            nextra = 4
        if rd: k("s_waitcnt lgkmcnt(0)")
    k.stamp(3)
    CS = FA[0][0]
    for ch in range(2):
        for mt in range(2):
            for j in range(4):
                k(f"buffer_load_dwordx4 {v(CS+32*ch+16*mt+4*j,4)}, {v(tmp[7])}, s[44:47], s{48+mt} offen offset:{128*ch+32*j}")
    k(f"s_waitcnt vmcnt(16)")
    E = EX
    for i in range(4): k(f"v_add_f32 {v(E+4*i)}, {v(E+4*i)}, {v(E+4*i+2)}\nv_add_f32 {v(E+4*i+1)}, {v(E+4*i+1)}, {v(E+4*i+3)}")
    k(f"v_add_f32 {v(E)}, {v(E)}, {v(E+4)}\nv_add_f32 {v(E+1)}, {v(E+1)}, {v(E+5)}\nv_add_f32 {v(E+8)}, {v(E+8)}, {v(E+12)}\nv_add_f32 {v(E+9)}, {v(E+9)}, {v(E+13)}")
    k(f"v_add_f32 {v(E)}, {v(E)}, {v(E+8)}\nv_add_f32 {v(E+1)}, {v(E+1)}, {v(E+9)}")
    k(f"v_mul_f32 {v(E)}, {fbits(1.0/D)}, {v(E)}\nv_mul_f32 {v(E+1)}, {fbits(1.0/D)}, {v(E+1)}")
    k(f"v_fma_f32 {v(E+1)}, -{v(E)}, {v(E)}, {v(E+1)}\nv_max_f32 {v(E+1)}, 0, {v(E+1)}\nv_add_f32 {v(E+1)}, {fbits(1e-5)}, {v(E+1)}")
    k(f"v_rsq_f32 {v(E+1)}, {v(E+1)}")
    nmean, rstd, rneg, rsq2 = E + 2, E + 1, E + 3, E + 4
    k(f"v_sub_f32 {v(nmean)}, 0, {v(E)}")
    k(f"v_mul_f32 {v(rneg)}, {fbits(-math.log2(math.e))}, {v(rstd)}\nv_mul_f32 {v(rsq2)}, {v(rstd)}, {v(rstd)}")
    tok = tmp[5]
    k(f"v_lshrrev_b32 {v(tmp[0])}, 4, {v(tok)}\nv_mul_u32_u24 {v(tmp[0])}, {F*32}, {v(tmp[0])}\nv_and_b32 {v(tmp[1])}, 15, {v(tok)}\nv_lshl_add_u32 {v(tmp[0])}, {v(tmp[1])}, 4, {v(tmp[0])}")
    k(f"v_lshl_add_u32 {v(tmp[0])}, {v(half)}, 8, {v(tmp[0])}")
    k(f"s_add_u32 s52, s4, {WS_HH}\ns_addc_u32 s53, s5, 0\ns_and_b32 s53, s53, 0xffff\ns_mov_b32 s54, {HH_BYTES}\ns_mov_b32 s55, 0x20000")
    k(f"s_lshl_b32 s{sT0}, s{sCB}, 11")
    Tt = E + 8
    PKo = E + 32
    for ch in range(2):
        k(f"s_waitcnt vmcnt({8 if ch == 0 else 0})" if ch == 0 else "s_waitcnt vmcnt(2)")
        g, u = acc[ch], acc[2 + ch]
        c1, c3 = CS + 32 * ch, CS + 32 * ch + 16
        for r in range(16): k(f"v_fmac_f32 {v(g+r)}, {v(c1+r)}, {v(nmean)}")
        for r in range(16): k(f"v_fmac_f32 {v(u+r)}, {v(c3+r)}, {v(nmean)}")
        for r in range(16): k(f"v_mul_f32 {v(Tt+r)}, {v(g+r)}, {v(rneg)}")
        for r in range(16): k(f"v_exp_f32 {v(Tt+r)}, {v(Tt+r)}")
        for r in range(16): k(f"v_mul_f32 {v(g+r)}, {v(g+r)}, {v(u+r)}")
        for r in range(16): k(f"v_add_f32 {v(Tt+r)}, 1.0, {v(Tt+r)}")
        for r in range(16): k(f"v_rcp_f32 {v(Tt+r)}, {v(Tt+r)}")
        for r in range(16): k(f"v_mul_f32 {v(g+r)}, {v(g+r)}, {v(rsq2)}")
        for r in range(16): k(f"v_mul_f32 {v(g+r)}, {v(g+r)}, {v(Tt+r)}")
        for p in range(2):
            o = PKo + 4 * p + 8 * ch
            for hi in range(2):
                j = p + 2 * hi
                k(f"v_cvt_pk_bf16_f32 {v(o+2*hi)}, {v(g+4*j)}, {v(g+4*j+1)}\nv_cvt_pk_bf16_f32 {v(o+2*hi+1)}, {v(g+4*j+2)}, {v(g+4*j+3)}")
            k(f"buffer_store_dwordx4 {v(o,4)}, {v(tmp[0])}, s[52:55], s{sT0} offen offset:{ch*1024 + p*512}")
    k.stamp(5); k.stamp(4); k.stamp_real(7)
    k.prof_store(8, 4, WS_END, tmp[1], sW)
    k.label(done)
    k("s_endpgm")
    return k, nv, (102 if prof else 64)

if __name__ == "__main__":
    k, nv, ns = gen_ffn()
    print("vgprs", nv, "hazards", check_kernel(k), "lines", len(k.lines))
```

```python
from asm import *
from layout import *
import struct
def fbits(x): return struct.unpack("<I", struct.pack("<f", x))[0]

NST = 4
STG = 32768
NCH = 10
L_PS = NST * STG
L_PQ = L_PS + 4096
L_PC = L_PQ + 4096
L_RS = L_PC + 2048
L_MR = L_RS + 512
L_CS = L_MR + 512
LDS_QKV = L_CS + 512

def gen_qkv(name="qkv_kernel", prof=False, dbg=()):
    k = Kernel(name); k.prof = prof
    V = Alloc(1, 256)
    lane = V("lane"); tmp = [V(f"t{i}") for i in range(10)]
    dA0 = V("dA0"); dA1 = V("dA1"); dB = V("dB")
    vA = [[V(f"vA{h}{j}") for j in range(4)] for h in range(2)]
    vB = [[V(f"vB{h}{j}") for j in range(4)] for h in range(2)]
    st = V("st", 8, 2)
    cs4 = V("cs4", 4, 4); sel = V("sel", 4, 4)
    ut = V("ut", 8, 2)
    acc = [V("acc0", 16, 4), V("acc1", 16, 4)]
    FA = [[[V(f"FA{b}{j}{i}", 4, 4) for i in range(2)] for j in range(4)] for b in range(2)]
    FB = [[V(f"FB{b}{j}", 4, 4) for j in range(4)] for b in range(2)]
    nv = V.next
    sW, sM, sN, sRB, sCB, sSec = 16, 17, 18, 19, 20, 21
    sT0, sT1, sT2, sT3 = 22, 23, 24, 25
    sAo, sBo, sLw, sOnes = 26, 27, 28, 29
    sX, sY = 30, 31
    done = k.L("done")
    k(f"s_cmp_ge_u32 s2, 256\ns_cbranch_scc1 {done}")
    k.stamp(0); k.stamp_real(6)
    k(f"s_load_dwordx4 s[4:7], s[0:1], {KA_X}")
    k(f"s_load_dwordx2 s[36:37], s[0:1], {KA_WS}")
    k(f"s_and_b32 s{sT0}, s2, 7\ns_lshr_b32 s{sT1}, s2, 3")
    k(f"s_lshr_b32 s{sT2}, s{sT0}, 1\ns_lshl_b32 s{sT2}, s{sT2}, 2\ns_and_b32 s{sT3}, s{sT1}, 3\ns_add_u32 s{sRB}, s{sT2}, s{sT3}")
    k(f"s_and_b32 s{sT2}, s{sT0}, 1\ns_lshl_b32 s{sT2}, s{sT2}, 3\ns_lshr_b32 s{sT3}, s{sT1}, 2\ns_add_u32 s{sCB}, s{sT2}, s{sT3}")
    Lcs = k.L("colsum")
    k(f"s_cmp_ge_u32 s{sCB}, 15\ns_cbranch_scc1 {Lcs}")
    k(f"v_and_b32 {v(lane)}, 63, v0\nv_lshrrev_b32 {v(tmp[0])}, 6, v0")
    k.nop(1)
    k(f"v_readfirstlane_b32 s{sW}, {v(tmp[0])}")
    k(f"v_lshrrev_b32 {v(tmp[0])}, 3, {v(lane)}")
    k(f"v_lshrrev_b32 {v(tmp[1])}, 4, {v(lane)}")
    k(f"v_and_b32 {v(tmp[2])}, 7, {v(lane)}")
    k(f"v_xor_b32 {v(tmp[3])}, {v(tmp[2])}, {v(tmp[1])}")
    k(f"v_xor_b32 {v(tmp[4])}, 4, {v(tmp[3])}")
    k(f"s_lshl_b32 s{sT0}, s{sW}, 4")
    k(f"v_add_u32 {v(tmp[0])}, s{sT0}, {v(tmp[0])}\nv_mul_u32_u24 {v(tmp[0])}, 1280, {v(tmp[0])}")
    k(f"v_lshl_add_u32 {v(dA0)}, {v(tmp[3])}, 4, {v(tmp[0])}")
    k(f"v_lshl_add_u32 {v(dA1)}, {v(tmp[4])}, 4, {v(tmp[0])}\nv_add_u32 {v(dA1)}, {8*1280}, {v(dA1)}")
    k(f"v_bfe_u32 {v(tmp[2])}, {v(lane)}, 2, 2\nv_and_b32 {v(tmp[3])}, 3, {v(tmp[1])}\nv_xor_b32 {v(tmp[2])}, {v(tmp[2])}, {v(tmp[3])}")
    k(f"v_and_b32 {v(tmp[3])}, 3, {v(lane)}\nv_lshl_add_u32 {v(tmp[2])}, {v(tmp[2])}, 2, {v(tmp[3])}")
    k(f"s_lshl_b32 s{sT0}, s{sW}, 3")
    k(f"v_add_u32 {v(tmp[1])}, s{sT0}, {v(tmp[1])}\nv_mul_u32_u24 {v(tmp[1])}, 3840, {v(tmp[1])}")
    k(f"v_lshl_add_u32 {v(dB)}, {v(tmp[2])}, 4, {v(tmp[1])}")
    k(f"s_mul_i32 s{sAo}, s{sRB}, {128*1280}\ns_lshl_b32 s{sBo}, s{sCB}, 8\ns_lshl_b32 s{sLw}, s{sW}, 11")
    k(f"s_lshr_b32 s{sM}, s{sW}, 2\ns_and_b32 s{sN}, s{sW}, 3")
    k("s_waitcnt lgkmcnt(0)")
    k(f"s_mov_b32 s8, s4\ns_and_b32 s9, s5, 0xffff\ns_mov_b32 s10, {S*D*2}\ns_mov_b32 s11, 0x20000")
    k(f"s_mov_b32 s12, s6\ns_and_b32 s13, s7, 0xffff\ns_mov_b32 s14, {D*3*D*2}\ns_mov_b32 s15, 0x20000")
    def dma(c):
        stg = (c % NST) * STG
        k(f"s_add_u32 m0, s{sLw}, {stg}\ns_add_u32 s{sX}, s{sAo}, {c*128}")
        k(f"buffer_load_dwordx4 {v(dA0)}, s[8:11], s{sX} offen lds")
        k(f"s_add_u32 m0, s{sLw}, {stg+1024}\ns_add_u32 s{sY}, s{sBo}, {c*64*3840}")
        k(f"buffer_load_dwordx4 {v(dA1)}, s[8:11], s{sX} offen lds")
        k(f"s_add_u32 m0, s{sLw}, {stg+16384}\ns_add_u32 s{sX}, s{sY}, {4*3840}")
        k(f"buffer_load_dwordx4 {v(dB)}, s[12:15], s{sY} offen lds")
        k(f"s_add_u32 m0, s{sLw}, {stg+16384+1024}\ns_nop 0")
        k(f"buffer_load_dwordx4 {v(dB)}, s[12:15], s{sX} offen lds")
    for c in range(4): dma(c)
    k.stamp(1)
    k(f"s_add_u32 s36, s36, {WS_QKV}\ns_addc_u32 s37, s37, 0\ns_and_b32 s37, s37, 0xffff\ns_mov_b32 s38, {QKV_BYTES}\ns_mov_b32 s39, 0x20000")
    k(f"s_lshl_b32 s{sT0}, s{sM}, 1\ns_add_u32 s{sT0}, s{sT0}, s{sN}")
    k(f"v_and_b32 {v(tmp[0])}, 31, {v(lane)}\nv_lshrrev_b32 {v(tmp[1])}, 5, {v(lane)}")
    k(f"s_lshl_b32 s{sT1}, s{sM}, 6\nv_add_u32 {v(tmp[2])}, s{sT1}, {v(tmp[0])}\nv_lshlrev_b32 {v(tmp[2])}, 7, {v(tmp[2])}")
    k(f"v_bfe_u32 {v(tmp[3])}, {v(lane)}, 1, 3")
    k(f"v_bfe_u32 {v(tmp[4])}, {v(lane)}, 2, 2")
    k(f"v_lshl_add_u32 {v(tmp[5])}, {v(tmp[1])}, 3, {v(tmp[4])}\nv_lshlrev_b32 {v(tmp[5])}, 8, {v(tmp[5])}")
    k(f"v_xor_b32 {v(tmp[4])}, s{sN}, {v(tmp[4])}\nv_lshl_add_u32 {v(tmp[5])}, {v(tmp[4])}, 6, {v(tmp[5])}")
    k(f"v_bfe_u32 {v(tmp[4])}, {v(lane)}, 4, 1\nv_lshl_add_u32 {v(tmp[5])}, {v(tmp[4])}, 5, {v(tmp[5])}")
    k(f"v_and_b32 {v(tmp[4])}, 3, {v(lane)}\nv_lshl_add_u32 {v(tmp[5])}, {v(tmp[4])}, 3, {v(tmp[5])}")
    k(f"v_add_u32 {v(tmp[5])}, 16384, {v(tmp[5])}")
    for j in range(4):
        k(f"s_add_u32 s{sT1}, s{sT0}, {j}\ns_and_b32 s{sT1}, s{sT1}, 3\ns_lshl_b32 s{sT2}, s{sT1}, 1\ns_lshl_b32 s{sT3}, s{sT1}, 12")
        k(f"v_add_u32 {v(tmp[4])}, s{sT2}, {v(tmp[1])}\nv_xor_b32 {v(tmp[4])}, {v(tmp[4])}, {v(tmp[3])}")
        k(f"v_lshl_add_u32 {v(vA[0][j])}, {v(tmp[4])}, 4, {v(tmp[2])}\nv_add_u32 {v(vA[1][j])}, 0x10000, {v(vA[0][j])}")
        k(f"v_add_u32 {v(vB[0][j])}, s{sT3}, {v(tmp[5])}\nv_add_u32 {v(vB[1][j])}, 0x10000, {v(vB[0][j])}")
    for i in range(8): k(f"v_mov_b32 {v(st+i)}, 0")
    k(f"v_bfe_u32 {v(tmp[4])}, {v(lane)}, 4, 1\nv_bfe_u32 {v(tmp[6])}, {v(lane)}, 3, 1")
    k(f"v_cmp_eq_u32 vcc, {v(tmp[4])}, {v(tmp[6])}")
    k(f"v_mov_b32 {v(tmp[4])}, 0x3f803f80\nv_mov_b32 {v(tmp[6])}, 0")
    for i in range(4): k(f"v_cndmask_b32 {v(sel+i)}, {v(tmp[6])}, {v(tmp[4])}, vcc")
    k(f"s_mov_b32 s{sOnes}, 0xffff0000")
    k(f"s_mul_i32 s{sSec}, s{sCB}, 52\ns_lshr_b32 s{sSec}, s{sSec}, 8")
    LV = k.L("vpath"); Lepi = k.L("epi")
    k(f"s_cmp_eq_u32 s{sSec}, 2\ns_cbranch_scc1 {LV}")

    def reads(c):
        b = c & 1; stg = c % NST; hi = stg >> 1; so = (stg & 1) * STG
        out = []
        for j in range(4):
            out.append(f"ds_read_b128 {v(FA[b][j][0],4)}, {v(vA[hi][j])} offset:{so}")
            out.append(f"ds_read_b64_tr_b16 {v(FB[b][j],2)}, {v(vB[hi][j])} offset:{so}")
            out.append(f"ds_read_b64_tr_b16 {v(FB[b][j]+2,2)}, {v(vB[hi][j])} offset:{so+1024}")
            out.append(f"ds_read_b128 {v(FA[b][j][1],4)}, {v(vA[hi][j])} offset:{so+4096}")
        return out
    def mainloop(vorient):
        for c in range(-1, NCH):
            if c + 1 < NCH:
                allowed = (min(c + 3, NCH - 1) - (c + 1)) * 4
                if 'nodma' in dbg: allowed = 0 if c == 2 else 63
                k(f"s_waitcnt vmcnt({allowed})\ns_barrier")
            if c == -1: k.stamp(2)
            if c >= 0 and c + 4 < NCH and 'nodma' not in dbg: dma(c + 4)
            rd = reads(c + 1) if (c + 1 < NCH and 'noread' not in dbg) else []
            mf = []; dots = [[] for _ in range(4)]
            if c >= 0:
                b = c & 1
                for j in range(4):
                    for i in range(2):
                        cin = v(acc[i], 16) if not (c == 0 and j == 0) else "0"
                        x, w_ = v(FA[b][j][i], 4), v(FB[b][j], 4)
                        if vorient: mf.append(f"v_mfma_f32_32x32x16_bf16 {v(acc[i],16)}, {x}, {w_}, {cin}")
                        else: mf.append(f"v_mfma_f32_32x32x16_bf16 {v(acc[i],16)}, {w_}, {x}, {cin}")
                dl = []
                for i in range(2):
                    for r in range(4):
                        x = FA[b][0][i] + r; u = ut + 2 * ((4 * i + r) % 4)
                        if 'pk' in dbg:
                            dl.append(f"v_lshlrev_b32 {v(u)}, 16, {v(x)}")
                            dl.append(f"v_and_b32 {v(u+1)}, s{sOnes}, {v(x)}")
                            dl.append(f"v_pk_add_f32 {v(st+2*i,2)}, {v(st+2*i,2)}, {v(u,2)}")
                            dl.append(f"v_pk_fma_f32 {v(st+4+2*i,2)}, {v(u,2)}, {v(u,2)}, {v(st+4+2*i,2)}")
                        else:
                            dl.append(f"v_lshlrev_b32 {v(u)}, 16, {v(x)}")
                            dl.append(f"v_and_b32 {v(u+1)}, s{sOnes}, {v(x)}")
                            dl.append(f"v_add_f32 {v(st+i)}, {v(st+i)}, {v(u)}")
                            dl.append(f"v_fmac_f32 {v(st+2+i)}, {v(u)}, {v(u)}")
                            dl.append(f"v_add_f32 {v(st+4+i)}, {v(st+4+i)}, {v(u+1)}")
                            dl.append(f"v_fmac_f32 {v(st+6+i)}, {v(u+1)}, {v(u+1)}")
                if 'pk' in dbg:
                    o = []
                    g = [dl[4*e:4*e+4] for e in range(8)]
                    o += g[0][:2]
                    for e in range(8):
                        if e + 1 < 8: o += g[e+1][:2]
                        o += g[e][2:]
                    dl = o
                else:
                    o = []
                    g = [dl[6*e:6*e+6] for e in range(8)]
                    o += g[0][:2]
                    for e in range(8):
                        if e + 1 < 8: o += g[e+1][:2]
                        o += g[e][2:]
                    dl = o
                for j in range(2):
                    cin = v(cs4, 4) if not (c == 0 and j == 0) else "0"
                    mf.insert(2 + 3 * j, f"v_mfma_f32_16x16x32_bf16 {v(cs4,4)}, {v(sel,4)}, {v(FB[b][j],4)}, {cin}")
            else:
                dl = []
            if 'nodot' in dbg: dl = []; mf = [x for x in mf if '16x16' not in x]
            if 'nomfma' in dbg: mf = []; rd = rd + dl
            if mf:
                nm = len(mf); ri = 0; di = 0
                per_d = (len(dl) + nm - 1) // nm
                for q in range(nm):
                    k(mf[q])
                    for x in rd[ri: ri+3]: k(x)
                    ri += 3
                    for x in dl[di: di+per_d]: k(x)
                    di += per_d
                assert ri >= len(rd) and di >= len(dl)
            else:
                for x in rd: k(x)
            if rd: k("s_waitcnt lgkmcnt(0)")
    mainloop(False)
    k(f"s_branch {Lepi}")
    k.label(LV)
    mainloop(True)
    k.label(Lepi)
    k.stamp(3)
    k.nop(8)
    if 'pk' in dbg:
        k(f"v_add_f32 {v(st)}, {v(st)}, {v(st+1)}\nv_add_f32 {v(st+1)}, {v(st+2)}, {v(st+3)}\nv_add_f32 {v(st+2)}, {v(st+4)}, {v(st+5)}\nv_add_f32 {v(st+3)}, {v(st+6)}, {v(st+7)}")
    else:
        for i in range(4): k(f"v_add_f32 {v(st+i)}, {v(st+i)}, {v(st+4+i)}")
    r_, half = tmp[0], tmp[1]
    k(f"v_and_b32 {v(r_)}, 31, {v(lane)}\nv_lshrrev_b32 {v(half)}, 5, {v(lane)}")
    k(f"s_lshl_b32 s{sT0}, s{sM}, 11\ns_lshl_b32 s{sT1}, s{sN}, 3\ns_add_u32 s{sT0}, s{sT0}, s{sT1}\ns_add_u32 s{sT0}, s{sT0}, {L_PS}")
    k(f"v_lshlrev_b32 {v(tmp[2])}, 5, {v(r_)}\nv_lshl_add_u32 {v(tmp[2])}, {v(half)}, 2, {v(tmp[2])}\nv_add_u32 {v(tmp[2])}, s{sT0}, {v(tmp[2])}")
    k(f"ds_write_b32 {v(tmp[2])}, {v(st)}\nds_write_b32 {v(tmp[2])}, {v(st+1)} offset:1024")
    k(f"ds_write_b32 {v(tmp[2])}, {v(st+2)} offset:4096\nds_write_b32 {v(tmp[2])}, {v(st+3)} offset:{4096+1024}")
    k(f"s_lshl_b32 s{sT0}, s{sN}, 8\ns_lshl_b32 s{sT1}, s{sM}, 2\ns_add_u32 s{sT0}, s{sT0}, s{sT1}\ns_add_u32 s{sT0}, s{sT0}, {L_PC}")
    k(f"v_and_b32 {v(tmp[3])}, 15, {v(lane)}\nv_lshl_add_u32 {v(tmp[3])}, {v(half)}, 4, {v(tmp[3])}\nv_lshlrev_b32 {v(tmp[3])}, 3, {v(tmp[3])}\nv_add_u32 {v(tmp[3])}, s{sT0}, {v(tmp[3])}")
    k(f"ds_write_b32 {v(tmp[3])}, {v(cs4)}")
    k("s_waitcnt lgkmcnt(0)\ns_barrier")
    Lr2 = k.L("red2"); Lr3 = k.L("red3")
    T = FA[0][0][0]
    k(f"s_cmp_ge_u32 s{sW}, 2\ns_cbranch_scc1 {Lr2}")
    k(f"v_lshlrev_b32 {v(tmp[2])}, 5, v0\nv_add_u32 {v(tmp[2])}, {L_PS}, {v(tmp[2])}")
    k(f"ds_read_b128 {v(T,4)}, {v(tmp[2])}\nds_read_b128 {v(T+4,4)}, {v(tmp[2])} offset:16")
    k(f"ds_read_b128 {v(T+8,4)}, {v(tmp[2])} offset:4096\nds_read_b128 {v(T+12,4)}, {v(tmp[2])} offset:{4096+16}")
    k("s_waitcnt lgkmcnt(0)")
    for base in (T, T + 8):
        k(f"v_add_f32 {v(base)}, {v(base)}, {v(base+1)}\nv_add_f32 {v(base+2)}, {v(base+2)}, {v(base+3)}\nv_add_f32 {v(base+4)}, {v(base+4)}, {v(base+5)}\nv_add_f32 {v(base+6)}, {v(base+6)}, {v(base+7)}")
        k(f"v_add_f32 {v(base)}, {v(base)}, {v(base+2)}\nv_add_f32 {v(base+4)}, {v(base+4)}, {v(base+6)}\nv_add_f32 {v(base)}, {v(base)}, {v(base+4)}")
    k(f"v_mul_f32 {v(T)}, {fbits(1.0/D)}, {v(T)}\nv_mul_f32 {v(T+8)}, {fbits(1.0/D)}, {v(T+8)}")
    k(f"v_fma_f32 {v(T+8)}, -{v(T)}, {v(T)}, {v(T+8)}\nv_max_f32 {v(T+8)}, 0, {v(T+8)}\nv_add_f32 {v(T+8)}, {fbits(1e-5)}, {v(T+8)}")
    k(f"v_rsq_f32 {v(T+8)}, {v(T+8)}")
    k(f"s_cmp_eq_u32 s{sSec}, 0\ns_cselect_b32 s{sT0}, {fbits(QSCALE)}, 1.0")
    k(f"v_mul_f32 {v(T+8)}, s{sT0}, {v(T+8)}\nv_sub_f32 {v(T)}, 0, {v(T)}")
    k(f"v_lshlrev_b32 {v(tmp[2])}, 2, v0\nv_add_u32 {v(tmp[2])}, {L_RS}, {v(tmp[2])}")
    k(f"ds_write_b32 {v(tmp[2])}, {v(T+8)}\nds_write_b32 {v(tmp[2])}, {v(T)} offset:512")
    k(f"s_branch {Lr3}")
    k.label(Lr2)
    k(f"s_cmp_ge_u32 s{sW}, 4\ns_cbranch_scc1 {Lr3}")
    k(f"v_subrev_u32 {v(tmp[2])}, 128, v0\nv_lshlrev_b32 {v(tmp[3])}, 3, {v(tmp[2])}\nv_add_u32 {v(tmp[3])}, {L_PC}, {v(tmp[3])}")
    k(f"ds_read_b64 {v(T,2)}, {v(tmp[3])}\ns_waitcnt lgkmcnt(0)")
    k(f"v_add_f32 {v(T)}, {v(T)}, {v(T+1)}")
    k(f"v_lshlrev_b32 {v(tmp[2])}, 2, {v(tmp[2])}\nv_add_u32 {v(tmp[2])}, {L_CS}, {v(tmp[2])}\nds_write_b32 {v(tmp[2])}, {v(T)}")
    k.label(Lr3)
    k("s_waitcnt lgkmcnt(0)\ns_barrier")
    k.stamp(4)
    LVe = k.L("vepi")
    k(f"s_lshr_b32 s{sT0}, s{sRB}, 1\ns_mul_i32 s{sX}, s{sT0}, {BLK_STRIDE}")
    k(f"s_mul_i32 s{sT0}, s{sSec}, 5\ns_sub_u32 s{sCB}, s{sCB}, s{sT0}")
    k(f"s_cmp_eq_u32 s{sSec}, 2\ns_cbranch_scc1 {LVe}")
    CSr = T
    RS0, MR0, RS1, MR1 = tmp[4], tmp[5], tmp[6], tmp[7]
    k(f"s_lshl_b32 s{sT0}, s{sM}, 8\ns_add_u32 s{sT0}, s{sT0}, {L_RS}")
    k(f"v_lshl_add_u32 {v(tmp[2])}, {v(r_)}, 2, s{sT0}")
    k(f"ds_read_b32 {v(RS0)}, {v(tmp[2])}\nds_read_b32 {v(MR0)}, {v(tmp[2])} offset:512\nds_read_b32 {v(RS1)}, {v(tmp[2])} offset:128\nds_read_b32 {v(MR1)}, {v(tmp[2])} offset:{512+128}")
    k(f"s_lshl_b32 s{sT0}, s{sN}, 7\ns_add_u32 s{sT0}, s{sT0}, {L_CS}")
    k(f"v_lshl_add_u32 {v(tmp[2])}, {v(half)}, 4, s{sT0}")
    for j in range(4): k(f"ds_read_b128 {v(CSr+4*j,4)}, {v(tmp[2])} offset:{32*j}")
    k(f"s_and_b32 s{sT0}, s{sRB}, 1\ns_lshl_b32 s{sT0}, s{sT0}, 2\ns_lshl_b32 s{sT1}, s{sM}, 1\ns_add_u32 s{sT0}, s{sT0}, s{sT1}")
    k(f"s_cmp_eq_u32 s{sSec}, 0\ns_cselect_b32 s{sT1}, {Q1OFF}, {K1OFF}\ns_add_u32 s{sX}, s{sX}, s{sT1}")
    k(f"s_lshl_b32 s{sT2}, s{sT0}, 10\ns_lshl_b32 s{sT3}, s{sT0}, 8\ns_add_u32 s{sT3}, s{sT3}, {K2OFF}")
    k(f"s_lshl_b32 s{sT0}, s{sCB}, 5\ns_lshl_b32 s{sT1}, s{sN}, 3\ns_add_u32 s{sT0}, s{sT0}, s{sT1}")
    k(f"v_add_u32 {v(tmp[2])}, s{sT0}, {v(half)}")
    AD = T + 16
    a1, a2 = tmp[8], tmp[9]
    for j in range(4):
        q = tmp[3]
        k(f"v_add_u32 {v(q)}, {2*j}, {v(tmp[2])}")
        k(f"v_mul_u32_u24 {v(a1)}, 205, {v(q)}\nv_lshrrev_b32 {v(a1)}, 10, {v(a1)}")
        k(f"v_mul_u32_u24 {v(a2)}, 5, {v(a1)}\nv_sub_u32 {v(q)}, {v(q)}, {v(a2)}")
        k(f"v_mul_u32_u24 {v(a1)}, {HEAD_STRIDE}, {v(a1)}")
        k(f"v_lshrrev_b32 {v(a2)}, 1, {v(q)}\nv_lshlrev_b32 {v(a2)}, 9, {v(a2)}\nv_lshl_add_u32 {v(a2)}, {v(r_)}, 4, {v(a2)}")
        k(f"v_and_b32 {v(AD+2*j+1)}, 1, {v(q)}\nv_lshl_add_u32 {v(a2)}, {v(AD+2*j+1)}, 3, {v(a2)}\nv_add_u32 {v(a2)}, s{sT2}, {v(a2)}")
        k(f"v_lshl_add_u32 {v(AD+2*j+1)}, {v(r_)}, 3, s{sT3}")
        k(f"v_cmp_eq_u32 vcc, 4, {v(q)}")
        k(f"v_mov_b32 {v(q)}, 1024")
        k(f"v_mov_b32 {v(AD+2*j)}, 256")
        k(f"v_cndmask_b32 {v(a2)}, {v(a2)}, {v(AD+2*j+1)}, vcc")
        k(f"v_cndmask_b32 {v(q)}, {v(q)}, {v(AD+2*j)}, vcc")
        k(f"v_add_u32 {v(AD+2*j)}, {v(a1)}, {v(a2)}\nv_add_u32 {v(AD+2*j+1)}, {v(AD+2*j)}, {v(q)}")
    k("s_waitcnt lgkmcnt(0)")
    PK = T + 24
    for i in range(2):
        RS, MR = (RS0, MR0) if i == 0 else (RS1, MR1)
        for r in range(16):
            k(f"v_fmac_f32 {v(acc[i]+r)}, {v(CSr+r)}, {v(MR)}")
        for r in range(16):
            k(f"v_mul_f32 {v(acc[i]+r)}, {v(acc[i]+r)}, {v(RS)}")
        for j in range(4):
            p = PK + 8 * i + 2 * j
            k(f"v_cvt_pk_bf16_f32 {v(p)}, {v(acc[i]+4*j)}, {v(acc[i]+4*j+1)}\nv_cvt_pk_bf16_f32 {v(p+1)}, {v(acc[i]+4*j+2)}, {v(acc[i]+4*j+3)}")
            k(f"buffer_store_dwordx2 {v(p,2)}, {v(AD+2*j+i)}, s[36:39], s{sX} offen")
    k(f"s_branch {done if not prof else 'L_prof_end'}")
    k.label(LVe)
    CSv = tmp[4]
    k(f"s_lshl_b32 s{sT0}, s{sN}, 7\ns_add_u32 s{sT0}, s{sT0}, {L_CS}")
    k(f"v_lshl_add_u32 {v(tmp[2])}, {v(r_)}, 2, s{sT0}\nds_read_b32 {v(CSv)}, {v(tmp[2])}")
    k(f"s_lshl_b32 s{sT0}, s{sM}, 8\ns_add_u32 s{sT0}, s{sT0}, {L_RS}")
    k(f"v_lshl_add_u32 {v(tmp[2])}, {v(half)}, 4, s{sT0}")
    RSv = T; MRv = T + 32
    for i in range(2):
        for j in range(4):
            k(f"ds_read_b128 {v(RSv+16*i+4*j,4)}, {v(tmp[2])} offset:{128*i+32*j}")
            k(f"ds_read_b128 {v(MRv+16*i+4*j,4)}, {v(tmp[2])} offset:{512+128*i+32*j}")
    k(f"s_lshl_b32 s{sT0}, s{sCB}, 7\ns_lshl_b32 s{sT1}, s{sN}, 5\ns_add_u32 s{sT0}, s{sT0}, s{sT1}")
    k(f"v_add_u32 {v(tmp[3])}, s{sT0}, {v(r_)}")
    k(f"v_mul_u32_u24 {v(tmp[5])}, 3277, {v(tmp[3])}\nv_lshrrev_b32 {v(tmp[5])}, 16, {v(tmp[5])}")
    k(f"v_mul_u32_u24 {v(tmp[6])}, 20, {v(tmp[5])}\nv_sub_u32 {v(tmp[3])}, {v(tmp[3])}, {v(tmp[6])}")
    k(f"v_mul_u32_u24 {v(tmp[5])}, {HEAD_STRIDE}, {v(tmp[5])}\nv_lshl_add_u32 {v(tmp[5])}, {v(tmp[3])}, 4, {v(tmp[5])}")
    k(f"v_mul_u32_u24 {v(tmp[6])}, 320, {v(half)}\nv_add_u32 {v(tmp[5])}, {v(tmp[5])}, {v(tmp[6])}")
    k(f"s_and_b32 s{sT0}, s{sRB}, 1\ns_lshl_b32 s{sT0}, s{sT0}, 3\ns_lshl_b32 s{sT1}, s{sM}, 2\ns_add_u32 s{sT0}, s{sT0}, s{sT1}\ns_mul_i32 s{sT0}, s{sT0}, 640")
    k(f"s_add_u32 s{sX}, s{sX}, s{sT0}\ns_add_u32 s{sX}, s{sX}, {VOFF}")
    k("s_waitcnt lgkmcnt(0)")
    PK = T + 64
    for i in range(2):
        for r in range(16):
            k(f"v_fmac_f32 {v(acc[i]+r)}, {v(CSv)}, {v(MRv+16*i+r)}")
        for r in range(16):
            k(f"v_mul_f32 {v(acc[i]+r)}, {v(acc[i]+r)}, {v(RSv+16*i+r)}")
        for g in range(2):
            p = PK + 8 * i + 4 * g
            for q in range(4):
                k(f"v_cvt_pk_bf16_f32 {v(p+q)}, {v(acc[i]+8*g+2*q)}, {v(acc[i]+8*g+2*q+1)}")
            k(f"buffer_store_dwordx4 {v(p,4)}, {v(tmp[5])}, s[36:39], s{sX} offen offset:{(2*i+g)*640}")
    if prof:
        k.label("L_prof_end")
        k.stamp(5); k.stamp_real(7)
        k("s_sub_u32 s36, s36, 0")
        k.prof_store(8, 36, WS_END, tmp[0], sW)
    k.label(done)
    k("s_endpgm")
    k.label(Lcs)
    k(f"s_load_dwordx4 s[44:47], s[0:1], {KA_W1}")
    k(f"v_mul_u32_u24 {v(tmp[0])}, 2428, v0\nv_lshrrev_b32 {v(tmp[0])}, 16, {v(tmp[0])}")
    k(f"v_mul_u32_u24 {v(tmp[1])}, 27, {v(tmp[0])}\nv_sub_u32 {v(tmp[1])}, v0, {v(tmp[1])}")
    k(f"s_and_b32 s{sT0}, s{sRB}, 7\ns_mul_i32 s{sT0}, s{sT0}, 432")
    k(f"v_mul_u32_u24 {v(tmp[2])}, {40*F*2}, {v(tmp[0])}\nv_lshl_add_u32 {v(tmp[2])}, {v(tmp[1])}, 4, {v(tmp[2])}\nv_add_u32 {v(tmp[2])}, s{sT0}, {v(tmp[2])}")
    k("s_waitcnt lgkmcnt(0)")
    k(f"s_cmp_ge_u32 s{sRB}, 8\ns_cselect_b32 s8, s46, s44\ns_cselect_b32 s9, s47, s45\ns_and_b32 s9, s9, 0xffff\ns_mov_b32 s10, {D*F*2}\ns_mov_b32 s11, 0x20000")
    A8 = FA[0][0][0]; LD = A8 + 8
    for i in range(8): k(f"v_mov_b32 {v(A8+i)}, 0")
    Lsk = k.L("cs_skip")
    k(f"v_cmp_gt_u32 vcc, 16, {v(tmp[0])}")
    k(f"s_and_saveexec_b64 s[40:41], vcc\ns_cbranch_execz {Lsk}")
    k(f"s_mov_b32 s{sT1}, 0")
    Lcl = k.L("cs_loop")
    k.label(Lcl)
    for i in range(10):
        k(f"buffer_load_dwordx4 {v(LD+4*i,4)}, {v(tmp[2])}, s[8:11], s{sT1} offen\ns_add_u32 s{sT1}, s{sT1}, {F*2}")
    for i in range(10):
        k(f"s_waitcnt vmcnt({9-i})")
        for q in range(4):
            x = LD + 4 * i + q
            k(f"v_lshlrev_b32 {v(tmp[4])}, 16, {v(x)}\nv_and_b32 {v(tmp[5])}, 0xffff0000, {v(x)}")
            k(f"v_add_f32 {v(A8+2*q)}, {v(A8+2*q)}, {v(tmp[4])}\nv_add_f32 {v(A8+2*q+1)}, {v(A8+2*q+1)}, {v(tmp[5])}")
    k(f"s_cmp_lt_u32 s{sT1}, {40*F*2}\ns_cbranch_scc1 {Lcl}")
    k(f"v_mul_u32_u24 {v(tmp[3])}, 864, {v(tmp[0])}\nv_lshl_add_u32 {v(tmp[3])}, {v(tmp[1])}, 5, {v(tmp[3])}")
    k(f"ds_write_b128 {v(tmp[3])}, {v(A8,4)}\nds_write_b128 {v(tmp[3])}, {v(A8+4,4)} offset:16")
    k.label(Lsk)
    k("s_mov_b64 exec, s[40:41]")
    k("s_waitcnt lgkmcnt(0)\ns_barrier")
    Lsk2 = k.L("cs_skip2")
    k(f"v_cmp_gt_u32 vcc, 216, v0")
    k(f"s_and_saveexec_b64 s[40:41], vcc\ns_cbranch_execz {Lsk2}")
    k(f"v_lshlrev_b32 {v(tmp[3])}, 2, v0")
    for i in range(16): k(f"ds_read_b32 {v(LD+i)}, {v(tmp[3])} offset:{864*i}")
    k("s_waitcnt lgkmcnt(0)")
    for i in range(1, 16): k(f"v_add_f32 {v(LD)}, {v(LD)}, {v(LD+i)}")
    k(f"s_add_u32 s36, s36, {WS_CS}\ns_addc_u32 s37, s37, 0\ns_and_b32 s37, s37, 0xffff\ns_mov_b32 s38, {CS_BYTES}\ns_mov_b32 s39, 0x20000")
    k(f"s_mul_i32 s{sT0}, s{sRB}, 864")
    k(f"buffer_store_dword {v(LD)}, {v(tmp[3])}, s[36:39], s{sT0} offen")
    k.label(Lsk2)
    k("s_endpgm")
    return k, nv, (102 if prof else 48)

if __name__ == "__main__":
    k, nv, ns = gen_qkv()
    print("vgprs", nv, "hazards", check_kernel(k), "lines", len(k.lines))
```

```python
from asm import *
from layout import *
import struct
def fbits(x): return struct.unpack("<I", struct.pack("<f", x))[0]

def gen_t3(mode, prof=False):
    name = {"oproj": "oproj_kernel", "down": "down_kernel"}[mode]
    K = 640 if mode == "oproj" else F
    NS = 5 if mode == "oproj" else 14
    R = 5 if mode == "oproj" else 6
    WST = 30720
    TSTR = K * 32
    k = Kernel(name); k.prof = prof
    V = Alloc(1, 256)
    lane = V("lane"); tmp = [V(f"t{i}") for i in range(8)]
    dB = [V(f"dB{i}") for i in range(5)]
    vA = [V(f"vA{i}") for i in range(4)]
    vB = V("vB")
    res = V("res", 10, 2)
    acc = [[V(f"acc{i}{j}", 4, 4) for j in range(5)] for i in range(4)]
    FA = [[V(f"FA{r}{i}", 4, 4) for i in range(4)] for r in range(R)]
    FB = [[V(f"FB{b}{j}", 4, 4) for j in range(5)] for b in range(2)]
    nv = V.next
    sW, sRB, sCB = 16, 17, 18
    sT0, sT1, sT2, sT3 = 20, 21, 22, 23
    sA, sB, sL = 24, 25, 26
    done = k.L("done")
    k(f"s_cmp_ge_u32 s2, 256\ns_cbranch_scc1 {done}")
    k.stamp(0); k.stamp_real(6)
    k(f"s_load_dwordx2 s[4:5], s[0:1], {KA_WS}")
    k(f"s_load_dwordx2 s[6:7], s[0:1], {KA_WO if mode == 'oproj' else KA_W2}")
    k(f"s_load_dwordx2 s[28:29], s[0:1], {KA_X if mode == 'oproj' else KA_OUT}")
    k(f"s_and_b32 s{sT0}, s2, 7\ns_lshr_b32 s{sT1}, s2, 3")
    k(f"s_lshr_b32 s{sT2}, s{sT0}, 1\ns_lshl_b32 s{sT2}, s{sT2}, 3\ns_and_b32 s{sT3}, s{sT1}, 7\ns_add_u32 s{sRB}, s{sT2}, s{sT3}")
    k(f"s_and_b32 s{sT2}, s{sT0}, 1\ns_lshl_b32 s{sT2}, s{sT2}, 2\ns_lshr_b32 s{sT3}, s{sT1}, 3\ns_add_u32 s{sCB}, s{sT2}, s{sT3}")
    k(f"v_and_b32 {v(lane)}, 63, v0\nv_lshrrev_b32 {v(tmp[0])}, 6, v0")
    k.nop(1)
    k(f"v_readfirstlane_b32 s{sW}, {v(tmp[0])}")
    for i in range(5):
        k(f"v_add_u32 {v(tmp[0])}, {64*i}, {v(lane)}")
        k(f"v_mul_u32_u24 {v(tmp[1])}, 6554, {v(tmp[0])}\nv_lshrrev_b32 {v(tmp[1])}, 16, {v(tmp[1])}")
        k(f"v_mul_u32_u24 {v(tmp[2])}, 10, {v(tmp[1])}\nv_sub_u32 {v(tmp[0])}, {v(tmp[0])}, {v(tmp[2])}")
        k(f"v_mul_u32_u24 {v(tmp[1])}, 1280, {v(tmp[1])}\nv_lshl_add_u32 {v(dB[i])}, {v(tmp[0])}, 4, {v(tmp[1])}")
    k(f"v_lshlrev_b32 {v(vA[0])}, 4, {v(lane)}")
    for i in range(1, 4): k(f"v_add_u32 {v(vA[i])}, {i*TSTR}, {v(vA[0])}")
    k(f"s_mul_i32 s{sT0}, s{sW}, {NS}")
    k(f"s_mul_i32 s{sA}, s{sRB}, {4*TSTR}\ns_lshl_b32 s{sT1}, s{sT0}, 10\ns_add_u32 s{sA}, s{sA}, s{sT1}")
    k(f"s_mul_i32 s{sB}, s{sT0}, {32*1280}\ns_mul_i32 s{sT1}, s{sCB}, 160\ns_add_u32 s{sB}, s{sB}, s{sT1}")
    k(f"s_mul_i32 s{sL}, s{sW}, {WST}")
    k("s_waitcnt lgkmcnt(0)")
    aoff, abytes = (WS_O, O_BYTES) if mode == "oproj" else (WS_HH, HH_BYTES)
    k(f"s_add_u32 s8, s4, {aoff}\ns_addc_u32 s9, s5, 0\ns_and_b32 s9, s9, 0xffff\ns_mov_b32 s10, {abytes}\ns_mov_b32 s11, 0x20000")
    k(f"s_mov_b32 s12, s6\ns_and_b32 s13, s7, 0xffff\ns_mov_b32 s14, {K*1280}\ns_mov_b32 s15, 0x20000")
    def loads(s):
        r = s % R
        k(f"s_add_u32 s{sT0}, s{sA}, {s*1024}")
        for i in range(4):
            k(f"buffer_load_dwordx4 {v(FA[r][i],4)}, {v(vA[i])}, s[8:11], s{sT0} offen")
        k(f"s_add_u32 s{sT0}, s{sB}, {s*32*1280}")
        for i in range(5):
            k(f"s_add_u32 m0, s{sL}, {r*5120 + i*1024}\ns_nop 0")
            k(f"buffer_load_dwordx4 {v(dB[i])}, s[12:15], s{sT0} offen lds")
    for s in range(min(R, NS)): loads(s)
    k.stamp(1)
    tok, G = tmp[4], tmp[5]
    k(f"v_and_b32 {v(tok)}, 15, {v(lane)}\nv_lshrrev_b32 {v(G)}, 4, {v(lane)}")
    k(f"s_lshl_b32 s{sT0}, s{sRB}, 6\ns_lshl_b32 s{sT1}, s{sW}, 4\ns_add_u32 s{sT0}, s{sT0}, s{sT1}\nv_add_u32 {v(tok)}, s{sT0}, {v(tok)}")
    hb = tmp[6]
    k(f"v_lshrrev_b32 {v(tmp[0])}, 5, {v(tok)}\nv_mul_u32_u24 {v(hb)}, 40960, {v(tmp[0])}")
    k(f"v_and_b32 {v(tmp[0])}, 31, {v(tok)}\nv_lshl_add_u32 {v(hb)}, {v(tmp[0])}, 4, {v(hb)}")
    k(f"v_lshrrev_b32 {v(tmp[0])}, 1, {v(G)}\nv_lshl_add_u32 {v(hb)}, {v(tmp[0])}, 9, {v(hb)}")
    k(f"v_and_b32 {v(tmp[0])}, 1, {v(G)}\nv_lshl_add_u32 {v(hb)}, {v(tmp[0])}, 3, {v(hb)}")
    rm = tmp[7]
    k(f"v_mul_u32_u24 {v(rm)}, 1280, {v(tok)}\nv_lshl_add_u32 {v(rm)}, {v(G)}, 3, {v(rm)}")
    k(f"s_add_u32 s32, s4, {WS_H}\ns_addc_u32 s33, s5, 0\ns_and_b32 s33, s33, 0xffff\ns_mov_b32 s34, {H_BYTES}\ns_mov_b32 s35, 0x20000")
    k(f"s_mov_b32 s36, s28\ns_and_b32 s37, s29, 0xffff\ns_mov_b32 s38, {S*D*2}\ns_mov_b32 s39, 0x20000")
    k(f"s_mul_i32 s40, s{sCB}, 5120\ns_mul_i32 s41, s{sCB}, 160")
    k(f"v_mul_u32_u24 {v(vB)}, 640, {v(G)}\nv_bfe_u32 {v(tmp[0])}, {v(lane)}, 2, 2\nv_mul_u32_u24 {v(tmp[0])}, 160, {v(tmp[0])}\nv_add_u32 {v(vB)}, {v(vB)}, {v(tmp[0])}")
    k(f"v_and_b32 {v(tmp[0])}, 3, {v(lane)}\nv_lshl_add_u32 {v(vB)}, {v(tmp[0])}, 3, {v(vB)}\nv_add_u32 {v(vB)}, s{sL}, {v(vB)}")
    def treads(s):
        r = s % R; b = s & 1; out = []
        for j in range(5):
            out.append(f"ds_read_b64_tr_b16 {v(FB[b][j],2)}, {v(vB)} offset:{r*5120 + 32*j}")
            out.append(f"ds_read_b64_tr_b16 {v(FB[b][j]+2,2)}, {v(vB)} offset:{r*5120 + 32*j + 2560}")
        return out
    issued = min(R, NS) - 1
    k(f"s_waitcnt vmcnt({9*issued})")
    k.stamp(2)
    for x in treads(0): k(x)
    k("s_waitcnt lgkmcnt(0)")
    nres = 0
    for s in range(NS):
        rd = []
        if s + 1 < NS:
            k(f"s_waitcnt vmcnt({9*(issued-(s+1)) + nres})")
            rd = treads(s + 1)
        r = s % R; b = s & 1
        q = 0
        for i in range(4):
            for j in range(5):
                cin = v(acc[i][j], 4) if s > 0 else "0"
                k(f"v_mfma_f32_16x16x32_bf16 {v(acc[i][j],4)}, {v(FB[b][j],4)}, {v(FA[r][i],4)}, {cin}")
                if q < len(rd): k(rd[q])
                q += 1
        if s + R < NS:
            loads(s + R); issued = s + R
        if s + R == NS or (NS <= R and s == 0):
            for j in range(5):
                if mode == "oproj": k(f"buffer_load_dwordx2 {v(res+2*j,2)}, {v(rm)}, s[36:39], s41 offen offset:{32*j}")
                else: k(f"buffer_load_dwordx2 {v(res+2*j,2)}, {v(hb)}, s[32:35], s40 offen offset:{1024*j}" if j < 4 else
                        f"buffer_load_dwordx2 {v(res+2*j,2)}, {v(hb)}, s[32:35], s42 offen")
                if j == 3 and mode == "down": k("s_add_u32 s42, s40, 4096")
            nres = 5
        if rd: k("s_waitcnt lgkmcnt(0)")
    k.stamp(3)
    k.nop(8)
    k(f"v_lshlrev_b32 {v(tmp[0])}, 4, {v(lane)}\nv_add_u32 {v(tmp[1])}, s{sL}, {v(tmp[0])}")
    for i in range(4):
        for j in range(5):
            k(f"ds_write_b128 {v(tmp[1])}, {v(acc[i][j],4)} offset:{(i*5+j)*1024}")
    k("s_waitcnt lgkmcnt(0)\ns_barrier")
    k(f"s_mul_i32 s{sT0}, s{sW}, 5120\nv_add_u32 {v(tmp[1])}, s{sT0}, {v(tmp[0])}")
    P = FA[0][0]
    for src in range(4):
        if src * WST >= 65536 - 5120:
            if src == 2: k(f"v_add_u32 {v(tmp[1])}, {2*WST}, {v(tmp[1])}")
            base = (src - 2) * WST
        else: base = src * WST
        for j in range(5):
            k(f"ds_read_b128 {v(P+20*src+4*j,4)}, {v(tmp[1])} offset:{base + j*1024}")
    k("s_waitcnt lgkmcnt(0)")
    for r in range(20):
        k(f"v_add_f32 {v(P+r)}, {v(P+r)}, {v(P+20+r)}\nv_add_f32 {v(P+40+r)}, {v(P+40+r)}, {v(P+60+r)}")
    for r in range(20): k(f"v_add_f32 {v(P+r)}, {v(P+r)}, {v(P+40+r)}")
    k.stamp(4)
    k("s_waitcnt vmcnt(0)")
    U = P + 20
    for j in range(5):
        for q in range(2):
            x = res + 2 * j + q
            k(f"v_lshlrev_b32 {v(U)}, 16, {v(x)}\nv_and_b32 {v(U+1)}, 0xffff0000, {v(x)}")
            k(f"v_add_f32 {v(P+4*j+2*q)}, {v(P+4*j+2*q)}, {v(U)}\nv_add_f32 {v(P+4*j+2*q+1)}, {v(P+4*j+2*q+1)}, {v(U+1)}")
            k(f"v_cvt_pk_bf16_f32 {v(x)}, {v(P+4*j+2*q)}, {v(P+4*j+2*q+1)}")
    if mode == "oproj":
        for j in range(5):
            if j == 4: k("s_add_u32 s42, s40, 4096")
            k(f"buffer_store_dwordx2 {v(res+2*j,2)}, {v(hb)}, s[32:35], {'s40' if j < 4 else 's42'} offen" + (f" offset:{1024*j}" if j < 4 else ""))
        sm, sq = U + 2, U + 3
        k(f"v_mov_b32 {v(sm)}, 0\nv_mov_b32 {v(sq)}, 0")
        for x in range(10):
            k(f"v_lshlrev_b32 {v(U)}, 16, {v(res+x)}\nv_and_b32 {v(U+1)}, 0xffff0000, {v(res+x)}")
            k(f"v_add_f32 {v(sm)}, {v(sm)}, {v(U)}\nv_fmac_f32 {v(sq)}, {v(U)}, {v(U)}\nv_add_f32 {v(sm)}, {v(sm)}, {v(U+1)}\nv_fmac_f32 {v(sq)}, {v(U+1)}, {v(U+1)}")
        for sw in ("v_permlane16_swap_b32", "v_permlane32_swap_b32"):
            k(f"v_mov_b32 {v(U+4)}, {v(sm)}\nv_mov_b32 {v(U+5)}, {v(sm)}\nv_mov_b32 {v(U+6)}, {v(sq)}\nv_mov_b32 {v(U+7)}, {v(sq)}")
            k.nop(2)
            k(f"{sw} {v(U+4)}, {v(U+5)}\n{sw} {v(U+6)}, {v(U+7)}")
            k.nop(1)
            k(f"v_add_f32 {v(sm)}, {v(U+4)}, {v(U+5)}\nv_add_f32 {v(sq)}, {v(U+6)}, {v(U+7)}")
        k(f"s_add_u32 s44, s4, {WS_ST}\ns_addc_u32 s45, s5, 0\ns_and_b32 s45, s45, 0xffff\ns_mov_b32 s46, {ST_BYTES}\ns_mov_b32 s47, 0x20000")
        k(f"v_lshlrev_b32 {v(tmp[0])}, 6, {v(tok)}\ns_lshl_b32 s{sT0}, s{sCB}, 3")
        k("s_mov_b64 exec, 0xffff")
        k(f"buffer_store_dwordx2 {v(sm,2)}, {v(tmp[0])}, s[44:47], s{sT0} offen")
        k("s_mov_b64 exec, -1")
    else:
        for j in range(5):
            k(f"buffer_store_dwordx2 {v(res+2*j,2)}, {v(rm)}, s[36:39], s41 offen offset:{32*j}")
    k.stamp(5); k.stamp_real(7)
    k.prof_store(8, 4, WS_END, tmp[0], sW)
    k.label(done)
    k("s_endpgm")
    return k, nv, (102 if prof else 56), 4 * WST

if __name__ == "__main__":
    for m in ("oproj", "down"):
        k, nv, ns, lds = gen_t3(m)
        print(m, "vgprs", nv, "hazards", check_kernel(k), "lines", len(k.lines), "lds", lds)
```

```python
S = 2048; D = 640; H = 32; DH = 20; F = 1728
HEAD_STRIDE = 245760
BLK_STRIDE = 30720
K1OFF = 0; K2OFF = 8192; VOFF = 10240; Q1OFF = 20480; Q2OFF = 28672
LBLK = 20480
WS_QKV = 0
QKV_BYTES = 32 * HEAD_STRIDE
WS_O = QKV_BYTES
O_BYTES = S * D * 2
WS_H = WS_O + O_BYTES
H_BYTES = S * D * 2
WS_ST = WS_H + H_BYTES
ST_BYTES = S * 8 * 2 * 4
WS_HH = WS_ST + ST_BYTES
HH_BYTES = S * F * 2
WS_CS = WS_HH + HH_BYTES
CS_BYTES = 2 * F * 4
WS_END = WS_CS + CS_BYTES
KA_X = 0; KA_WQKV = 8; KA_WO = 16; KA_BX = 24; KA_W1 = 32; KA_W3 = 40; KA_W2 = 48; KA_OUT = 56; KA_DBG = 64; KA_WS = 72
import math
QSCALE = (DH ** -0.5) * math.log2(math.e)
```

```python
import sys
from asm import *
from layout import *
import build as B, k_qkv, k_attn, k_t3, k_ffn
def make(prof=False):
    k1, nv1, ns1 = k_qkv.gen_qkv(prof=prof)
    k2, nv2, ns2 = k_attn.gen_attn(prof=prof)
    k3, nv3, ns3, l3 = k_t3.gen_t3("oproj", prof=prof)
    k4, nv4, ns4 = k_ffn.gen_ffn(prof=prof)
    k5, nv5, ns5, l5 = k_t3.gen_t3("down", prof=prof)
    ks = [(k1, nv1, ns1, 256, 512, k_qkv.LDS_QKV), (k2, nv2, ns2, 256, 512, 163840), (k3, nv3, ns3, 256, 256, l3),
          (k4, nv4, ns4, 256, 512, k_ffn.LDS_FFN), (k5, nv5, ns5, 256, 256, l5)]
    return ks
if __name__ == "__main__":
    out = B.assemble(make())
    path = sys.argv[1] if len(sys.argv) > 1 else "sequential_preLN__softmax_full_mha__glu_gated_swiglu__prompt.s"
    open(path, "w").write(out)
    print("wrote", path, len(out), "bytes")
```

```python
import re

def v(b, n=1):
    return f"v{b}" if n == 1 else f"v[{b}:{b+n-1}]"
def a(b, n=1):
    return f"a{b}" if n == 1 else f"a[{b}:{b+n-1}]"
def s(b, n=1):
    return f"s{b}" if n == 1 else f"s[{b}:{b+n-1}]"

class Alloc:
    def __init__(self, start=0, limit=256):
        self.next = start; self.limit = limit; self.names = {}
    def __call__(self, name, n=1, align=1):
        b = (self.next + align - 1) // align * align
        self.next = b + n
        assert self.next <= self.limit, f"out of registers allocating {name}: {self.next}"
        self.names[name] = (b, n)
        return b

class Kernel:
    def __init__(self, name):
        self.name = name; self.lines = []; self.uid = 0
    def __call__(self, txt):
        for t in txt.split("\n"):
            t = t.strip()
            if t: self.lines.append("  " + t)
    def label(self, l): self.lines.append(f"{l}:")
    def L(self, base):
        self.uid += 1
        return f"L_{self.name}_{base}_{self.uid}"
    def c(self, txt): self.lines.append(f"  ; {txt}")
    def nop(self, n):
        while n > 0:
            k = min(n, 16); self(f"s_nop {k-1}"); n -= k
    prof = False
    def stamp(self, i):
        if self.prof:
            self(f"s_memtime s[{64+2*i}:{65+2*i}]")
    def stamp_real(self, i):
        if self.prof:
            self(f"s_memrealtime s[{64+2*i}:{65+2*i}]")
    def prof_store(self, n, ws_pair, off, vtmp, wave_sgpr):
        if not self.prof: return
        self("s_waitcnt lgkmcnt(0)")
        self(f"s_add_u32 s96, s{ws_pair}, {off}\ns_addc_u32 s97, s{ws_pair+1}, 0\ns_and_b32 s97, s97, 0xffff\ns_mov_b32 s98, 0x100000\ns_mov_b32 s99, 0x20000")
        self(f"s_lshl_b32 s62, s2, 4\ns_add_u32 s62, s62, s{wave_sgpr}\ns_lshl_b32 s62, s62, 6")
        self("s_mov_b64 exec, 1")
        for i in range(n):
            self(f"v_mov_b32 v{vtmp}, s{64+2*i}")
            self(f"v_mov_b32 v{vtmp+1}, {4*i}")
            self(f"buffer_store_dword v{vtmp}, v{vtmp+1}, s[96:99], s62 offen")
            self("s_waitcnt vmcnt(0)")
        self("s_mov_b64 exec, -1")
    tl = None
    def tl_start(self):
        if self.tl is None: return
        self("s_memrealtime s[90:91]\ns_load_dwordx2 s[92:93], s[0:1], 64")
    def tl_end(self, vt):
        if self.tl is None: return
        i = self.tl
        self("s_waitcnt vmcnt(0) lgkmcnt(0)\ns_memrealtime s[94:95]\ns_waitcnt lgkmcnt(0)")
        self(f"s_sub_u32 s92, s92, {i*512}\ns_subb_u32 s93, s93, 0\ns_and_b32 s93, s93, 0xffff")
        self("s_mov_b32 s96, s92\ns_mov_b32 s97, s93\ns_mov_b32 s98, 256\ns_mov_b32 s99, 0x20000")
        self("s_not_b32 s90, s90\ns_mov_b64 exec, 1")
        self(f"v_mov_b32 v{vt}, s90\nv_mov_b32 v{vt+1}, {8*i}\nbuffer_atomic_umax v{vt}, v{vt+1}, s[96:99], 0 offen")
        self(f"v_mov_b32 v{vt+2}, s94\nv_mov_b32 v{vt+1}, {8*i+4}\ns_nop 1\nbuffer_atomic_umax v{vt+2}, v{vt+1}, s[96:99], 0 offen")
        self("s_waitcnt vmcnt(0)")
    def text(self, nvgpr, nsgpr, accum_offset=None, extra=()):
        nv = nvgpr
        ao = accum_offset if accum_offset is not None else (nv + 3) // 4 * 4
        head = f""".text
.globl {self.name}
.p2align 8
.type {self.name},@function
{self.name}:
"""
        tail = f"""
.section .rodata,"a"
.p2align 6
.amdhsa_kernel {self.name}
  .amdhsa_next_free_vgpr {nv}
  .amdhsa_next_free_sgpr {nsgpr}
  .amdhsa_accum_offset {ao}
  .amdhsa_group_segment_fixed_size 0
  .amdhsa_kernarg_size 80
  .amdhsa_user_sgpr_count 2
  .amdhsa_user_sgpr_kernarg_segment_ptr 1
  .amdhsa_system_sgpr_workgroup_id_x 1
  .amdhsa_float_denorm_mode_32 3
  .amdhsa_float_denorm_mode_16_64 3
.end_amdhsa_kernel
"""
        return head + "\n".join(self.lines) + "\n" + tail

_reg_re = re.compile(r"\b([vas])(\d+)\b|\b([vas])\[(\d+):(\d+)\]")
def regs_of(op):
    out = []
    op = op.strip()
    m = re.fullmatch(r"-?\|?(?:abs\()?([vas])(\d+)\)?\|?", op)
    if m: return [(m.group(1), int(m.group(2)))]
    m = re.fullmatch(r"-?([vas])\[(\d+):(\d+)\]", op)
    if m: return [(m.group(1), i) for i in range(int(m.group(2)), int(m.group(3)) + 1)]
    if op in ("vcc", "vcc_lo", "vcc_hi"): return [("s", "vcc")]
    if op in ("exec", "exec_lo", "exec_hi"): return [("s", "exec")]
    if op == "m0": return [("s", "m0")]
    return []

TRANS = ("v_exp_f32", "v_log_f32", "v_rcp_f32", "v_rsq_f32", "v_sqrt_f32", "v_sin_f32", "v_cos_f32", "v_exp_f16", "v_rcp_iflag_f32")
def parse(line):
    t = line.split(";")[0].strip()
    if not t or t.endswith(":") or t.startswith("."): return None
    parts = t.split(None, 1)
    opc = parts[0]
    ops = []
    if len(parts) > 1:
        cur = ""; depth = 0
        for ch in parts[1]:
            if ch in "[(": depth += 1
            if ch in "])": depth -= 1
            if ch == "," and depth == 0: ops.append(cur.strip()); cur = ""
            else: cur += ch
        ops.append(cur.strip())
        last = ops[-1].split()
        ops[-1] = last[0]; mods = last[1:]
    else:
        mods = []
    return opc, ops, mods

def passes(opc):
    if "32x32x16" in opc or "32x32x8" in opc: return 8
    if "16x16x32" in opc or "16x16x16" in opc: return 4
    raise ValueError(opc)

class Ins:
    __slots__ = ("opc", "dst", "src", "srcc", "kind", "states", "line", "mods", "ops")

def decode(line):
    p = parse(line)
    if p is None: return None
    opc, ops, mods = p
    I = Ins(); I.opc = opc; I.line = line.strip(); I.mods = mods; I.ops = ops
    I.dst = []; I.src = []; I.srcc = []; I.states = 1
    base = opc.replace("_e32", "").replace("_e64", "").replace("_dpp", "").replace("_sdwa", "")
    if opc == "s_nop":
        I.kind = "nop"; I.states = int(ops[0], 0) + 1; return I
    if opc.startswith("v_mfma"):
        I.kind = "mfma"; I.dst = regs_of(ops[0]); I.src = regs_of(ops[1]) + regs_of(ops[2]); I.srcc = regs_of(ops[3]); return I
    if opc.startswith("v_"):
        I.kind = "valu"
        if base in TRANS: I.kind = "trans"
        if base.startswith("v_cmp"):
            I.dst = regs_of(ops[0]); I.src = sum((regs_of(o) for o in ops[1:]), [])
            if base.startswith("v_cmpx"): I.dst += [("s", "exec")]
        elif base in ("v_readfirstlane_b32", "v_readlane_b32"):
            I.dst = regs_of(ops[0]); I.src = sum((regs_of(o) for o in ops[1:]), []); I.kind = "readlane"
        elif base in ("v_permlane32_swap_b32", "v_permlane16_swap_b32", "v_swap_b32"):
            I.dst = regs_of(ops[0]) + regs_of(ops[1]); I.src = list(I.dst)
            I.kind = "permlane" if "permlane" in base else "valu"
        elif base in ("v_add_co_u32", "v_sub_co_u32", "v_addc_co_u32", "v_subb_co_u32", "v_div_scale_f32", "v_mad_u64_u32"):
            I.dst = regs_of(ops[0]) + regs_of(ops[1]); I.src = sum((regs_of(o) for o in ops[2:]), [])
        else:
            I.dst = regs_of(ops[0]); I.src = sum((regs_of(o) for o in ops[1:]), [])
            if base in ("v_fmac_f32", "v_dot2c_f32_bf16", "v_writelane_b32", "v_pk_fmac_f16") or "UNUSED_PRESERVE" in " ".join(mods):
                I.src += I.dst
            if base == "v_cndmask_b32" and len(ops) == 3: I.src += [("s", "vcc")]
        if "dpp" in opc or any(m.startswith(("quad_perm", "row_", "wave_")) for m in mods):
            I.kind = "dpp" if I.kind == "valu" else I.kind
        return I
    if opc.startswith("ds_"):
        I.kind = "ds"
        if opc.startswith(("ds_read", "ds_bpermute", "ds_permute", "ds_swizzle")):
            I.dst = regs_of(ops[0]); I.src = sum((regs_of(o) for o in ops[1:]), [])
        else:
            I.src = sum((regs_of(o) for o in ops), [])
        return I
    if opc.startswith(("buffer_", "global_")):
        I.kind = "vmem"
        islds = "lds" in mods or "load_lds" in opc
        if "load" in opc and not islds:
            I.dst = regs_of(ops[0]); I.src = sum((regs_of(o) for o in ops[1:]), [])
        else:
            I.src = sum((regs_of(o) for o in ops), [])
        if islds: I.src += [("s", "m0")]; I.kind = "vmem_lds"
        if "store" in opc: I.kind = "vmem_store"
        return I
    if opc.startswith("s_"):
        I.kind = "salu"
        if opc.startswith(("s_cmp", "s_cbranch", "s_branch", "s_waitcnt", "s_barrier", "s_endpgm", "s_setprio", "s_sleep", "s_bitcmp")):
            I.src = sum((regs_of(o) for o in ops), [])
        else:
            I.dst = regs_of(ops[0]) if ops else []; I.src = sum((regs_of(o) for o in ops[1:]), [])
            if "saveexec" in opc: I.dst += [("s", "exec")]
        return I
    raise ValueError("unknown instr: " + line)

def isv(r): return r[0] in ("v", "a")

def check_seq(ins, name, problems):
    n = len(ins)
    for i, I in enumerate(ins):
        dist = 0
        D = set(I.dst)
        for j in range(i + 1, min(n, i + 40)):
            J = ins[j]
            need = 0; why = ""
            Jsrc = set(J.src); Jc = set(J.srcc); Jd = set(J.dst)
            if I.kind == "mfma":
                p = passes(I.opc)
                tbl = {4: (6, 8, 8, 3), 8: (10, 12, 12, 7)}[p]
                if J.kind == "mfma":
                    if D & Jc:
                        exact = (list(I.dst) == list(J.srcc)) and passes(J.opc) == p
                        if not exact: need = max(need, tbl[0]); why = "mfma D->mfma C partial"
                    if D & Jsrc: need = max(need, tbl[1]); why = "mfma D->mfma A/B"
                else:
                    if D & (Jsrc | Jd) and J.kind in ("valu", "trans", "dpp", "permlane", "readlane", "vmem", "vmem_store", "vmem_lds", "ds"):
                        need = max(need, tbl[2]); why = "mfma D->valu/mem"
                    if set(I.srcc) & Jd and J.kind in ("valu", "trans", "dpp", "permlane") :
                        need = max(need, tbl[3]); why = why or "mfma C read -> valu write (WAR)"
            if I.kind in ("valu", "trans", "dpp", "permlane", "readlane"):
                Dv = {r for r in D if isv(r)}; Ds = {r for r in D if not isv(r)}
                if J.kind == "mfma" and Dv & (Jsrc | Jc): need = max(need, 2); why = "valu->mfma operand"
                if I.kind == "trans" and J.kind in ("valu", "dpp", "permlane", "readlane", "mfma") and Dv & (Jsrc | Jc) : need = max(need, 1); why = why or "trans->use"
                if J.kind == "dpp" and Dv & Jsrc: need = max(need, 2); why = "valu->dpp"
                if J.kind == "permlane" and Dv & Jsrc: need = max(need, 2); why = "valu->permlane"
                if J.kind == "readlane" and Dv & Jsrc: need = max(need, 1); why = "valu->readlane"
                if Ds:
                    if J.kind in ("vmem", "vmem_store", "vmem_lds") and Ds & Jsrc: need = max(need, 5); why = "valu sgpr write->vmem"
                    if J.kind in ("valu", "trans", "dpp", "permlane", "mfma") and Ds & Jsrc and ("s", "exec") not in Ds: need = max(need, 2); why = "valu sgpr write->valu read"
                    if J.kind == "readlane" and Ds & Jsrc: need = max(need, 4); why = "valu sgpr->readlane sel"
                    if ("s", "exec") in Ds and J.kind == "mfma": need = max(need, 4); why = "valu exec->mfma"
                    if ("s", "exec") in Ds and J.kind in ("dpp",): need = max(need, 5); why = "valu exec->dpp"
                    if ("s", "exec") in Ds and J.kind in ("readlane", "permlane"): need = max(need, 4); why = "valu exec->lane op"
            if I.kind == "salu" and ("s", "m0") in D and J.kind == "vmem_lds": need = max(need, 1); why = "m0->lds dma"
            if I.kind == "vmem_store" and ("x4" in I.opc or "x3" in I.opc):
                data = set(regs_of(I.ops[0])) if I.opc.startswith("buffer") else set(regs_of(I.ops[1]))
                if data & Jd:
                    need = max(need, 2 if J.kind in ("valu", "trans", "dpp", "permlane") else 1); why = "wide store data WAR"
            if need > dist:
                problems.append(f"[{name}] {why}: need {need} have {dist}\n    {I.line}\n    {J.line}")
            dist += J.states
            if dist >= 21: break

def check_kernel(k):
    items = []
    labels = {}
    for ln in k.lines:
        t = ln.split(";")[0].strip()
        if t.endswith(":"):
            labels[t[:-1]] = len(items); continue
        I = decode(ln)
        if I is not None: items.append(I)
    problems = []
    check_seq(items, k.name + ":linear", problems)
    for i, I in enumerate(items):
        if I.opc.startswith(("s_cbranch", "s_branch")):
            tgt = labels.get(I.ops[0])
            if tgt is None: raise ValueError("label? " + I.line)
            seq = items[max(0, i - 40): i + 1] + items[tgt: tgt + 40]
            check_seq(seq, k.name + f":branch@{I.line}", problems)
    seen = [];
    for p in problems:
        key = p.split("\n", 1)[1]
        if key not in seen: seen.append(key); print("HAZARD", p)
    return len(seen)
```

```python
from asm import *
from layout import *
import struct
def fbits(x): return struct.unpack("<I", struct.pack("<f", x))[0]

def gen_attn(name="attn_kernel", prof=False, tl=None):
    k = Kernel(name); k.prof = prof; k.tl = tl
    V = Alloc(1, 256)
    lane = V("lane"); tmp = [V(f"t{i}") for i in range(8)]
    aK1 = V("aK1"); aK2 = V("aK2"); aV = V("aV"); vl16 = V("lane16")
    QA1 = V("QA1", 4, 4); QA2 = V("QA2", 4, 4); QB1 = V("QB1", 4, 4); QB2 = V("QB2", 4, 4)
    Kf = [(V(f"K{i}f1", 4, 4), V(f"K{i}f2", 4, 4)) for i in range(2)]
    Vf = [(V(f"V{i}f1", 4, 4), V(f"V{i}f2", 4, 4)) for i in range(2)]
    PA = V("PA", 8, 4); PB = V("PB", 8, 4)
    NA = V("negmA", 16, 4); NB = V("negmB", 16, 4)
    SA = V("SA", 16, 4); SB = V("SB", 16, 4)
    OA = V("OA", 16, 4); OB = V("OB", 16, 4)
    nv = V.next
    sW, sG, sKH, sH, sQB = 16, 17, 18, 19, 20
    sT0, sT1, sT2, sT3 = 21, 22, 23, 28
    sVM = 24
    sIt, sNmax, sBar = 26, 27, 29
    sThr = 30; sT = 31; sLB = 32
    done = k.L("done")
    k(f"s_cmp_ge_u32 s2, 256\ns_cbranch_scc1 {done}")
    k.tl_start()
    k.stamp(0); k.stamp_real(6)
    k(f"s_load_dwordx2 s[4:5], s[0:1], {KA_WS}")
    k(f"v_and_b32 {v(lane)}, 63, v0")
    k(f"v_lshrrev_b32 {v(tmp[0])}, 6, v0")
    k(f"v_lshlrev_b32 {v(vl16)}, 4, {v(lane)}")
    k(f"v_readfirstlane_b32 s{sW}, {v(tmp[0])}")
    k(f"s_and_b32 s{sT0}, s2, 7\ns_lshl_b32 s{sT0}, s{sT0}, 2\ns_lshr_b32 s{sT1}, s2, 6\ns_add_u32 s{sH}, s{sT0}, s{sT1}")
    k(f"s_lshr_b32 s{sT1}, s2, 3\ns_and_b32 s{sQB}, s{sT1}, 7")
    k(f"s_and_b32 s{sG}, s{sW}, 3\ns_lshr_b32 s{sKH}, s{sW}, 2")
    k(f"s_mul_i32 s{sT0}, s{sH}, {HEAD_STRIDE}")
    k("s_waitcnt lgkmcnt(0)")
    k(f"s_add_u32 s8, s4, s{sT0}\ns_addc_u32 s9, s5, 0\ns_and_b32 s9, s9, 0xffff\ns_mov_b32 s10, {HEAD_STRIDE}\ns_mov_b32 s11, 0x20000")
    k(f"s_add_u32 s12, s4, {WS_O}\ns_addc_u32 s13, s5, 0\ns_and_b32 s13, s13, 0xffff\ns_mov_b32 s14, {O_BYTES}\ns_mov_b32 s15, 0x20000")
    k(f"s_mul_i32 s{sT0}, s{sQB}, {BLK_STRIDE}")
    k(f"s_lshl_b32 s{sT1}, s{sG}, 11\ns_add_u32 s{sT1}, s{sT1}, s{sT0}\ns_add_u32 s{sT1}, s{sT1}, {Q1OFF}")
    k(f"s_lshl_b32 s{sT2}, s{sG}, 9\ns_add_u32 s{sT2}, s{sT2}, s{sT0}\ns_add_u32 s{sT2}, s{sT2}, {Q2OFF}")
    k(f"buffer_load_dwordx4 {v(QA1,4)}, {v(vl16)}, s[8:11], s{sT1} offen")
    k(f"buffer_load_dwordx4 {v(QB1,4)}, {v(vl16)}, s[8:11], s{sT1} offen offset:1024")
    for q in (QA2, QB2):
        for i in range(4): k(f"v_mov_b32 {v(q+i)}, 0")
    k(f"v_and_b32 {v(tmp[0])}, 31, {v(lane)}\nv_lshlrev_b32 {v(tmp[1])}, 3, {v(tmp[0])}")
    k("s_mov_b32 exec_hi, 0")
    k(f"buffer_load_dwordx2 {v(QA2,2)}, {v(tmp[1])}, s[8:11], s{sT2} offen")
    k(f"buffer_load_dwordx2 {v(QB2,2)}, {v(tmp[1])}, s[8:11], s{sT2} offen offset:256")
    k("s_mov_b32 exec_hi, -1")
    k(f"s_lshl_b32 s{sT0}, s{sKH}, 2")
    k(f"s_mul_i32 s{sT1}, s{sT0}, {BLK_STRIDE}\ns_mul_i32 s{sT2}, s{sG}, 5120\ns_add_u32 s{sT1}, s{sT1}, s{sT2}")
    k(f"s_mul_i32 s{sLB}, s{sT0}, {LBLK}\ns_add_u32 s{sT3}, s{sLB}, s{sT2}")
    for j in range(4):
        k(f"s_mov_b32 m0, s{sT3}")
        k(f"s_add_u32 s{sT0}, s{sT1}, 4096")
        for i in range(4):
            k(f"buffer_load_dwordx4 {v(vl16)}, s[8:11], s{sT1} offen offset:{i*1024} lds")
        k(f"s_add_u32 m0, s{sT3}, 4096")
        if j < 3: k(f"s_add_u32 s{sT1}, s{sT1}, {BLK_STRIDE}")
        else: k("s_nop 0")
        k(f"buffer_load_dwordx4 {v(vl16)}, s[8:11], s{sT0} offen lds")
        if j < 3: k(f"s_add_u32 s{sT3}, s{sT3}, {LBLK}")
    k(f"v_add_u32 {v(aK1)}, s{sLB}, {v(vl16)}")
    k(f"s_add_u32 s{sT0}, s{sLB}, {K2OFF}\nv_add_u32 {v(aK2)}, s{sT0}, {v(tmp[1])}")
    k(f"v_lshrrev_b32 {v(tmp[2])}, 5, {v(lane)}")
    k(f"v_mul_u32_u24 {v(tmp[3])}, 320, {v(tmp[2])}")
    k(f"v_lshl_add_u32 {v(tmp[3])}, {v(tmp[0])}, 4, {v(tmp[3])}")
    k(f"s_add_u32 s{sT0}, s{sLB}, {VOFF}\nv_add_u32 {v(aV)}, s{sT0}, {v(tmp[3])}")
    k(f"s_mov_b32 s{sVM}, 0x000fffff\ns_mov_b32 s{sVM+1}, 0x000fffff")
    k(f"s_mov_b32 s{sThr}, 0x5f800000")
    k(f"s_mov_b32 s{sNmax}, 1\ns_mov_b32 s{sBar}, 0")
    for b in range(2):
        k(f"v_mov_b32 {v(Kf[b][1]+2)}, 0\nv_mov_b32 {v(Kf[b][1]+3)}, 0")
    k.stamp(1)
    k("s_waitcnt vmcnt(15)")
    k("s_barrier")
    k.stamp(2)
    Lmax = k.L("max"); Lmloop = k.L("mloop")
    k.label(Lmax)
    mA, mB = tmp[4], tmp[5]
    k(f"v_mov_b32 {v(mA)}, 0xff800000\nv_mov_b32 {v(mB)}, 0xff800000")
    k(f"s_mov_b32 s{sT}, 0")
    k.label(Lmloop)
    k(f"s_lshr_b32 s{sT0}, s{sT}, 3\ns_mul_i32 s{sT0}, s{sT0}, {LBLK}\ns_and_b32 s{sT1}, s{sT}, 7")
    k(f"s_lshl_b32 s{sT2}, s{sT1}, 10\ns_add_u32 s{sT2}, s{sT2}, s{sT0}")
    k(f"s_lshl_b32 s{sT3}, s{sT1}, 8\ns_add_u32 s{sT3}, s{sT3}, s{sT0}")
    k(f"v_add_u32 {v(tmp[6])}, s{sT2}, {v(aK1)}\nv_add_u32 {v(tmp[7])}, s{sT3}, {v(aK2)}")
    k(f"ds_read_b128 {v(Kf[0][0],4)}, {v(tmp[6])}\nds_read_b64 {v(Kf[0][1],2)}, {v(tmp[7])}")
    k("s_waitcnt lgkmcnt(0)")
    k(f"v_mfma_f32_32x32x16_bf16 {v(SA,16)}, {v(Kf[0][0],4)}, {v(QA1,4)}, 0")
    k(f"v_mfma_f32_32x32x16_bf16 {v(SB,16)}, {v(Kf[0][0],4)}, {v(QB1,4)}, 0")
    k(f"v_mfma_f32_32x32x16_bf16 {v(SA,16)}, {v(Kf[0][1],4)}, {v(QA2,4)}, {v(SA,16)}")
    k(f"v_mfma_f32_32x32x16_bf16 {v(SB,16)}, {v(Kf[0][1],4)}, {v(QB2,4)}, {v(SB,16)}")
    k.nop(12)
    for (m, Sx) in ((mA, SA), (mB, SB)):
        for i in range(8):
            k(f"v_max3_f32 {v(m)}, {v(Sx+2*i)}, {v(Sx+2*i+1)}, {v(m)}")
    k(f"s_add_u32 s{sT}, s{sT}, 1\ns_cmp_lt_u32 s{sT}, s{sNmax}\ns_cbranch_scc1 {Lmloop}")
    for (m, N) in ((mA, NA), (mB, NB)):
        k(f"v_mov_b32 {v(tmp[6])}, {v(m)}\nv_mov_b32 {v(tmp[7])}, {v(m)}")
        k.nop(2)
        k(f"v_permlane32_swap_b32 {v(tmp[6])}, {v(tmp[7])}")
        k.nop(1)
        k(f"v_max_f32 {v(tmp[6])}, {v(tmp[6])}, {v(tmp[7])}")
        k(f"v_sub_f32 {v(N)}, 0, {v(tmp[6])}")
        for i in range(1, 16): k(f"v_mov_b32 {v(N+i)}, {v(N)}")
    for b in range(2):
        for f in range(2):
            for i in range(4): k(f"v_mov_b32 {v(Vf[b][f]+i)}, 0x3f803f80")
    for i in range(16): k(f"v_mov_b32 {v(OA+i)}, 0\nv_mov_b32 {v(OB+i)}, 0")
    for i in range(4, 8): k(f"v_mov_b32 {v(PB+i)}, 0")
    k(f"ds_read_b128 {v(Kf[0][0],4)}, {v(aK1)}\nds_read_b64 {v(Kf[0][1],2)}, {v(aK2)}")
    k(f"s_mov_b64 exec, s[{sVM}:{sVM+1}]")
    k(f"ds_read_b128 {v(Vf[0][0],4)}, {v(aV)}\nds_read_b128 {v(Vf[0][1],4)}, {v(aV)} offset:640")
    k("s_mov_b64 exec, -1")
    k("s_waitcnt lgkmcnt(0)")
    k(f"v_mfma_f32_32x32x16_bf16 {v(SA,16)}, {v(Kf[0][0],4)}, {v(QA1,4)}, {v(NA,16)}")
    k(f"v_mfma_f32_32x32x16_bf16 {v(SA,16)}, {v(Kf[0][1],4)}, {v(QA2,4)}, {v(SA,16)}")
    k(f"s_mov_b32 s{sIt}, 0")
    k.nop(12)
    k.stamp(3)
    Lloop = k.L("loop")
    k.lines.append(".p2align 6")
    k.label(Lloop)
    def phase(Sx, Px, mf, pre):
        e = lambda i: f"v_exp_f32 {v(Sx+i)}, {v(Sx+i)}"
        c = lambda j: f"v_cvt_pk_bf16_f32 {v(Px+j)}, {v(Sx+2*j)}, {v(Sx+2*j+1)}"
        k("s_waitcnt lgkmcnt(0)")
        for p in pre: k(p)
        seq = [mf[0], e(0), e(1), e(2), e(3), c(0), mf[1], c(1), e(4), e(5), e(6), e(7), c(2),
               mf[2], c(3), e(8), e(9), e(10), e(11), c(4), mf[3], c(5), e(12), e(13), e(14), e(15), c(6), c(7)]
        for x in seq: k(x)
    M = lambda d, x, y, c: f"v_mfma_f32_32x32x16_bf16 {v(d,16)}, {v(x,4)}, {v(y,4)}, {v(c,16)}"
    for tt in range(8):
        cur = tt & 1; nxt = cur ^ 1
        n1 = tt + 1
        koff1 = n1 * 1024 if n1 < 8 else LBLK
        koff2 = n1 * 256 if n1 < 8 else LBLK
        voff = n1 * 1280 if n1 < 8 else LBLK
        pre = []
        if tt == 7:
            sk = k.L("skipbar")
            k(f"s_cmp_lg_u32 s{sIt}, s{sBar}\ns_cbranch_scc1 {sk}\ns_waitcnt vmcnt(0)\ns_barrier")
            k.label(sk)
        pre = [f"ds_read_b128 {v(Kf[nxt][0],4)}, {v(aK1)} offset:{koff1}", f"ds_read_b64 {v(Kf[nxt][1],2)}, {v(aK2)} offset:{koff2}"]
        phase(SA, PA, [M(SB, Kf[cur][0], QB1, NB), M(OB, Vf[nxt][1], PB+4, OB), M(SB, Kf[cur][1], QB2, SB), M(OA, Vf[cur][0], PA, OA)], pre)
        pre = [f"s_mov_b64 exec, s[{sVM}:{sVM+1}]", f"ds_read_b128 {v(Vf[nxt][0],4)}, {v(aV)} offset:{voff}",
               f"ds_read_b128 {v(Vf[nxt][1],4)}, {v(aV)} offset:{voff+640}", "s_mov_b64 exec, -1"]
        phase(SB, PB, [M(SA, Kf[nxt][0], QA1, NA), M(OA, Vf[cur][1], PA+4, OA), M(SA, Kf[nxt][1], QA2, SA), M(OB, Vf[cur][0], PB, OB)], pre)
    k(f"v_add_u32 {v(aK1)}, {LBLK}, {v(aK1)}\nv_add_u32 {v(aK2)}, {LBLK}, {v(aK2)}\nv_add_u32 {v(aV)}, {LBLK}, {v(aV)}")
    k(f"s_add_u32 s{sIt}, s{sIt}, 1\ns_cmp_lt_u32 s{sIt}, 4\ns_cbranch_scc1 {Lloop}")
    k(M(OB, Vf[1][1], PB+4, OB))
    k("s_waitcnt lgkmcnt(0)")
    k.nop(16)
    k.stamp(4)
    Lok = k.L("ok")
    k(f"v_cmp_ngt_f32 vcc, s{sThr}, {v(OA+8)}")
    k.nop(4)
    k(f"s_mov_b32 s{sT0}, vcc_hi")
    k(f"v_cmp_ngt_f32 vcc, s{sThr}, {v(OB+8)}")
    k.nop(4)
    k(f"s_or_b32 s{sT0}, s{sT0}, vcc_hi")
    k(f"s_cmp_eq_u32 s{sT0}, 0\ns_cbranch_scc1 {Lok}")
    k(f"s_cmp_lg_u32 s{sNmax}, 1\ns_cbranch_scc1 {Lok}")
    k(f"s_mov_b32 s{sNmax}, 32\ns_mov_b32 s{sBar}, -1")
    k(f"v_subrev_u32 {v(aK1)}, {4*LBLK}, {v(aK1)}\nv_subrev_u32 {v(aK2)}, {4*LBLK}, {v(aK2)}\nv_subrev_u32 {v(aV)}, {4*LBLK}, {v(aV)}")
    k(f"s_branch {Lmax}")
    k.label(Lok)
    Lns = k.L("noswap")
    k(f"s_cmp_eq_u32 s{sKH}, 0\ns_cbranch_scc1 {Lns}")
    for i in range(12): k(f"v_swap_b32 {v(OA+i)}, {v(OB+i)}")
    k(f"v_swap_b32 {v(NA)}, {v(NB)}")
    k.label(Lns)
    k("s_barrier")
    k(f"s_lshl_b32 s{sT0}, s{sW}, 12")
    k(f"v_add_u32 {v(tmp[0])}, s{sT0}, {v(vl16)}")
    for j in range(3): k(f"ds_write_b128 {v(tmp[0])}, {v(OB+4*j,4)} offset:{j*1024}")
    k(f"ds_write_b32 {v(tmp[0])}, {v(NB)} offset:3072")
    k("s_waitcnt lgkmcnt(0)\ns_barrier")
    k(f"s_xor_b32 s{sT0}, s{sW}, 4\ns_lshl_b32 s{sT0}, s{sT0}, 12")
    k(f"v_add_u32 {v(tmp[0])}, s{sT0}, {v(vl16)}")
    for j in range(3): k(f"ds_read_b128 {v(OB+4*j,4)}, {v(tmp[0])} offset:{j*1024}")
    k(f"ds_read_b32 {v(NB)}, {v(tmp[0])} offset:3072")
    k(f"s_lshl_b32 s{sT0}, s{sQB}, 8\ns_lshl_b32 s{sT1}, s{sG}, 6\ns_add_u32 s{sT0}, s{sT0}, s{sT1}\ns_lshl_b32 s{sT1}, s{sKH}, 5\ns_add_u32 s{sT0}, s{sT0}, s{sT1}")
    k(f"v_and_b32 {v(tmp[1])}, 31, {v(lane)}\nv_add_u32 {v(tmp[1])}, s{sT0}, {v(tmp[1])}")
    k(f"v_lshrrev_b32 {v(tmp[2])}, 4, {v(tmp[1])}\nv_mul_u32_u24 {v(tmp[2])}, 20480, {v(tmp[2])}")
    k(f"v_and_b32 {v(tmp[1])}, 15, {v(tmp[1])}\nv_lshl_add_u32 {v(tmp[2])}, {v(tmp[1])}, 4, {v(tmp[2])}")
    k(f"s_mul_i32 s{sT0}, s{sH}, 5")
    k(f"v_lshrrev_b32 {v(tmp[3])}, 5, {v(lane)}\nv_add_u32 {v(tmp[3])}, s{sT0}, {v(tmp[3])}")
    addr = [tmp[4], tmp[5], tmp[6]]
    for j in range(3):
        k(f"v_add_u32 {v(tmp[7])}, {2*j}, {v(tmp[3])}")
        k(f"v_lshrrev_b32 {v(tmp[1])}, 3, {v(tmp[7])}\nv_lshl_add_u32 {v(addr[j])}, {v(tmp[1])}, 10, {v(tmp[2])}")
        k(f"v_and_b32 {v(tmp[1])}, 3, {v(tmp[7])}\nv_lshl_add_u32 {v(addr[j])}, {v(tmp[1])}, 8, {v(addr[j])}")
        k(f"v_bfe_u32 {v(tmp[1])}, {v(tmp[7])}, 2, 1\nv_lshl_add_u32 {v(addr[j])}, {v(tmp[1])}, 3, {v(addr[j])}")
    k("s_waitcnt lgkmcnt(0)")
    f1, f2, nm = SA, SA + 1, SA + 2
    k(f"v_min_f32 {v(nm)}, {v(NA)}, {v(NB)}")
    k(f"v_sub_f32 {v(f1)}, {v(nm)}, {v(NA)}\nv_sub_f32 {v(f2)}, {v(nm)}, {v(NB)}")
    k(f"v_exp_f32 {v(f1)}, {v(f1)}\nv_exp_f32 {v(f2)}, {v(f2)}")
    k.nop(1)
    for i in range(12):
        k(f"v_mul_f32 {v(OA+i)}, {v(OA+i)}, {v(f1)}")
    for i in range(12):
        k(f"v_fmac_f32 {v(OA+i)}, {v(OB+i)}, {v(f2)}")
    t1, t2 = SA + 4, SA + 5
    k(f"v_mov_b32 {v(t1)}, {v(OA+8)}\nv_mov_b32 {v(t2)}, {v(OA+8)}")
    k.nop(2)
    k(f"v_permlane32_swap_b32 {v(t1)}, {v(t2)}")
    k.nop(1)
    k(f"v_rcp_f32 {v(t2)}, {v(t2)}")
    k.nop(1)
    for i in range(12): k(f"v_mul_f32 {v(OA+i)}, {v(OA+i)}, {v(t2)}")
    for j in range(6): k(f"v_cvt_pk_bf16_f32 {v(PA+j)}, {v(OA+2*j)}, {v(OA+2*j+1)}")
    k(f"buffer_store_dwordx2 {v(PA,2)}, {v(addr[0])}, s[12:15], 0 offen")
    k(f"buffer_store_dwordx2 {v(PA+2,2)}, {v(addr[1])}, s[12:15], 0 offen")
    k("s_mov_b32 exec_hi, 0")
    k(f"buffer_store_dwordx2 {v(PA+4,2)}, {v(addr[2])}, s[12:15], 0 offen")
    k("s_mov_b64 exec, -1")
    k.stamp(5); k.stamp_real(7)
    k.prof_store(8, 4, WS_END, tmp[0], sW)
    k.tl_end(2)
    k.label(done)
    k("s_endpgm")
    return k, nv, (102 if (prof or tl is not None) else 48)

if __name__ == "__main__":
    k, nv, ns = gen_attn()
    print("vgprs", nv, "hazards", check_kernel(k))
```

```python
from asm import *
from layout import *
import struct, math
def fbits(x): return struct.unpack("<I", struct.pack("<f", x))[0]

NCH = 10
LDS_FFN = 163840
def gen_ffn(name="ffn_kernel", prof=False, tl=None, PF=3, dbg=()):
    k = Kernel(name); k.prof = prof; k.tl = tl
    V = Alloc(1, 256)
    lane = V("lane"); tmp = [V(f"t{i}") for i in range(8)]
    dB = V("dB"); vA = V("vA")
    vB = [[V(f"vB{h}{c}") for c in range(2)] for h in range(3)]
    acc = [V(f"acc{i}", 16, 4) for i in range(4)]
    NRA = PF + 1
    FA = [[V(f"FA{r}{q}", 4, 4) for q in range(4)] for r in range(NRA)]
    FB = [[V(f"FB{b}{i}", 4, 4) for i in range(4)] for b in range(2)]
    EX = V("EX", 48, 4)
    nv = V.next
    sW, sRB, sCB = 16, 17, 18
    sT0, sT1, sT2, sT3 = 20, 21, 22, 23
    sA, sB, sL = 24, 25, 26
    done = k.L("done")
    k(f"s_cmp_ge_u32 s2, 216\ns_cbranch_scc1 {done}") if False else None
    k(f"s_cmp_ge_u32 s2, 256\ns_cbranch_scc1 {done}")
    k.tl_start()
    k.stamp(0); k.stamp_real(6)
    k(f"s_load_dwordx2 s[4:5], s[0:1], {KA_WS}")
    k(f"s_load_dwordx4 s[28:31], s[0:1], {KA_W1}")
    k(f"s_and_b32 s{sT0}, s2, 7\ns_lshr_b32 s{sT1}, s2, 3")
    k(f"s_cmp_ge_u32 s{sT1}, 27\ns_cbranch_scc1 {done}")
    k(f"s_and_b32 s{sT2}, s{sT0}, 3\ns_mul_i32 s{sT2}, s{sT2}, 27\ns_add_u32 s{sT2}, s{sT2}, s{sT1}")
    k(f"s_lshr_b32 s{sCB}, s{sT2}, 2\ns_and_b32 s{sT2}, s{sT2}, 3\ns_lshr_b32 s{sT3}, s{sT0}, 2\ns_lshl_b32 s{sT3}, s{sT3}, 2\ns_add_u32 s{sRB}, s{sT3}, s{sT2}")
    k(f"v_and_b32 {v(lane)}, 63, v0\nv_lshrrev_b32 {v(tmp[0])}, 6, v0")
    k.nop(1)
    k(f"v_readfirstlane_b32 s{sW}, {v(tmp[0])}")
    k(f"v_lshrrev_b32 {v(tmp[0])}, 3, {v(lane)}\ns_lshl_b32 s{sT0}, s{sW}, 3\nv_add_u32 {v(tmp[0])}, s{sT0}, {v(tmp[0])}\nv_mul_u32_u24 {v(tmp[0])}, {F*2}, {v(tmp[0])}")
    k(f"v_bfe_u32 {v(tmp[1])}, {v(lane)}, 2, 1\nv_bfe_u32 {v(tmp[2])}, {v(lane)}, 4, 1\nv_xor_b32 {v(tmp[1])}, {v(tmp[1])}, {v(tmp[2])}")
    k(f"v_and_b32 {v(tmp[2])}, 3, {v(lane)}\nv_lshl_add_u32 {v(tmp[1])}, {v(tmp[1])}, 2, {v(tmp[2])}\nv_lshl_add_u32 {v(dB)}, {v(tmp[1])}, 4, {v(tmp[0])}")
    k(f"v_lshlrev_b32 {v(vA)}, 4, {v(lane)}")
    k(f"s_lshl_b32 s{sT0}, s{sRB}, 3\ns_add_u32 s{sT0}, s{sT0}, s{sW}\ns_mul_i32 s{sA}, s{sT0}, 40960")
    k(f"s_lshl_b32 s{sB}, s{sCB}, 7\ns_lshl_b32 s{sL}, s{sW}, 10")
    k("s_waitcnt lgkmcnt(0)")
    k(f"s_add_u32 s8, s4, {WS_H}\ns_addc_u32 s9, s5, 0\ns_and_b32 s9, s9, 0xffff\ns_mov_b32 s10, {H_BYTES}\ns_mov_b32 s11, 0x20000")
    k(f"s_mov_b32 s12, s28\ns_and_b32 s13, s29, 0xffff\ns_mov_b32 s14, {D*F*2}\ns_mov_b32 s15, 0x20000")
    k(f"s_mov_b32 s32, s30\ns_and_b32 s33, s31, 0xffff\ns_mov_b32 s34, {D*F*2}\ns_mov_b32 s35, 0x20000")
    def loads(c):
        k(f"s_add_u32 m0, s{sL}, {c*16384}\ns_add_u32 s{sT0}, s{sB}, {c*64*F*2}")
        k(f"buffer_load_dwordx4 {v(dB)}, s[12:15], s{sT0} offen lds")
        k(f"s_add_u32 m0, s{sL}, {c*16384+8192}\ns_add_u32 s{sT1}, s{sA}, {c*4096}")
        k(f"buffer_load_dwordx4 {v(dB)}, s[32:35], s{sT0} offen lds")
        for q in range(4):
            k(f"buffer_load_dwordx4 {v(FA[c % NRA][q],4)}, {v(vA)}, s[8:11], s{sT1} offen offset:{q*1024}")
    for c in range(PF): loads(c)
    k.stamp(1)
    half = tmp[4]
    k(f"v_lshrrev_b32 {v(half)}, 5, {v(lane)}\nv_bfe_u32 {v(tmp[0])}, {v(lane)}, 2, 2\nv_lshl_add_u32 {v(tmp[0])}, {v(half)}, 3, {v(tmp[0])}\nv_lshlrev_b32 {v(tmp[0])}, 7, {v(tmp[0])}")
    k(f"v_bfe_u32 {v(tmp[1])}, {v(lane)}, 3, 1\nv_lshl_add_u32 {v(tmp[0])}, {v(tmp[1])}, 6, {v(tmp[0])}")
    k(f"v_bfe_u32 {v(tmp[1])}, {v(lane)}, 4, 1\nv_lshl_add_u32 {v(tmp[0])}, {v(tmp[1])}, 5, {v(tmp[0])}")
    k(f"v_and_b32 {v(tmp[1])}, 3, {v(lane)}\nv_lshl_add_u32 {v(vB[0][0])}, {v(tmp[1])}, 3, {v(tmp[0])}\nv_xor_b32 {v(vB[0][1])}, 64, {v(vB[0][0])}")
    for h in (1, 2):
        for c in range(2): k(f"v_add_u32 {v(vB[h][c])}, {h*65536}, {v(vB[0][c])}")
    def treads(q):
        c = q >> 2; ks = q & 3; b = q & 1
        base = c * 16384 + ks * 2048
        out = []
        for mt in range(2):
            for ch in range(2):
                for rd in range(2):
                    off = base + mt * 8192 + rd * 512
                    h = off >> 16
                    out.append(f"ds_read_b64_tr_b16 {v(FB[b][2*mt+ch]+2*rd,2)}, {v(vB[h][ch])} offset:{off & 65535}")
        return out
    issued = PF - 1
    k(f"s_waitcnt vmcnt({6*issued})\ns_barrier")
    k.stamp(2)
    for x in treads(0): k(x)
    k("s_waitcnt lgkmcnt(0)")
    nextra = 0
    for q in range(40):
        c = q >> 2; ks = q & 3
        rd = []
        if q + 1 < 40:
            if ks == 3:
                k(f"s_waitcnt vmcnt({6*(issued-(c+1)) + nextra})\ns_barrier")
            rd = treads(q + 1)
        b = q & 1
        for i in range(4):
            cin = v(acc[i], 16) if q > 0 else "0"
            k(f"v_mfma_f32_32x32x16_bf16 {v(acc[i],16)}, {v(FB[b][i],4)}, {v(FA[c % NRA][ks],4)}, {cin}")
            for x in rd[2*i: 2*i+2]: k(x)
        if ks == 3 and issued + 1 < NCH:
            loads(issued + 1); issued += 1
        if q == 27:
            tok = tmp[5]
            k(f"v_and_b32 {v(tok)}, 31, {v(lane)}\ns_lshl_b32 s{sT0}, s{sRB}, 8\ns_lshl_b32 s{sT1}, s{sW}, 5\ns_add_u32 s{sT0}, s{sT0}, s{sT1}\nv_add_u32 {v(tok)}, s{sT0}, {v(tok)}")
            k(f"s_add_u32 s44, s4, {WS_ST}\ns_addc_u32 s45, s5, 0\ns_and_b32 s45, s45, 0xffff\ns_mov_b32 s46, {ST_BYTES + HH_BYTES + CS_BYTES}\ns_mov_b32 s47, 0x20000")
            k(f"v_lshlrev_b32 {v(tmp[6])}, 6, {v(tok)}")
            for j in range(4): k(f"buffer_load_dwordx4 {v(EX+4*j,4)}, {v(tmp[6])}, s[44:47], 0 offen offset:{16*j}")
            k(f"s_lshl_b32 s{sT0}, s{sCB}, 8\ns_add_u32 s48, s{sT0}, {ST_BYTES + HH_BYTES}\ns_add_u32 s49, s48, {F*4}")
            k(f"v_lshlrev_b32 {v(tmp[7])}, 4, {v(half)}")
            nextra = 4
        if rd: k("s_waitcnt lgkmcnt(0)")
    k.stamp(3)
    CS = FA[0][0]
    for ch in range(2):
        for mt in range(2):
            for j in range(4):
                k(f"buffer_load_dwordx4 {v(CS+32*ch+16*mt+4*j,4)}, {v(tmp[7])}, s[44:47], s{48+mt} offen offset:{128*ch+32*j}")
    k(f"s_waitcnt vmcnt(16)")
    E = EX
    for i in range(4): k(f"v_add_f32 {v(E+4*i)}, {v(E+4*i)}, {v(E+4*i+2)}\nv_add_f32 {v(E+4*i+1)}, {v(E+4*i+1)}, {v(E+4*i+3)}")
    k(f"v_add_f32 {v(E)}, {v(E)}, {v(E+4)}\nv_add_f32 {v(E+1)}, {v(E+1)}, {v(E+5)}\nv_add_f32 {v(E+8)}, {v(E+8)}, {v(E+12)}\nv_add_f32 {v(E+9)}, {v(E+9)}, {v(E+13)}")
    k(f"v_add_f32 {v(E)}, {v(E)}, {v(E+8)}\nv_add_f32 {v(E+1)}, {v(E+1)}, {v(E+9)}")
    k(f"v_mul_f32 {v(E)}, {fbits(1.0/D)}, {v(E)}\nv_mul_f32 {v(E+1)}, {fbits(1.0/D)}, {v(E+1)}")
    k(f"v_fma_f32 {v(E+1)}, -{v(E)}, {v(E)}, {v(E+1)}\nv_max_f32 {v(E+1)}, 0, {v(E+1)}\nv_add_f32 {v(E+1)}, {fbits(1e-5)}, {v(E+1)}")
    k(f"v_rsq_f32 {v(E+1)}, {v(E+1)}")
    nmean, rstd, rneg, rsq2 = E + 2, E + 1, E + 3, E + 4
    k(f"v_sub_f32 {v(nmean)}, 0, {v(E)}")
    k(f"v_mul_f32 {v(rneg)}, {fbits(-math.log2(math.e))}, {v(rstd)}\nv_mul_f32 {v(rsq2)}, {v(rstd)}, {v(rstd)}")
    tok = tmp[5]
    k(f"v_lshrrev_b32 {v(tmp[0])}, 4, {v(tok)}\nv_mul_u32_u24 {v(tmp[0])}, {F*32}, {v(tmp[0])}\nv_and_b32 {v(tmp[1])}, 15, {v(tok)}\nv_lshl_add_u32 {v(tmp[0])}, {v(tmp[1])}, 4, {v(tmp[0])}")
    k(f"v_lshl_add_u32 {v(tmp[0])}, {v(half)}, 8, {v(tmp[0])}")
    k(f"s_add_u32 s52, s4, {WS_HH}\ns_addc_u32 s53, s5, 0\ns_and_b32 s53, s53, 0xffff\ns_mov_b32 s54, {HH_BYTES}\ns_mov_b32 s55, 0x20000")
    k(f"s_lshl_b32 s{sT0}, s{sCB}, 11")
    Tt = E + 8
    PKo = E + 32
    for ch in range(2):
        k(f"s_waitcnt vmcnt({8 if ch == 0 else 0})" if ch == 0 else "s_waitcnt vmcnt(2)")
        g, u = acc[ch], acc[2 + ch]
        c1, c3 = CS + 32 * ch, CS + 32 * ch + 16
        for r in range(16): k(f"v_fmac_f32 {v(g+r)}, {v(c1+r)}, {v(nmean)}")
        for r in range(16): k(f"v_fmac_f32 {v(u+r)}, {v(c3+r)}, {v(nmean)}")
        for r in range(16): k(f"v_mul_f32 {v(Tt+r)}, {v(g+r)}, {v(rneg)}")
        for r in range(16): k(f"v_exp_f32 {v(Tt+r)}, {v(Tt+r)}")
        for r in range(16): k(f"v_mul_f32 {v(g+r)}, {v(g+r)}, {v(u+r)}")
        for r in range(16): k(f"v_add_f32 {v(Tt+r)}, 1.0, {v(Tt+r)}")
        for r in range(16): k(f"v_rcp_f32 {v(Tt+r)}, {v(Tt+r)}")
        for r in range(16): k(f"v_mul_f32 {v(g+r)}, {v(g+r)}, {v(rsq2)}")
        for r in range(16): k(f"v_mul_f32 {v(g+r)}, {v(g+r)}, {v(Tt+r)}")
        for p in range(2):
            o = PKo + 4 * p + 8 * ch
            for hi in range(2):
                j = p + 2 * hi
                k(f"v_cvt_pk_bf16_f32 {v(o+2*hi)}, {v(g+4*j)}, {v(g+4*j+1)}\nv_cvt_pk_bf16_f32 {v(o+2*hi+1)}, {v(g+4*j+2)}, {v(g+4*j+3)}")
            k(f"buffer_store_dwordx4 {v(o,4)}, {v(tmp[0])}, s[52:55], s{sT0} offen offset:{ch*1024 + p*512}")
    k.stamp(5); k.stamp(4); k.stamp_real(7)
    k.prof_store(8, 4, WS_END, tmp[1], sW)
    k.tl_end(2)
    k.label(done)
    k("s_endpgm")
    return k, nv, (102 if (prof or tl is not None) else 64)

if __name__ == "__main__":
    k, nv, ns = gen_ffn()
    print("vgprs", nv, "hazards", check_kernel(k), "lines", len(k.lines))
```

```python
from asm import *
from layout import *
import struct
def fbits(x): return struct.unpack("<I", struct.pack("<f", x))[0]

NST = 4
STG = 32768
NCH = 10
L_PS = NST * STG
L_PQ = L_PS + 4096
L_PC = L_PQ + 4096
L_RS = L_PC + 2048
L_MR = L_RS + 512
L_CS = L_MR + 512
LDS_QKV = L_CS + 512

def gen_qkv(name="qkv_kernel", prof=False, tl=None, dbg=()):
    k = Kernel(name); k.prof = prof; k.tl = tl
    V = Alloc(1, 256)
    lane = V("lane"); tmp = [V(f"t{i}") for i in range(10)]
    dA0 = V("dA0"); dA1 = V("dA1"); dB = V("dB")
    vA = [[V(f"vA{h}{j}") for j in range(4)] for h in range(2)]
    vB = [[V(f"vB{h}{j}") for j in range(4)] for h in range(2)]
    st = V("st", 8, 2)
    cs4 = V("cs4", 4, 4); sel = V("sel", 4, 4)
    ut = V("ut", 8, 2)
    acc = [V("acc0", 16, 4), V("acc1", 16, 4)]
    FA = [[[V(f"FA{b}{j}{i}", 4, 4) for i in range(2)] for j in range(4)] for b in range(2)]
    FB = [[V(f"FB{b}{j}", 4, 4) for j in range(4)] for b in range(2)]
    nv = V.next
    sW, sM, sN, sRB, sCB, sSec = 16, 17, 18, 19, 20, 21
    sT0, sT1, sT2, sT3 = 22, 23, 24, 25
    sAo, sBo, sLw, sOnes = 26, 27, 28, 29
    sX, sY = 30, 31
    done = k.L("done")
    k(f"s_cmp_ge_u32 s2, 256\ns_cbranch_scc1 {done}")
    k.tl_start()
    k.stamp(0); k.stamp_real(6)
    k(f"s_load_dwordx4 s[4:7], s[0:1], {KA_X}")
    k(f"s_load_dwordx2 s[36:37], s[0:1], {KA_WS}")
    k(f"s_and_b32 s{sT0}, s2, 7\ns_lshr_b32 s{sT1}, s2, 3")
    k(f"s_lshr_b32 s{sT2}, s{sT0}, 1\ns_lshl_b32 s{sT2}, s{sT2}, 2\ns_and_b32 s{sT3}, s{sT1}, 3\ns_add_u32 s{sRB}, s{sT2}, s{sT3}")
    k(f"s_and_b32 s{sT2}, s{sT0}, 1\ns_lshl_b32 s{sT2}, s{sT2}, 3\ns_lshr_b32 s{sT3}, s{sT1}, 2\ns_add_u32 s{sCB}, s{sT2}, s{sT3}")
    Lcs = k.L("colsum")
    k(f"s_cmp_ge_u32 s{sCB}, 15\ns_cbranch_scc1 {Lcs}")
    k(f"v_and_b32 {v(lane)}, 63, v0\nv_lshrrev_b32 {v(tmp[0])}, 6, v0")
    k.nop(1)
    k(f"v_readfirstlane_b32 s{sW}, {v(tmp[0])}")
    k(f"v_lshrrev_b32 {v(tmp[0])}, 3, {v(lane)}")
    k(f"v_lshrrev_b32 {v(tmp[1])}, 4, {v(lane)}")
    k(f"v_and_b32 {v(tmp[2])}, 7, {v(lane)}")
    k(f"v_xor_b32 {v(tmp[3])}, {v(tmp[2])}, {v(tmp[1])}")
    k(f"v_xor_b32 {v(tmp[4])}, 4, {v(tmp[3])}")
    k(f"s_lshl_b32 s{sT0}, s{sW}, 4")
    k(f"v_add_u32 {v(tmp[0])}, s{sT0}, {v(tmp[0])}\nv_mul_u32_u24 {v(tmp[0])}, 1280, {v(tmp[0])}")
    k(f"v_lshl_add_u32 {v(dA0)}, {v(tmp[3])}, 4, {v(tmp[0])}")
    k(f"v_lshl_add_u32 {v(dA1)}, {v(tmp[4])}, 4, {v(tmp[0])}\nv_add_u32 {v(dA1)}, {8*1280}, {v(dA1)}")
    k(f"v_bfe_u32 {v(tmp[2])}, {v(lane)}, 2, 2\nv_and_b32 {v(tmp[3])}, 3, {v(tmp[1])}\nv_xor_b32 {v(tmp[2])}, {v(tmp[2])}, {v(tmp[3])}")
    k(f"v_and_b32 {v(tmp[3])}, 3, {v(lane)}\nv_lshl_add_u32 {v(tmp[2])}, {v(tmp[2])}, 2, {v(tmp[3])}")
    k(f"s_lshl_b32 s{sT0}, s{sW}, 3")
    k(f"v_add_u32 {v(tmp[1])}, s{sT0}, {v(tmp[1])}\nv_mul_u32_u24 {v(tmp[1])}, 3840, {v(tmp[1])}")
    k(f"v_lshl_add_u32 {v(dB)}, {v(tmp[2])}, 4, {v(tmp[1])}")
    k(f"s_mul_i32 s{sAo}, s{sRB}, {128*1280}\ns_lshl_b32 s{sBo}, s{sCB}, 8\ns_lshl_b32 s{sLw}, s{sW}, 11")
    k(f"s_lshr_b32 s{sM}, s{sW}, 2\ns_and_b32 s{sN}, s{sW}, 3")
    k("s_waitcnt lgkmcnt(0)")
    k(f"s_mov_b32 s8, s4\ns_and_b32 s9, s5, 0xffff\ns_mov_b32 s10, {S*D*2}\ns_mov_b32 s11, 0x20000")
    k(f"s_mov_b32 s12, s6\ns_and_b32 s13, s7, 0xffff\ns_mov_b32 s14, {D*3*D*2}\ns_mov_b32 s15, 0x20000")
    def dma(c):
        stg = (c % NST) * STG
        k(f"s_add_u32 m0, s{sLw}, {stg}\ns_add_u32 s{sX}, s{sAo}, {c*128}")
        k(f"buffer_load_dwordx4 {v(dA0)}, s[8:11], s{sX} offen lds")
        k(f"s_add_u32 m0, s{sLw}, {stg+1024}\ns_add_u32 s{sY}, s{sBo}, {c*64*3840}")
        k(f"buffer_load_dwordx4 {v(dA1)}, s[8:11], s{sX} offen lds")
        k(f"s_add_u32 m0, s{sLw}, {stg+16384}\ns_add_u32 s{sX}, s{sY}, {4*3840}")
        k(f"buffer_load_dwordx4 {v(dB)}, s[12:15], s{sY} offen lds")
        k(f"s_add_u32 m0, s{sLw}, {stg+16384+1024}\ns_nop 0")
        k(f"buffer_load_dwordx4 {v(dB)}, s[12:15], s{sX} offen lds")
    for c in range(4): dma(c)
    k.stamp(1)
    k(f"s_add_u32 s36, s36, {WS_QKV}\ns_addc_u32 s37, s37, 0\ns_and_b32 s37, s37, 0xffff\ns_mov_b32 s38, {QKV_BYTES}\ns_mov_b32 s39, 0x20000")
    k(f"s_lshl_b32 s{sT0}, s{sM}, 1\ns_add_u32 s{sT0}, s{sT0}, s{sN}")
    k(f"v_and_b32 {v(tmp[0])}, 31, {v(lane)}\nv_lshrrev_b32 {v(tmp[1])}, 5, {v(lane)}")
    k(f"s_lshl_b32 s{sT1}, s{sM}, 6\nv_add_u32 {v(tmp[2])}, s{sT1}, {v(tmp[0])}\nv_lshlrev_b32 {v(tmp[2])}, 7, {v(tmp[2])}")
    k(f"v_bfe_u32 {v(tmp[3])}, {v(lane)}, 1, 3")
    k(f"v_bfe_u32 {v(tmp[4])}, {v(lane)}, 2, 2")
    k(f"v_lshl_add_u32 {v(tmp[5])}, {v(tmp[1])}, 3, {v(tmp[4])}\nv_lshlrev_b32 {v(tmp[5])}, 8, {v(tmp[5])}")
    k(f"v_xor_b32 {v(tmp[4])}, s{sN}, {v(tmp[4])}\nv_lshl_add_u32 {v(tmp[5])}, {v(tmp[4])}, 6, {v(tmp[5])}")
    k(f"v_bfe_u32 {v(tmp[4])}, {v(lane)}, 4, 1\nv_lshl_add_u32 {v(tmp[5])}, {v(tmp[4])}, 5, {v(tmp[5])}")
    k(f"v_and_b32 {v(tmp[4])}, 3, {v(lane)}\nv_lshl_add_u32 {v(tmp[5])}, {v(tmp[4])}, 3, {v(tmp[5])}")
    k(f"v_add_u32 {v(tmp[5])}, 16384, {v(tmp[5])}")
    for j in range(4):
        k(f"s_add_u32 s{sT1}, s{sT0}, {j}\ns_and_b32 s{sT1}, s{sT1}, 3\ns_lshl_b32 s{sT2}, s{sT1}, 1\ns_lshl_b32 s{sT3}, s{sT1}, 12")
        k(f"v_add_u32 {v(tmp[4])}, s{sT2}, {v(tmp[1])}\nv_xor_b32 {v(tmp[4])}, {v(tmp[4])}, {v(tmp[3])}")
        k(f"v_lshl_add_u32 {v(vA[0][j])}, {v(tmp[4])}, 4, {v(tmp[2])}\nv_add_u32 {v(vA[1][j])}, 0x10000, {v(vA[0][j])}")
        k(f"v_add_u32 {v(vB[0][j])}, s{sT3}, {v(tmp[5])}\nv_add_u32 {v(vB[1][j])}, 0x10000, {v(vB[0][j])}")
    for i in range(8): k(f"v_mov_b32 {v(st+i)}, 0")
    k(f"v_bfe_u32 {v(tmp[4])}, {v(lane)}, 4, 1\nv_bfe_u32 {v(tmp[6])}, {v(lane)}, 3, 1")
    k(f"v_cmp_eq_u32 vcc, {v(tmp[4])}, {v(tmp[6])}")
    k(f"v_mov_b32 {v(tmp[4])}, 0x3f803f80\nv_mov_b32 {v(tmp[6])}, 0")
    for i in range(4): k(f"v_cndmask_b32 {v(sel+i)}, {v(tmp[6])}, {v(tmp[4])}, vcc")
    k(f"s_mov_b32 s{sOnes}, 0xffff0000")
    k(f"s_mul_i32 s{sSec}, s{sCB}, 52\ns_lshr_b32 s{sSec}, s{sSec}, 8")
    LV = k.L("vpath"); Lepi = k.L("epi")
    k(f"s_cmp_eq_u32 s{sSec}, 2\ns_cbranch_scc1 {LV}")

    def reads(c):
        b = c & 1; stg = c % NST; hi = stg >> 1; so = (stg & 1) * STG
        out = []
        for j in range(4):
            out.append(f"ds_read_b128 {v(FA[b][j][0],4)}, {v(vA[hi][j])} offset:{so}")
            out.append(f"ds_read_b64_tr_b16 {v(FB[b][j],2)}, {v(vB[hi][j])} offset:{so}")
            out.append(f"ds_read_b64_tr_b16 {v(FB[b][j]+2,2)}, {v(vB[hi][j])} offset:{so+1024}")
            out.append(f"ds_read_b128 {v(FA[b][j][1],4)}, {v(vA[hi][j])} offset:{so+4096}")
        return out
    def mainloop(vorient):
        for c in range(-1, NCH):
            if c + 1 < NCH:
                allowed = (min(c + 3, NCH - 1) - (c + 1)) * 4
                if 'nodma' in dbg: allowed = 0 if c == 2 else 63
                k(f"s_waitcnt vmcnt({allowed})\ns_barrier")
            if c == -1: k.stamp(2)
            if c >= 0 and c + 4 < NCH and 'nodma' not in dbg: dma(c + 4)
            rd = reads(c + 1) if (c + 1 < NCH and 'noread' not in dbg) else []
            mf = []; dots = [[] for _ in range(4)]
            if c >= 0:
                b = c & 1
                for j in range(4):
                    for i in range(2):
                        cin = v(acc[i], 16) if not (c == 0 and j == 0) else "0"
                        x, w_ = v(FA[b][j][i], 4), v(FB[b][j], 4)
                        if vorient: mf.append(f"v_mfma_f32_32x32x16_bf16 {v(acc[i],16)}, {x}, {w_}, {cin}")
                        else: mf.append(f"v_mfma_f32_32x32x16_bf16 {v(acc[i],16)}, {w_}, {x}, {cin}")
                dl = []
                for i in range(2):
                    for r in range(4):
                        x = FA[b][0][i] + r; u = ut + 2 * ((4 * i + r) % 4)
                        if 'pk' in dbg:
                            dl.append(f"v_lshlrev_b32 {v(u)}, 16, {v(x)}")
                            dl.append(f"v_and_b32 {v(u+1)}, s{sOnes}, {v(x)}")
                            dl.append(f"v_pk_add_f32 {v(st+2*i,2)}, {v(st+2*i,2)}, {v(u,2)}")
                            dl.append(f"v_pk_fma_f32 {v(st+4+2*i,2)}, {v(u,2)}, {v(u,2)}, {v(st+4+2*i,2)}")
                        else:
                            dl.append(f"v_lshlrev_b32 {v(u)}, 16, {v(x)}")
                            dl.append(f"v_and_b32 {v(u+1)}, s{sOnes}, {v(x)}")
                            dl.append(f"v_add_f32 {v(st+i)}, {v(st+i)}, {v(u)}")
                            dl.append(f"v_fmac_f32 {v(st+2+i)}, {v(u)}, {v(u)}")
                            dl.append(f"v_add_f32 {v(st+4+i)}, {v(st+4+i)}, {v(u+1)}")
                            dl.append(f"v_fmac_f32 {v(st+6+i)}, {v(u+1)}, {v(u+1)}")
                if 'pk' in dbg:
                    o = []
                    g = [dl[4*e:4*e+4] for e in range(8)]
                    o += g[0][:2]
                    for e in range(8):
                        if e + 1 < 8: o += g[e+1][:2]
                        o += g[e][2:]
                    dl = o
                else:
                    o = []
                    g = [dl[6*e:6*e+6] for e in range(8)]
                    o += g[0][:2]
                    for e in range(8):
                        if e + 1 < 8: o += g[e+1][:2]
                        o += g[e][2:]
                    dl = o
                for j in range(2):
                    cin = v(cs4, 4) if not (c == 0 and j == 0) else "0"
                    mf.insert(2 + 3 * j, f"v_mfma_f32_16x16x32_bf16 {v(cs4,4)}, {v(sel,4)}, {v(FB[b][j],4)}, {cin}")
            else:
                dl = []
            if 'nodot' in dbg: dl = []; mf = [x for x in mf if '16x16' not in x]
            if 'nomfma' in dbg: mf = []; rd = rd + dl
            if mf:
                nm = len(mf); ri = 0; di = 0
                per_d = (len(dl) + nm - 1) // nm
                for q in range(nm):
                    k(mf[q])
                    for x in rd[ri: ri+3]: k(x)
                    ri += 3
                    for x in dl[di: di+per_d]: k(x)
                    di += per_d
                assert ri >= len(rd) and di >= len(dl)
            else:
                for x in rd: k(x)
            if rd: k("s_waitcnt lgkmcnt(0)")
    mainloop(False)
    k(f"s_branch {Lepi}")
    k.label(LV)
    mainloop(True)
    k.label(Lepi)
    k.stamp(3)
    k.nop(8)
    if 'pk' in dbg:
        k(f"v_add_f32 {v(st)}, {v(st)}, {v(st+1)}\nv_add_f32 {v(st+1)}, {v(st+2)}, {v(st+3)}\nv_add_f32 {v(st+2)}, {v(st+4)}, {v(st+5)}\nv_add_f32 {v(st+3)}, {v(st+6)}, {v(st+7)}")
    else:
        for i in range(4): k(f"v_add_f32 {v(st+i)}, {v(st+i)}, {v(st+4+i)}")
    r_, half = tmp[0], tmp[1]
    k(f"v_and_b32 {v(r_)}, 31, {v(lane)}\nv_lshrrev_b32 {v(half)}, 5, {v(lane)}")
    k(f"s_lshl_b32 s{sT0}, s{sM}, 11\ns_lshl_b32 s{sT1}, s{sN}, 3\ns_add_u32 s{sT0}, s{sT0}, s{sT1}\ns_add_u32 s{sT0}, s{sT0}, {L_PS}")
    k(f"v_lshlrev_b32 {v(tmp[2])}, 5, {v(r_)}\nv_lshl_add_u32 {v(tmp[2])}, {v(half)}, 2, {v(tmp[2])}\nv_add_u32 {v(tmp[2])}, s{sT0}, {v(tmp[2])}")
    k(f"ds_write_b32 {v(tmp[2])}, {v(st)}\nds_write_b32 {v(tmp[2])}, {v(st+1)} offset:1024")
    k(f"ds_write_b32 {v(tmp[2])}, {v(st+2)} offset:4096\nds_write_b32 {v(tmp[2])}, {v(st+3)} offset:{4096+1024}")
    k(f"s_lshl_b32 s{sT0}, s{sN}, 8\ns_lshl_b32 s{sT1}, s{sM}, 2\ns_add_u32 s{sT0}, s{sT0}, s{sT1}\ns_add_u32 s{sT0}, s{sT0}, {L_PC}")
    k(f"v_and_b32 {v(tmp[3])}, 15, {v(lane)}\nv_lshl_add_u32 {v(tmp[3])}, {v(half)}, 4, {v(tmp[3])}\nv_lshlrev_b32 {v(tmp[3])}, 3, {v(tmp[3])}\nv_add_u32 {v(tmp[3])}, s{sT0}, {v(tmp[3])}")
    k(f"ds_write_b32 {v(tmp[3])}, {v(cs4)}")
    k("s_waitcnt lgkmcnt(0)\ns_barrier")
    Lr2 = k.L("red2"); Lr3 = k.L("red3")
    T = FA[0][0][0]
    k(f"s_cmp_ge_u32 s{sW}, 2\ns_cbranch_scc1 {Lr2}")
    k(f"v_lshlrev_b32 {v(tmp[2])}, 5, v0\nv_add_u32 {v(tmp[2])}, {L_PS}, {v(tmp[2])}")
    k(f"ds_read_b128 {v(T,4)}, {v(tmp[2])}\nds_read_b128 {v(T+4,4)}, {v(tmp[2])} offset:16")
    k(f"ds_read_b128 {v(T+8,4)}, {v(tmp[2])} offset:4096\nds_read_b128 {v(T+12,4)}, {v(tmp[2])} offset:{4096+16}")
    k("s_waitcnt lgkmcnt(0)")
    for base in (T, T + 8):
        k(f"v_add_f32 {v(base)}, {v(base)}, {v(base+1)}\nv_add_f32 {v(base+2)}, {v(base+2)}, {v(base+3)}\nv_add_f32 {v(base+4)}, {v(base+4)}, {v(base+5)}\nv_add_f32 {v(base+6)}, {v(base+6)}, {v(base+7)}")
        k(f"v_add_f32 {v(base)}, {v(base)}, {v(base+2)}\nv_add_f32 {v(base+4)}, {v(base+4)}, {v(base+6)}\nv_add_f32 {v(base)}, {v(base)}, {v(base+4)}")
    k(f"v_mul_f32 {v(T)}, {fbits(1.0/D)}, {v(T)}\nv_mul_f32 {v(T+8)}, {fbits(1.0/D)}, {v(T+8)}")
    k(f"v_fma_f32 {v(T+8)}, -{v(T)}, {v(T)}, {v(T+8)}\nv_max_f32 {v(T+8)}, 0, {v(T+8)}\nv_add_f32 {v(T+8)}, {fbits(1e-5)}, {v(T+8)}")
    k(f"v_rsq_f32 {v(T+8)}, {v(T+8)}")
    k(f"s_cmp_eq_u32 s{sSec}, 0\ns_cselect_b32 s{sT0}, {fbits(QSCALE)}, 1.0")
    k(f"v_mul_f32 {v(T+8)}, s{sT0}, {v(T+8)}\nv_sub_f32 {v(T)}, 0, {v(T)}")
    k(f"v_lshlrev_b32 {v(tmp[2])}, 2, v0\nv_add_u32 {v(tmp[2])}, {L_RS}, {v(tmp[2])}")
    k(f"ds_write_b32 {v(tmp[2])}, {v(T+8)}\nds_write_b32 {v(tmp[2])}, {v(T)} offset:512")
    k(f"s_branch {Lr3}")
    k.label(Lr2)
    k(f"s_cmp_ge_u32 s{sW}, 4\ns_cbranch_scc1 {Lr3}")
    k(f"v_subrev_u32 {v(tmp[2])}, 128, v0\nv_lshlrev_b32 {v(tmp[3])}, 3, {v(tmp[2])}\nv_add_u32 {v(tmp[3])}, {L_PC}, {v(tmp[3])}")
    k(f"ds_read_b64 {v(T,2)}, {v(tmp[3])}\ns_waitcnt lgkmcnt(0)")
    k(f"v_add_f32 {v(T)}, {v(T)}, {v(T+1)}")
    k(f"v_lshlrev_b32 {v(tmp[2])}, 2, {v(tmp[2])}\nv_add_u32 {v(tmp[2])}, {L_CS}, {v(tmp[2])}\nds_write_b32 {v(tmp[2])}, {v(T)}")
    k.label(Lr3)
    k("s_waitcnt lgkmcnt(0)\ns_barrier")
    k.stamp(4)
    LVe = k.L("vepi")
    k(f"s_lshr_b32 s{sT0}, s{sRB}, 1\ns_mul_i32 s{sX}, s{sT0}, {BLK_STRIDE}")
    k(f"s_mul_i32 s{sT0}, s{sSec}, 5\ns_sub_u32 s{sCB}, s{sCB}, s{sT0}")
    k(f"s_cmp_eq_u32 s{sSec}, 2\ns_cbranch_scc1 {LVe}")
    CSr = T
    RS0, MR0, RS1, MR1 = tmp[4], tmp[5], tmp[6], tmp[7]
    k(f"s_lshl_b32 s{sT0}, s{sM}, 8\ns_add_u32 s{sT0}, s{sT0}, {L_RS}")
    k(f"v_lshl_add_u32 {v(tmp[2])}, {v(r_)}, 2, s{sT0}")
    k(f"ds_read_b32 {v(RS0)}, {v(tmp[2])}\nds_read_b32 {v(MR0)}, {v(tmp[2])} offset:512\nds_read_b32 {v(RS1)}, {v(tmp[2])} offset:128\nds_read_b32 {v(MR1)}, {v(tmp[2])} offset:{512+128}")
    k(f"s_lshl_b32 s{sT0}, s{sN}, 7\ns_add_u32 s{sT0}, s{sT0}, {L_CS}")
    k(f"v_lshl_add_u32 {v(tmp[2])}, {v(half)}, 4, s{sT0}")
    for j in range(4): k(f"ds_read_b128 {v(CSr+4*j,4)}, {v(tmp[2])} offset:{32*j}")
    k(f"s_and_b32 s{sT0}, s{sRB}, 1\ns_lshl_b32 s{sT0}, s{sT0}, 2\ns_lshl_b32 s{sT1}, s{sM}, 1\ns_add_u32 s{sT0}, s{sT0}, s{sT1}")
    k(f"s_cmp_eq_u32 s{sSec}, 0\ns_cselect_b32 s{sT1}, {Q1OFF}, {K1OFF}\ns_add_u32 s{sX}, s{sX}, s{sT1}")
    k(f"s_lshl_b32 s{sT2}, s{sT0}, 10\ns_lshl_b32 s{sT3}, s{sT0}, 8\ns_add_u32 s{sT3}, s{sT3}, {K2OFF}")
    k(f"s_lshl_b32 s{sT0}, s{sCB}, 5\ns_lshl_b32 s{sT1}, s{sN}, 3\ns_add_u32 s{sT0}, s{sT0}, s{sT1}")
    k(f"v_add_u32 {v(tmp[2])}, s{sT0}, {v(half)}")
    AD = T + 16
    a1, a2 = tmp[8], tmp[9]
    for j in range(4):
        q = tmp[3]
        k(f"v_add_u32 {v(q)}, {2*j}, {v(tmp[2])}")
        k(f"v_mul_u32_u24 {v(a1)}, 205, {v(q)}\nv_lshrrev_b32 {v(a1)}, 10, {v(a1)}")
        k(f"v_mul_u32_u24 {v(a2)}, 5, {v(a1)}\nv_sub_u32 {v(q)}, {v(q)}, {v(a2)}")
        k(f"v_mul_u32_u24 {v(a1)}, {HEAD_STRIDE}, {v(a1)}")
        k(f"v_lshrrev_b32 {v(a2)}, 1, {v(q)}\nv_lshlrev_b32 {v(a2)}, 9, {v(a2)}\nv_lshl_add_u32 {v(a2)}, {v(r_)}, 4, {v(a2)}")
        k(f"v_and_b32 {v(AD+2*j+1)}, 1, {v(q)}\nv_lshl_add_u32 {v(a2)}, {v(AD+2*j+1)}, 3, {v(a2)}\nv_add_u32 {v(a2)}, s{sT2}, {v(a2)}")
        k(f"v_lshl_add_u32 {v(AD+2*j+1)}, {v(r_)}, 3, s{sT3}")
        k(f"v_cmp_eq_u32 vcc, 4, {v(q)}")
        k(f"v_mov_b32 {v(q)}, 1024")
        k(f"v_mov_b32 {v(AD+2*j)}, 256")
        k(f"v_cndmask_b32 {v(a2)}, {v(a2)}, {v(AD+2*j+1)}, vcc")
        k(f"v_cndmask_b32 {v(q)}, {v(q)}, {v(AD+2*j)}, vcc")
        k(f"v_add_u32 {v(AD+2*j)}, {v(a1)}, {v(a2)}\nv_add_u32 {v(AD+2*j+1)}, {v(AD+2*j)}, {v(q)}")
    k("s_waitcnt lgkmcnt(0)")
    PK = T + 24
    for i in range(2):
        RS, MR = (RS0, MR0) if i == 0 else (RS1, MR1)
        for r in range(16):
            k(f"v_fmac_f32 {v(acc[i]+r)}, {v(CSr+r)}, {v(MR)}")
        for r in range(16):
            k(f"v_mul_f32 {v(acc[i]+r)}, {v(acc[i]+r)}, {v(RS)}")
        for j in range(4):
            p = PK + 8 * i + 2 * j
            k(f"v_cvt_pk_bf16_f32 {v(p)}, {v(acc[i]+4*j)}, {v(acc[i]+4*j+1)}\nv_cvt_pk_bf16_f32 {v(p+1)}, {v(acc[i]+4*j+2)}, {v(acc[i]+4*j+3)}")
            k(f"buffer_store_dwordx2 {v(p,2)}, {v(AD+2*j+i)}, s[36:39], s{sX} offen")
    k(f"s_branch L_qkv_end")
    k.label(LVe)
    CSv = tmp[4]
    k(f"s_lshl_b32 s{sT0}, s{sN}, 7\ns_add_u32 s{sT0}, s{sT0}, {L_CS}")
    k(f"v_lshl_add_u32 {v(tmp[2])}, {v(r_)}, 2, s{sT0}\nds_read_b32 {v(CSv)}, {v(tmp[2])}")
    k(f"s_lshl_b32 s{sT0}, s{sM}, 8\ns_add_u32 s{sT0}, s{sT0}, {L_RS}")
    k(f"v_lshl_add_u32 {v(tmp[2])}, {v(half)}, 4, s{sT0}")
    RSv = T; MRv = T + 32
    for i in range(2):
        for j in range(4):
            k(f"ds_read_b128 {v(RSv+16*i+4*j,4)}, {v(tmp[2])} offset:{128*i+32*j}")
            k(f"ds_read_b128 {v(MRv+16*i+4*j,4)}, {v(tmp[2])} offset:{512+128*i+32*j}")
    k(f"s_lshl_b32 s{sT0}, s{sCB}, 7\ns_lshl_b32 s{sT1}, s{sN}, 5\ns_add_u32 s{sT0}, s{sT0}, s{sT1}")
    k(f"v_add_u32 {v(tmp[3])}, s{sT0}, {v(r_)}")
    k(f"v_mul_u32_u24 {v(tmp[5])}, 3277, {v(tmp[3])}\nv_lshrrev_b32 {v(tmp[5])}, 16, {v(tmp[5])}")
    k(f"v_mul_u32_u24 {v(tmp[6])}, 20, {v(tmp[5])}\nv_sub_u32 {v(tmp[3])}, {v(tmp[3])}, {v(tmp[6])}")
    k(f"v_mul_u32_u24 {v(tmp[5])}, {HEAD_STRIDE}, {v(tmp[5])}\nv_lshl_add_u32 {v(tmp[5])}, {v(tmp[3])}, 4, {v(tmp[5])}")
    k(f"v_mul_u32_u24 {v(tmp[6])}, 320, {v(half)}\nv_add_u32 {v(tmp[5])}, {v(tmp[5])}, {v(tmp[6])}")
    k(f"s_and_b32 s{sT0}, s{sRB}, 1\ns_lshl_b32 s{sT0}, s{sT0}, 3\ns_lshl_b32 s{sT1}, s{sM}, 2\ns_add_u32 s{sT0}, s{sT0}, s{sT1}\ns_mul_i32 s{sT0}, s{sT0}, 640")
    k(f"s_add_u32 s{sX}, s{sX}, s{sT0}\ns_add_u32 s{sX}, s{sX}, {VOFF}")
    k("s_waitcnt lgkmcnt(0)")
    PK = T + 64
    for i in range(2):
        for r in range(16):
            k(f"v_fmac_f32 {v(acc[i]+r)}, {v(CSv)}, {v(MRv+16*i+r)}")
        for r in range(16):
            k(f"v_mul_f32 {v(acc[i]+r)}, {v(acc[i]+r)}, {v(RSv+16*i+r)}")
        for g in range(2):
            p = PK + 8 * i + 4 * g
            for q in range(4):
                k(f"v_cvt_pk_bf16_f32 {v(p+q)}, {v(acc[i]+8*g+2*q)}, {v(acc[i]+8*g+2*q+1)}")
            k(f"buffer_store_dwordx4 {v(p,4)}, {v(tmp[5])}, s[36:39], s{sX} offen offset:{(2*i+g)*640}")
    k.label("L_qkv_end")
    if prof:
        k.stamp(5); k.stamp_real(7)
        k("s_sub_u32 s36, s36, 0")
        k.prof_store(8, 36, WS_END, tmp[0], sW)
    k.tl_end(2)
    k.label(done)
    k("s_endpgm")
    k.label(Lcs)
    k(f"s_load_dwordx4 s[44:47], s[0:1], {KA_W1}")
    k(f"v_mul_u32_u24 {v(tmp[0])}, 2428, v0\nv_lshrrev_b32 {v(tmp[0])}, 16, {v(tmp[0])}")
    k(f"v_mul_u32_u24 {v(tmp[1])}, 27, {v(tmp[0])}\nv_sub_u32 {v(tmp[1])}, v0, {v(tmp[1])}")
    k(f"s_and_b32 s{sT0}, s{sRB}, 7\ns_mul_i32 s{sT0}, s{sT0}, 432")
    k(f"v_mul_u32_u24 {v(tmp[2])}, {40*F*2}, {v(tmp[0])}\nv_lshl_add_u32 {v(tmp[2])}, {v(tmp[1])}, 4, {v(tmp[2])}\nv_add_u32 {v(tmp[2])}, s{sT0}, {v(tmp[2])}")
    k("s_waitcnt lgkmcnt(0)")
    k(f"s_cmp_ge_u32 s{sRB}, 8\ns_cselect_b32 s8, s46, s44\ns_cselect_b32 s9, s47, s45\ns_and_b32 s9, s9, 0xffff\ns_mov_b32 s10, {D*F*2}\ns_mov_b32 s11, 0x20000")
    A8 = FA[0][0][0]; LD = A8 + 8
    for i in range(8): k(f"v_mov_b32 {v(A8+i)}, 0")
    Lsk = k.L("cs_skip")
    k(f"v_cmp_gt_u32 vcc, 16, {v(tmp[0])}")
    k(f"s_and_saveexec_b64 s[40:41], vcc\ns_cbranch_execz {Lsk}")
    k(f"s_mov_b32 s{sT1}, 0")
    Lcl = k.L("cs_loop")
    k.label(Lcl)
    for i in range(10):
        k(f"buffer_load_dwordx4 {v(LD+4*i,4)}, {v(tmp[2])}, s[8:11], s{sT1} offen\ns_add_u32 s{sT1}, s{sT1}, {F*2}")
    for i in range(10):
        k(f"s_waitcnt vmcnt({9-i})")
        for q in range(4):
            x = LD + 4 * i + q
            k(f"v_lshlrev_b32 {v(tmp[4])}, 16, {v(x)}\nv_and_b32 {v(tmp[5])}, 0xffff0000, {v(x)}")
            k(f"v_add_f32 {v(A8+2*q)}, {v(A8+2*q)}, {v(tmp[4])}\nv_add_f32 {v(A8+2*q+1)}, {v(A8+2*q+1)}, {v(tmp[5])}")
    k(f"s_cmp_lt_u32 s{sT1}, {40*F*2}\ns_cbranch_scc1 {Lcl}")
    k(f"v_mul_u32_u24 {v(tmp[3])}, 864, {v(tmp[0])}\nv_lshl_add_u32 {v(tmp[3])}, {v(tmp[1])}, 5, {v(tmp[3])}")
    k(f"ds_write_b128 {v(tmp[3])}, {v(A8,4)}\nds_write_b128 {v(tmp[3])}, {v(A8+4,4)} offset:16")
    k.label(Lsk)
    k("s_mov_b64 exec, s[40:41]")
    k("s_waitcnt lgkmcnt(0)\ns_barrier")
    Lsk2 = k.L("cs_skip2")
    k(f"v_cmp_gt_u32 vcc, 216, v0")
    k(f"s_and_saveexec_b64 s[40:41], vcc\ns_cbranch_execz {Lsk2}")
    k(f"v_lshlrev_b32 {v(tmp[3])}, 2, v0")
    for i in range(16): k(f"ds_read_b32 {v(LD+i)}, {v(tmp[3])} offset:{864*i}")
    k("s_waitcnt lgkmcnt(0)")
    for i in range(1, 16): k(f"v_add_f32 {v(LD)}, {v(LD)}, {v(LD+i)}")
    k(f"s_add_u32 s36, s36, {WS_CS}\ns_addc_u32 s37, s37, 0\ns_and_b32 s37, s37, 0xffff\ns_mov_b32 s38, {CS_BYTES}\ns_mov_b32 s39, 0x20000")
    k(f"s_mul_i32 s{sT0}, s{sRB}, 864")
    k(f"buffer_store_dword {v(LD)}, {v(tmp[3])}, s[36:39], s{sT0} offen")
    k.label(Lsk2)
    k("s_endpgm")
    return k, nv, (102 if (prof or tl is not None) else 48)

if __name__ == "__main__":
    k, nv, ns = gen_qkv()
    print("vgprs", nv, "hazards", check_kernel(k), "lines", len(k.lines))
```

```python
from asm import *
from layout import *
def PROF_OFF(k): return {'qkv_kernel':0,'attn_kernel':1,'oproj_kernel':2,'ffn_kernel':3,'down_kernel':4}.get(k.name, 0) * 0x40000
import struct
def fbits(x): return struct.unpack("<I", struct.pack("<f", x))[0]

def gen_t3(mode, prof=False, tl=None):
    name = {"oproj": "oproj_kernel", "down": "down_kernel"}[mode]
    K = 640 if mode == "oproj" else F
    NS = 5 if mode == "oproj" else 14
    R = 5 if mode == "oproj" else 6
    WST = 30720
    TSTR = K * 32
    k = Kernel(name); k.prof = prof; k.tl = tl
    V = Alloc(1, 256)
    lane = V("lane"); tmp = [V(f"t{i}") for i in range(8)]
    dB = [V(f"dB{i}") for i in range(5)]
    vA = [V(f"vA{i}") for i in range(4)]
    vB = V("vB")
    res = V("res", 10, 2)
    acc = [[V(f"acc{i}{j}", 4, 4) for j in range(5)] for i in range(4)]
    FA = [[V(f"FA{r}{i}", 4, 4) for i in range(4)] for r in range(R)]
    FB = [[V(f"FB{b}{j}", 4, 4) for j in range(5)] for b in range(2)]
    nv = V.next
    sW, sRB, sCB = 16, 17, 18
    sT0, sT1, sT2, sT3 = 20, 21, 22, 23
    sA, sB, sL = 24, 25, 26
    done = k.L("done")
    k(f"s_cmp_ge_u32 s2, 256\ns_cbranch_scc1 {done}")
    k.tl_start()
    k.stamp(0); k.stamp_real(6)
    k(f"s_load_dwordx2 s[4:5], s[0:1], {KA_WS}")
    k(f"s_load_dwordx2 s[6:7], s[0:1], {KA_WO if mode == 'oproj' else KA_W2}")
    k(f"s_load_dwordx2 s[28:29], s[0:1], {KA_X if mode == 'oproj' else KA_OUT}")
    k(f"s_and_b32 s{sT0}, s2, 7\ns_lshr_b32 s{sT1}, s2, 3")
    k(f"s_lshr_b32 s{sT2}, s{sT0}, 1\ns_lshl_b32 s{sT2}, s{sT2}, 3\ns_and_b32 s{sT3}, s{sT1}, 7\ns_add_u32 s{sRB}, s{sT2}, s{sT3}")
    k(f"s_and_b32 s{sT2}, s{sT0}, 1\ns_lshl_b32 s{sT2}, s{sT2}, 2\ns_lshr_b32 s{sT3}, s{sT1}, 3\ns_add_u32 s{sCB}, s{sT2}, s{sT3}")
    k(f"v_and_b32 {v(lane)}, 63, v0\nv_lshrrev_b32 {v(tmp[0])}, 6, v0")
    k.nop(1)
    k(f"v_readfirstlane_b32 s{sW}, {v(tmp[0])}")
    for i in range(5):
        k(f"v_add_u32 {v(tmp[0])}, {64*i}, {v(lane)}")
        k(f"v_mul_u32_u24 {v(tmp[1])}, 6554, {v(tmp[0])}\nv_lshrrev_b32 {v(tmp[1])}, 16, {v(tmp[1])}")
        k(f"v_mul_u32_u24 {v(tmp[2])}, 10, {v(tmp[1])}\nv_sub_u32 {v(tmp[0])}, {v(tmp[0])}, {v(tmp[2])}")
        k(f"v_mul_u32_u24 {v(tmp[1])}, 1280, {v(tmp[1])}\nv_lshl_add_u32 {v(dB[i])}, {v(tmp[0])}, 4, {v(tmp[1])}")
    k(f"v_lshlrev_b32 {v(vA[0])}, 4, {v(lane)}")
    for i in range(1, 4): k(f"v_add_u32 {v(vA[i])}, {i*TSTR}, {v(vA[0])}")
    k(f"s_mul_i32 s{sT0}, s{sW}, {NS}")
    k(f"s_mul_i32 s{sA}, s{sRB}, {4*TSTR}\ns_lshl_b32 s{sT1}, s{sT0}, 10\ns_add_u32 s{sA}, s{sA}, s{sT1}")
    k(f"s_mul_i32 s{sB}, s{sT0}, {32*1280}\ns_mul_i32 s{sT1}, s{sCB}, 160\ns_add_u32 s{sB}, s{sB}, s{sT1}")
    k(f"s_mul_i32 s{sL}, s{sW}, {WST}")
    k("s_waitcnt lgkmcnt(0)")
    aoff, abytes = (WS_O, O_BYTES) if mode == "oproj" else (WS_HH, HH_BYTES)
    k(f"s_add_u32 s8, s4, {aoff}\ns_addc_u32 s9, s5, 0\ns_and_b32 s9, s9, 0xffff\ns_mov_b32 s10, {abytes}\ns_mov_b32 s11, 0x20000")
    k(f"s_mov_b32 s12, s6\ns_and_b32 s13, s7, 0xffff\ns_mov_b32 s14, {K*1280}\ns_mov_b32 s15, 0x20000")
    def loads(s):
        r = s % R
        k(f"s_add_u32 s{sT0}, s{sA}, {s*1024}")
        for i in range(4):
            k(f"buffer_load_dwordx4 {v(FA[r][i],4)}, {v(vA[i])}, s[8:11], s{sT0} offen")
        k(f"s_add_u32 s{sT0}, s{sB}, {s*32*1280}")
        for i in range(5):
            k(f"s_add_u32 m0, s{sL}, {r*5120 + i*1024}\ns_nop 0")
            k(f"buffer_load_dwordx4 {v(dB[i])}, s[12:15], s{sT0} offen lds")
    for s in range(min(R, NS)): loads(s)
    k.stamp(1)
    tok, G = tmp[4], tmp[5]
    k(f"v_and_b32 {v(tok)}, 15, {v(lane)}\nv_lshrrev_b32 {v(G)}, 4, {v(lane)}")
    k(f"s_lshl_b32 s{sT0}, s{sRB}, 6\ns_lshl_b32 s{sT1}, s{sW}, 4\ns_add_u32 s{sT0}, s{sT0}, s{sT1}\nv_add_u32 {v(tok)}, s{sT0}, {v(tok)}")
    hb = tmp[6]
    k(f"v_lshrrev_b32 {v(tmp[0])}, 5, {v(tok)}\nv_mul_u32_u24 {v(hb)}, 40960, {v(tmp[0])}")
    k(f"v_and_b32 {v(tmp[0])}, 31, {v(tok)}\nv_lshl_add_u32 {v(hb)}, {v(tmp[0])}, 4, {v(hb)}")
    k(f"v_lshrrev_b32 {v(tmp[0])}, 1, {v(G)}\nv_lshl_add_u32 {v(hb)}, {v(tmp[0])}, 9, {v(hb)}")
    k(f"v_and_b32 {v(tmp[0])}, 1, {v(G)}\nv_lshl_add_u32 {v(hb)}, {v(tmp[0])}, 3, {v(hb)}")
    rm = tmp[7]
    k(f"v_mul_u32_u24 {v(rm)}, 1280, {v(tok)}\nv_lshl_add_u32 {v(rm)}, {v(G)}, 3, {v(rm)}")
    k(f"s_add_u32 s32, s4, {WS_H}\ns_addc_u32 s33, s5, 0\ns_and_b32 s33, s33, 0xffff\ns_mov_b32 s34, {H_BYTES}\ns_mov_b32 s35, 0x20000")
    k(f"s_mov_b32 s36, s28\ns_and_b32 s37, s29, 0xffff\ns_mov_b32 s38, {S*D*2}\ns_mov_b32 s39, 0x20000")
    k(f"s_mul_i32 s40, s{sCB}, 5120\ns_mul_i32 s41, s{sCB}, 160")
    k(f"v_mul_u32_u24 {v(vB)}, 640, {v(G)}\nv_bfe_u32 {v(tmp[0])}, {v(lane)}, 2, 2\nv_mul_u32_u24 {v(tmp[0])}, 160, {v(tmp[0])}\nv_add_u32 {v(vB)}, {v(vB)}, {v(tmp[0])}")
    k(f"v_and_b32 {v(tmp[0])}, 3, {v(lane)}\nv_lshl_add_u32 {v(vB)}, {v(tmp[0])}, 3, {v(vB)}\nv_add_u32 {v(vB)}, s{sL}, {v(vB)}")
    def treads(s):
        r = s % R; b = s & 1; out = []
        for j in range(5):
            out.append(f"ds_read_b64_tr_b16 {v(FB[b][j],2)}, {v(vB)} offset:{r*5120 + 32*j}")
            out.append(f"ds_read_b64_tr_b16 {v(FB[b][j]+2,2)}, {v(vB)} offset:{r*5120 + 32*j + 2560}")
        return out
    issued = min(R, NS) - 1
    k(f"s_waitcnt vmcnt({9*issued})")
    k.stamp(2)
    for x in treads(0): k(x)
    k("s_waitcnt lgkmcnt(0)")
    nres = 0
    for s in range(NS):
        rd = []
        if s + 1 < NS:
            k(f"s_waitcnt vmcnt({9*(issued-(s+1)) + nres})")
            rd = treads(s + 1)
        r = s % R; b = s & 1
        q = 0
        for i in range(4):
            for j in range(5):
                cin = v(acc[i][j], 4) if s > 0 else "0"
                k(f"v_mfma_f32_16x16x32_bf16 {v(acc[i][j],4)}, {v(FB[b][j],4)}, {v(FA[r][i],4)}, {cin}")
                if q < len(rd): k(rd[q])
                q += 1
        if s + R < NS:
            loads(s + R); issued = s + R
        if s + R == NS or (NS <= R and s == 0):
            for j in range(5):
                if mode == "oproj": k(f"buffer_load_dwordx2 {v(res+2*j,2)}, {v(rm)}, s[36:39], s41 offen offset:{32*j}")
                else: k(f"buffer_load_dwordx2 {v(res+2*j,2)}, {v(hb)}, s[32:35], s40 offen offset:{1024*j}" if j < 4 else
                        f"buffer_load_dwordx2 {v(res+2*j,2)}, {v(hb)}, s[32:35], s42 offen")
                if j == 3 and mode == "down": k("s_add_u32 s42, s40, 4096")
            nres = 5
        if rd: k("s_waitcnt lgkmcnt(0)")
    k.stamp(3)
    k.nop(8)
    k(f"v_lshlrev_b32 {v(tmp[0])}, 4, {v(lane)}\nv_add_u32 {v(tmp[1])}, s{sL}, {v(tmp[0])}")
    for i in range(4):
        for j in range(5):
            k(f"ds_write_b128 {v(tmp[1])}, {v(acc[i][j],4)} offset:{(i*5+j)*1024}")
    k("s_waitcnt lgkmcnt(0)\ns_barrier")
    k(f"s_mul_i32 s{sT0}, s{sW}, 5120\nv_add_u32 {v(tmp[1])}, s{sT0}, {v(tmp[0])}")
    P = FA[0][0]
    for src in range(4):
        if src * WST >= 65536 - 5120:
            if src == 2: k(f"v_add_u32 {v(tmp[1])}, {2*WST}, {v(tmp[1])}")
            base = (src - 2) * WST
        else: base = src * WST
        for j in range(5):
            k(f"ds_read_b128 {v(P+20*src+4*j,4)}, {v(tmp[1])} offset:{base + j*1024}")
    k("s_waitcnt lgkmcnt(0)")
    for r in range(20):
        k(f"v_add_f32 {v(P+r)}, {v(P+r)}, {v(P+20+r)}\nv_add_f32 {v(P+40+r)}, {v(P+40+r)}, {v(P+60+r)}")
    for r in range(20): k(f"v_add_f32 {v(P+r)}, {v(P+r)}, {v(P+40+r)}")
    k.stamp(4)
    k("s_waitcnt vmcnt(0)")
    U = P + 20
    for j in range(5):
        for q in range(2):
            x = res + 2 * j + q
            k(f"v_lshlrev_b32 {v(U)}, 16, {v(x)}\nv_and_b32 {v(U+1)}, 0xffff0000, {v(x)}")
            k(f"v_add_f32 {v(P+4*j+2*q)}, {v(P+4*j+2*q)}, {v(U)}\nv_add_f32 {v(P+4*j+2*q+1)}, {v(P+4*j+2*q+1)}, {v(U+1)}")
            k(f"v_cvt_pk_bf16_f32 {v(x)}, {v(P+4*j+2*q)}, {v(P+4*j+2*q+1)}")
    if mode == "oproj":
        for j in range(5):
            if j == 4: k("s_add_u32 s42, s40, 4096")
            k(f"buffer_store_dwordx2 {v(res+2*j,2)}, {v(hb)}, s[32:35], {'s40' if j < 4 else 's42'} offen" + (f" offset:{1024*j}" if j < 4 else ""))
        sm, sq = U + 2, U + 3
        k(f"v_mov_b32 {v(sm)}, 0\nv_mov_b32 {v(sq)}, 0")
        for x in range(10):
            k(f"v_lshlrev_b32 {v(U)}, 16, {v(res+x)}\nv_and_b32 {v(U+1)}, 0xffff0000, {v(res+x)}")
            k(f"v_add_f32 {v(sm)}, {v(sm)}, {v(U)}\nv_fmac_f32 {v(sq)}, {v(U)}, {v(U)}\nv_add_f32 {v(sm)}, {v(sm)}, {v(U+1)}\nv_fmac_f32 {v(sq)}, {v(U+1)}, {v(U+1)}")
        for sw in ("v_permlane16_swap_b32", "v_permlane32_swap_b32"):
            k(f"v_mov_b32 {v(U+4)}, {v(sm)}\nv_mov_b32 {v(U+5)}, {v(sm)}\nv_mov_b32 {v(U+6)}, {v(sq)}\nv_mov_b32 {v(U+7)}, {v(sq)}")
            k.nop(2)
            k(f"{sw} {v(U+4)}, {v(U+5)}\n{sw} {v(U+6)}, {v(U+7)}")
            k.nop(1)
            k(f"v_add_f32 {v(sm)}, {v(U+4)}, {v(U+5)}\nv_add_f32 {v(sq)}, {v(U+6)}, {v(U+7)}")
        k(f"s_add_u32 s44, s4, {WS_ST}\ns_addc_u32 s45, s5, 0\ns_and_b32 s45, s45, 0xffff\ns_mov_b32 s46, {ST_BYTES}\ns_mov_b32 s47, 0x20000")
        k(f"v_lshlrev_b32 {v(tmp[0])}, 6, {v(tok)}\ns_lshl_b32 s{sT0}, s{sCB}, 3")
        k("s_mov_b64 exec, 0xffff")
        k(f"buffer_store_dwordx2 {v(sm,2)}, {v(tmp[0])}, s[44:47], s{sT0} offen")
        k("s_mov_b64 exec, -1")
    else:
        for j in range(5):
            k(f"buffer_store_dwordx2 {v(res+2*j,2)}, {v(rm)}, s[36:39], s41 offen offset:{32*j}")
    k.stamp(5); k.stamp_real(7)
    k.prof_store(8, 4, WS_END + PROF_OFF(k), tmp[0], sW)
    k.tl_end(2)
    k.label(done)
    k("s_endpgm")
    return k, nv, (102 if (prof or tl is not None) else 56), 4 * WST

if __name__ == "__main__":
    for m in ("oproj", "down"):
        k, nv, ns, lds = gen_t3(m)
        print(m, "vgprs", nv, "hazards", check_kernel(k), "lines", len(k.lines), "lds", lds)
```

```python
import sys
from asm import *
from layout import *
import build as B, k_qkv, k_attn, k_t3, k_ffn
def make(prof=False, tl=False):
    T = (lambda i: i) if tl else (lambda i: None)
    k1, nv1, ns1 = k_qkv.gen_qkv(prof=prof, tl=T(0))
    k2, nv2, ns2 = k_attn.gen_attn(prof=prof, tl=T(1))
    k3, nv3, ns3, l3 = k_t3.gen_t3("oproj", prof=prof, tl=T(2))
    k4, nv4, ns4 = k_ffn.gen_ffn(prof=prof, tl=T(3))
    k5, nv5, ns5, l5 = k_t3.gen_t3("down", prof=prof, tl=T(4))
    ks = [(k1, nv1, ns1, 256, 512, k_qkv.LDS_QKV), (k2, nv2, ns2, 256, 512, 163840), (k3, nv3, ns3, 256, 256, l3),
          (k4, nv4, ns4, 256, 512, k_ffn.LDS_FFN), (k5, nv5, ns5, 256, 256, l5)]
    return ks
if __name__ == "__main__":
    out = B.assemble(make(tl=("--tl" in sys.argv)))
    path = sys.argv[1] if len(sys.argv) > 1 else "sequential_preLN__softmax_full_mha__glu_gated_swiglu__prompt.s"
    open(path, "w").write(out)
    print("wrote", path, len(out), "bytes")
```

```python
import sys
from asm import *
import build as B, main as M
def nullk(name="null_kernel"):
    k = Kernel(name); k("s_endpgm"); return k
ks = M.make()
n = nullk()
base = "cdna_kernels/"
open(base + "var_null5.s", "w").write(B.assemble(ks + [(n, 8, 16, 256, 256, 0)] * 5))
open(base + "var_dup1.s", "w").write(B.assemble([ks[0], ks[0]] + ks[1:]))
open(base + "var_dup2.s", "w").write(B.assemble([ks[0], ks[1], ks[1]] + ks[2:]))
open(base + "var_dup4.s", "w").write(B.assemble(ks[:4] + [ks[3], ks[4]]))
```

```python
import re

def v(b, n=1):
    return f"v{b}" if n == 1 else f"v[{b}:{b+n-1}]"
def a(b, n=1):
    return f"a{b}" if n == 1 else f"a[{b}:{b+n-1}]"
def s(b, n=1):
    return f"s{b}" if n == 1 else f"s[{b}:{b+n-1}]"

class Alloc:
    def __init__(self, start=0, limit=256):
        self.next = start; self.limit = limit; self.names = {}
    def __call__(self, name, n=1, align=1):
        b = (self.next + align - 1) // align * align
        self.next = b + n
        assert self.next <= self.limit, f"out of registers allocating {name}: {self.next}"
        self.names[name] = (b, n)
        return b

class Kernel:
    def __init__(self, name):
        self.name = name; self.lines = []; self.uid = 0
    def __call__(self, txt):
        for t in txt.split("\n"):
            t = t.strip()
            if t: self.lines.append(t if t.endswith(":") else "  " + t)
    def label(self, l): self.lines.append(f"{l}:")
    def L(self, base):
        self.uid += 1
        return f"L_{self.name}_{base}_{self.uid}"
    def c(self, txt): self.lines.append(f"  ; {txt}")
    def nop(self, n):
        while n > 0:
            k = min(n, 16); self(f"s_nop {k-1}"); n -= k
    prof = False
    def stamp(self, i):
        if self.prof and self.prof != "light":
            self(f"s_memtime s[{64+2*i}:{65+2*i}]")
    def stamp_real(self, i):
        if self.prof:
            self(f"s_memrealtime s[{64+2*i}:{65+2*i}]")
    def prof_store(self, n, ws_pair, off, vtmp, wave_sgpr):
        if not self.prof: return
        if self.prof == "light":
            self("s_waitcnt lgkmcnt(0)")
            self(f"s_add_u32 s96, s{ws_pair}, {off}\ns_addc_u32 s97, s{ws_pair+1}, 0\ns_and_b32 s97, s97, 0xffff\ns_mov_b32 s98, 0x40000\ns_mov_b32 s99, 0x20000")
            self(f"s_lshl_b32 s62, s2, 4\ns_add_u32 s62, s62, s{wave_sgpr}\ns_lshl_b32 s62, s62, 6")
            self("s_mov_b64 exec, 1")
            self(f"v_mov_b32 v{vtmp}, s76\nv_mov_b32 v{vtmp+1}, s78\nv_mov_b32 v{vtmp+2}, 24")
            self(f"buffer_store_dwordx2 v[{vtmp}:{vtmp+1}], v{vtmp+2}, s[96:99], s62 offen")
            return
        self("s_waitcnt lgkmcnt(0)")
        self(f"s_add_u32 s96, s{ws_pair}, {off}\ns_addc_u32 s97, s{ws_pair+1}, 0\ns_and_b32 s97, s97, 0xffff\ns_mov_b32 s98, 0x40000\ns_mov_b32 s99, 0x20000")
        self(f"s_lshl_b32 s62, s2, 4\ns_add_u32 s62, s62, s{wave_sgpr}\ns_lshl_b32 s62, s62, 6")
        self("s_mov_b64 exec, 1")
        for i in range(n):
            self(f"v_mov_b32 v{vtmp}, s{64+2*i}")
            self(f"v_mov_b32 v{vtmp+1}, {4*i}")
            self(f"buffer_store_dword v{vtmp}, v{vtmp+1}, s[96:99], s62 offen")
            self("s_waitcnt vmcnt(0)")
        self("s_mov_b64 exec, -1")
    tl = None
    def tl_start(self):
        if self.tl is None: return
        self("s_memrealtime s[90:91]\ns_load_dwordx2 s[92:93], s[0:1], 64")
    def tl_end(self, vt):
        if self.tl is None: return
        i = self.tl
        L = self.L("tlskip")
        self("s_waitcnt vmcnt(0) lgkmcnt(0)\ns_memrealtime s[94:95]\ns_waitcnt lgkmcnt(0)")
        self(f"s_cmp_lg_u32 s2, 0\ns_cbranch_scc1 {L}")
        self(f"v_readfirstlane_b32 s95, v0\ns_nop 4\ns_cmp_ge_u32 s95, 64\ns_cbranch_scc1 {L}")
        for tgt in (0, 4):
            d = (tgt - i) * 512
            if d >= 0: self(f"s_add_u32 s96, s92, {d}\ns_addc_u32 s97, s93, 0")
            else: self(f"s_sub_u32 s96, s92, {-d}\ns_subb_u32 s97, s93, 0")
            self("s_and_b32 s97, s97, 0xffff\ns_mov_b32 s98, 256\ns_mov_b32 s99, 0x20000\ns_mov_b64 exec, 1")
            self(f"v_mov_b32 v{vt}, s90\nv_mov_b32 v{vt+1}, s94\nv_mov_b32 v{vt+2}, {8*i}")
            self(f"buffer_store_dwordx2 v[{vt}:{vt+1}], v{vt+2}, s[96:99], 0 offen")
            self("s_waitcnt vmcnt(0)")
        self.label(L)
    def code_prefetch(self, target, vaddr, vdst, spair, swave, lane, stmp):
        Lh = self.L("here")
        self(f"s_getpc_b64 s[{spair}:{spair+1}]")
        self.label(Lh)
        self(f"s_add_u32 s{spair}, s{spair}, {target} - {Lh}\ns_addc_u32 s{spair+1}, s{spair+1}, 0")
        self(f"v_lshlrev_b32 v{vaddr}, 7, v{lane}\ns_lshl_b32 s{stmp}, s{swave}, 13\nv_add_u32 v{vaddr}, s{stmp}, v{vaddr}")
        self(f"v_min_u32 v{vaddr}, {target}_end - {target} - 4, v{vaddr}")
        self(f"global_load_dword v{vdst}, v{vaddr}, s[{spair}:{spair+1}]")
    def text(self, nvgpr, nsgpr, accum_offset=None, extra=()):
        nv = nvgpr
        ao = accum_offset if accum_offset is not None else (nv + 3) // 4 * 4
        head = f""".text
.globl {self.name}
.p2align 8
.type {self.name},@function
{self.name}:
"""
        tail = f"""
.section .rodata,"a"
.p2align 6
.amdhsa_kernel {self.name}
  .amdhsa_next_free_vgpr {nv}
  .amdhsa_next_free_sgpr {nsgpr}
  .amdhsa_accum_offset {ao}
  .amdhsa_group_segment_fixed_size 0
  .amdhsa_kernarg_size 80
  .amdhsa_user_sgpr_count 2
  .amdhsa_user_sgpr_kernarg_segment_ptr 1
  .amdhsa_system_sgpr_workgroup_id_x 1
  .amdhsa_float_denorm_mode_32 3
  .amdhsa_float_denorm_mode_16_64 3
.end_amdhsa_kernel
"""
        return head + "\n".join(self.lines) + f"\n{self.name}_end:\n" + tail

_reg_re = re.compile(r"\b([vas])(\d+)\b|\b([vas])\[(\d+):(\d+)\]")
def regs_of(op):
    out = []
    op = op.strip()
    m = re.fullmatch(r"-?\|?(?:abs\()?([vas])(\d+)\)?\|?", op)
    if m: return [(m.group(1), int(m.group(2)))]
    m = re.fullmatch(r"-?([vas])\[(\d+):(\d+)\]", op)
    if m: return [(m.group(1), i) for i in range(int(m.group(2)), int(m.group(3)) + 1)]
    if op in ("vcc", "vcc_lo", "vcc_hi"): return [("s", "vcc")]
    if op in ("exec", "exec_lo", "exec_hi"): return [("s", "exec")]
    if op == "m0": return [("s", "m0")]
    return []

TRANS = ("v_exp_f32", "v_log_f32", "v_rcp_f32", "v_rsq_f32", "v_sqrt_f32", "v_sin_f32", "v_cos_f32", "v_exp_f16", "v_rcp_iflag_f32")
def parse(line):
    t = line.split(";")[0].strip()
    if not t or t.endswith(":") or t.startswith("."): return None
    parts = t.split(None, 1)
    opc = parts[0]
    ops = []
    if len(parts) > 1:
        cur = ""; depth = 0
        for ch in parts[1]:
            if ch in "[(": depth += 1
            if ch in "])": depth -= 1
            if ch == "," and depth == 0: ops.append(cur.strip()); cur = ""
            else: cur += ch
        ops.append(cur.strip())
        last = ops[-1].split()
        ops[-1] = last[0]; mods = last[1:]
    else:
        mods = []
    return opc, ops, mods

def passes(opc):
    if "32x32x16" in opc or "32x32x8" in opc: return 8
    if "16x16x32" in opc or "16x16x16" in opc: return 4
    raise ValueError(opc)

class Ins:
    __slots__ = ("opc", "dst", "src", "srcc", "kind", "states", "line", "mods", "ops")

def decode(line):
    p = parse(line)
    if p is None: return None
    opc, ops, mods = p
    I = Ins(); I.opc = opc; I.line = line.strip(); I.mods = mods; I.ops = ops
    I.dst = []; I.src = []; I.srcc = []; I.states = 1
    base = opc.replace("_e32", "").replace("_e64", "").replace("_dpp", "").replace("_sdwa", "")
    if opc == "s_nop":
        I.kind = "nop"; I.states = int(ops[0], 0) + 1; return I
    if opc.startswith("v_mfma"):
        I.kind = "mfma"; I.dst = regs_of(ops[0]); I.src = regs_of(ops[1]) + regs_of(ops[2]); I.srcc = regs_of(ops[3]); return I
    if opc.startswith("v_"):
        I.kind = "valu"
        if base in TRANS: I.kind = "trans"
        if base.startswith("v_cmp"):
            I.dst = regs_of(ops[0]); I.src = sum((regs_of(o) for o in ops[1:]), [])
            if base.startswith("v_cmpx"): I.dst += [("s", "exec")]
        elif base in ("v_readfirstlane_b32", "v_readlane_b32"):
            I.dst = regs_of(ops[0]); I.src = sum((regs_of(o) for o in ops[1:]), []); I.kind = "readlane"
        elif base in ("v_permlane32_swap_b32", "v_permlane16_swap_b32", "v_swap_b32"):
            I.dst = regs_of(ops[0]) + regs_of(ops[1]); I.src = list(I.dst)
            I.kind = "permlane" if "permlane" in base else "valu"
        elif base in ("v_add_co_u32", "v_sub_co_u32", "v_addc_co_u32", "v_subb_co_u32", "v_div_scale_f32", "v_mad_u64_u32"):
            I.dst = regs_of(ops[0]) + regs_of(ops[1]); I.src = sum((regs_of(o) for o in ops[2:]), [])
        else:
            I.dst = regs_of(ops[0]); I.src = sum((regs_of(o) for o in ops[1:]), [])
            if base in ("v_fmac_f32", "v_dot2c_f32_bf16", "v_writelane_b32", "v_pk_fmac_f16") or "UNUSED_PRESERVE" in " ".join(mods):
                I.src += I.dst
            if base == "v_cndmask_b32" and len(ops) == 3: I.src += [("s", "vcc")]
        if "dpp" in opc or any(m.startswith(("quad_perm", "row_", "wave_")) for m in mods):
            I.kind = "dpp" if I.kind == "valu" else I.kind
        return I
    if opc.startswith("ds_"):
        I.kind = "ds"
        if opc.startswith(("ds_read", "ds_bpermute", "ds_permute", "ds_swizzle")):
            I.dst = regs_of(ops[0]); I.src = sum((regs_of(o) for o in ops[1:]), [])
        else:
            I.src = sum((regs_of(o) for o in ops), [])
        return I
    if opc.startswith(("buffer_", "global_")):
        I.kind = "vmem"
        islds = "lds" in mods or "load_lds" in opc
        if "load" in opc and not islds:
            I.dst = regs_of(ops[0]); I.src = sum((regs_of(o) for o in ops[1:]), [])
        else:
            I.src = sum((regs_of(o) for o in ops), [])
        if islds: I.src += [("s", "m0")]; I.kind = "vmem_lds"
        if "store" in opc: I.kind = "vmem_store"
        return I
    if opc.startswith("s_"):
        I.kind = "salu"
        if opc.startswith(("s_cmp", "s_cbranch", "s_branch", "s_waitcnt", "s_barrier", "s_endpgm", "s_setprio", "s_sleep", "s_bitcmp")):
            I.src = sum((regs_of(o) for o in ops), [])
        else:
            I.dst = regs_of(ops[0]) if ops else []; I.src = sum((regs_of(o) for o in ops[1:]), [])
            if "saveexec" in opc: I.dst += [("s", "exec")]
        return I
    raise ValueError("unknown instr: " + line)

def isv(r): return r[0] in ("v", "a")

def check_seq(ins, name, problems):
    n = len(ins)
    for i, I in enumerate(ins):
        dist = 0
        D = set(I.dst)
        for j in range(i + 1, min(n, i + 40)):
            J = ins[j]
            need = 0; why = ""
            Jsrc = set(J.src); Jc = set(J.srcc); Jd = set(J.dst)
            if I.kind == "mfma":
                p = passes(I.opc)
                tbl = {4: (6, 8, 8, 3), 8: (10, 12, 12, 7)}[p]
                if J.kind == "mfma":
                    if D & Jc:
                        exact = (list(I.dst) == list(J.srcc)) and passes(J.opc) == p
                        if not exact: need = max(need, tbl[0]); why = "mfma D->mfma C partial"
                    if D & Jsrc: need = max(need, tbl[1]); why = "mfma D->mfma A/B"
                else:
                    if D & (Jsrc | Jd) and J.kind in ("valu", "trans", "dpp", "permlane", "readlane", "vmem", "vmem_store", "vmem_lds", "ds"):
                        need = max(need, tbl[2]); why = "mfma D->valu/mem"
                    if set(I.srcc) & Jd and J.kind in ("valu", "trans", "dpp", "permlane") :
                        need = max(need, tbl[3]); why = why or "mfma C read -> valu write (WAR)"
            if I.kind in ("valu", "trans", "dpp", "permlane", "readlane"):
                Dv = {r for r in D if isv(r)}; Ds = {r for r in D if not isv(r)}
                if J.kind == "mfma" and Dv & (Jsrc | Jc): need = max(need, 2); why = "valu->mfma operand"
                if I.kind == "trans" and J.kind in ("valu", "dpp", "permlane", "readlane", "mfma") and Dv & (Jsrc | Jc) : need = max(need, 1); why = why or "trans->use"
                if J.kind == "dpp" and Dv & Jsrc: need = max(need, 2); why = "valu->dpp"
                if J.kind == "permlane" and Dv & Jsrc: need = max(need, 2); why = "valu->permlane"
                if J.kind == "readlane" and Dv & Jsrc: need = max(need, 1); why = "valu->readlane"
                if Ds:
                    if J.kind in ("vmem", "vmem_store", "vmem_lds") and Ds & Jsrc: need = max(need, 5); why = "valu sgpr write->vmem"
                    if J.kind in ("valu", "trans", "dpp", "permlane", "mfma") and Ds & Jsrc and ("s", "exec") not in Ds: need = max(need, 2); why = "valu sgpr write->valu read"
                    if J.kind == "readlane" and Ds & Jsrc: need = max(need, 4); why = "valu sgpr->readlane sel"
                    if ("s", "exec") in Ds and J.kind == "mfma": need = max(need, 4); why = "valu exec->mfma"
                    if ("s", "exec") in Ds and J.kind in ("dpp",): need = max(need, 5); why = "valu exec->dpp"
                    if ("s", "exec") in Ds and J.kind in ("readlane", "permlane"): need = max(need, 4); why = "valu exec->lane op"
            if I.kind == "salu" and ("s", "m0") in D and J.kind == "vmem_lds": need = max(need, 1); why = "m0->lds dma"
            if I.kind == "vmem_store" and ("x4" in I.opc or "x3" in I.opc):
                data = set(regs_of(I.ops[0])) if I.opc.startswith("buffer") else set(regs_of(I.ops[1]))
                if data & Jd:
                    need = max(need, 2 if J.kind in ("valu", "trans", "dpp", "permlane") else 1); why = "wide store data WAR"
            if need > dist:
                problems.append(f"[{name}] {why}: need {need} have {dist}\n    {I.line}\n    {J.line}")
            dist += J.states
            if dist >= 21: break

def check_kernel(k):
    items = []
    labels = {}
    for ln in k.lines:
        t = ln.split(";")[0].strip()
        if t.endswith(":"):
            labels[t[:-1]] = len(items); continue
        I = decode(ln)
        if I is not None: items.append(I)
    problems = []
    check_seq(items, k.name + ":linear", problems)
    for i, I in enumerate(items):
        if I.opc.startswith(("s_cbranch", "s_branch")):
            tgt = labels.get(I.ops[0])
            if tgt is None: raise ValueError("label? " + I.line)
            seq = items[max(0, i - 40): i + 1] + items[tgt: tgt + 40]
            check_seq(seq, k.name + f":branch@{I.line}", problems)
    seen = [];
    for p in problems:
        key = p.split("\n", 1)[1]
        if key not in seen: seen.append(key); print("HAZARD", p)
    return len(seen)
```

```python
from asm import *
from layout import *
def PROF_OFF(k): return PROF_IDX.get(k.name, 0) * 0x40000
import struct
def fbits(x): return struct.unpack("<I", struct.pack("<f", x))[0]

def gen_attn(name="attn_kernel", prof=False, tl=None, dbg=(), pf_code=None):
    k = Kernel(name); k.prof = prof; k.tl = tl
    V = Alloc(1, 256)
    lane = V("lane"); tmp = [V(f"t{i}") for i in range(8)]
    aK1 = V("aK1"); aK2 = V("aK2"); aV = V("aV"); vl16 = V("lane16")
    oad = [V(f"oad{j}") for j in range(3)]
    QA1 = V("QA1", 4, 4); QA2 = V("QA2", 4, 4); QB1 = V("QB1", 4, 4); QB2 = V("QB2", 4, 4)
    Kf = [(V(f"K{i}f1", 4, 4), V(f"K{i}f2", 4, 4)) for i in range(2)]
    Vf = [(V(f"V{i}f1", 4, 4), V(f"V{i}f2", 4, 4)) for i in range(2)]
    PA = V("PA", 8, 4); PB = V("PB", 8, 4)
    NA = V("negmA", 16, 4); NB = V("negmB", 16, 4)
    SA = V("SA", 16, 4); SB = V("SB", 16, 4)
    OA = V("OA", 16, 4); OB = V("OB", 16, 4)
    PKW = V("PKW", 16, 4); vpk = V("vpk"); vpf = V("vpf", 2, 2); vpc = V("vpc")
    nv = V.next
    sW, sG, sKH, sH, sQB = 16, 17, 18, 19, 20
    sT0, sT1, sT2, sT3 = 21, 22, 23, 28
    sVM = 24
    sIt, sNmax, sBar = 26, 27, 29
    sThr = 30; sT = 31; sLB = 32
    sDG, sDL = 66, 67
    sDG, sDL = 84, 85
    done = k.L("done")
    k(f"s_cmp_ge_u32 s2, 256\ns_cbranch_scc1 {done}")
    k.tl_start()
    k.stamp(0); k.stamp_real(6)
    k(f"s_load_dwordx2 s[4:5], s[0:1], {KA_WS}")
    k(f"s_load_dwordx2 s[34:35], s[0:1], {KA_WO}")
    k(f"s_load_dwordx4 s[80:83], s[0:1], {KA_W1}")
    k(f"s_load_dwordx2 s[36:37], s[0:1], {KA_W2}")
    k(f"v_and_b32 {v(lane)}, 63, v0")
    k(f"v_lshrrev_b32 {v(tmp[0])}, 6, v0")
    k(f"v_lshlrev_b32 {v(vl16)}, 4, {v(lane)}")
    k(f"v_readfirstlane_b32 s{sW}, {v(tmp[0])}")
    k(f"s_and_b32 s{sT0}, s2, 7\ns_lshl_b32 s{sT0}, s{sT0}, 2\ns_lshr_b32 s{sT1}, s2, 6\ns_add_u32 s{sH}, s{sT0}, s{sT1}")
    k(f"s_lshr_b32 s{sT1}, s2, 3\ns_and_b32 s{sQB}, s{sT1}, 7")
    k(f"s_and_b32 s{sG}, s{sW}, 3\ns_lshr_b32 s{sKH}, s{sW}, 2")
    k(f"s_mul_i32 s33, s{sH}, {HEAD_STRIDE}")
    k(f"s_mul_i32 s{sT0}, s{sQB}, {BLK_STRIDE}")
    k(f"s_lshl_b32 s{sT1}, s{sG}, 11\ns_add_u32 s{sT1}, s{sT1}, s{sT0}\ns_add_u32 s38, s{sT1}, {Q1OFF}")
    k(f"s_lshl_b32 s{sT2}, s{sG}, 9\ns_add_u32 s{sT2}, s{sT2}, s{sT0}\ns_add_u32 s39, s{sT2}, {Q2OFF}")
    k(f"s_lshl_b32 s{sT0}, s{sKH}, 2")
    k(f"s_mul_i32 s{sDG}, s{sT0}, {BLK_STRIDE}\ns_mul_i32 s{sT2}, s{sG}, 5120\ns_add_u32 s{sDG}, s{sDG}, s{sT2}")
    k(f"s_mul_i32 s{sLB}, s{sT0}, {LBLK}\ns_add_u32 s{sDL}, s{sLB}, s{sT2}")
    for q in (QA2, QB2):
        k(f"v_pk_mov_b32 {v(q,2)}, 0, 0\nv_pk_mov_b32 {v(q+2,2)}, 0, 0")
    k(f"v_and_b32 {v(tmp[0])}, 31, {v(lane)}\nv_lshlrev_b32 {v(tmp[1])}, 3, {v(tmp[0])}")
    k("s_waitcnt lgkmcnt(0)")
    k(f"s_add_u32 s8, s4, s33\ns_addc_u32 s9, s5, 0\ns_and_b32 s9, s9, 0xffff\ns_mov_b32 s10, {HEAD_STRIDE}\ns_mov_b32 s11, 0x20000")
    k(f"buffer_load_dwordx4 {v(QA1,4)}, {v(vl16)}, s[8:11], s38 offen")
    k(f"buffer_load_dwordx4 {v(QB1,4)}, {v(vl16)}, s[8:11], s38 offen offset:1024")
    k("s_mov_b32 exec_hi, 0")
    k(f"buffer_load_dwordx2 {v(QA2,2)}, {v(tmp[1])}, s[8:11], s39 offen")
    k(f"buffer_load_dwordx2 {v(QB2,2)}, {v(tmp[1])}, s[8:11], s39 offen offset:256")
    k("s_mov_b32 exec_hi, -1")
    def dma_ops():
        ops = []
        for i in range(4):
            pre = f"s_mov_b32 m0, s{sDL}\ns_add_u32 s{sT3}, s{sDG}, 4096\n" if i == 0 else ""
            ops.append(pre + f"buffer_load_dwordx4 {v(vl16)}, s[8:11], s{sDG} offen offset:{i*1024} lds")
        ops.append(f"s_add_u32 m0, s{sDL}, 4096\ns_add_u32 s{sDG}, s{sDG}, {BLK_STRIDE}\nbuffer_load_dwordx4 {v(vl16)}, s[8:11], s{sT3} offen lds\ns_add_u32 s{sDL}, s{sDL}, {LBLK}")
        return ops
    for o in dma_ops(): k(o)
    k.stamp(1)
    k(f"s_add_u32 s12, s4, {WS_O}\ns_addc_u32 s13, s5, 0\ns_and_b32 s13, s13, 0xffff\ns_mov_b32 s14, {O_BYTES}\ns_mov_b32 s15, 0x20000")
    k(f"v_add_u32 {v(aK1)}, s{sLB}, {v(vl16)}")
    k(f"s_add_u32 s{sT0}, s{sLB}, {K2OFF}\nv_add_u32 {v(aK2)}, s{sT0}, {v(tmp[1])}")
    k(f"v_lshrrev_b32 {v(tmp[2])}, 5, {v(lane)}")
    k(f"v_mul_u32_u24 {v(tmp[3])}, 320, {v(tmp[2])}")
    k(f"v_lshl_add_u32 {v(tmp[3])}, {v(tmp[0])}, 4, {v(tmp[3])}")
    k(f"s_add_u32 s{sT0}, s{sLB}, {VOFF}\nv_add_u32 {v(aV)}, s{sT0}, {v(tmp[3])}")
    k(f"s_mov_b32 s{sVM}, 0x000fffff\ns_mov_b32 s{sVM+1}, 0x000fffff")
    k(f"s_mov_b32 s{sThr}, 0x5f800000")
    k(f"s_mov_b32 s{sNmax}, 1")
    for b in range(2): k(f"v_pk_mov_b32 {v(Kf[b][1]+2,2)}, 0, 0")
    k(f"s_lshl_b32 s{sT0}, s{sQB}, 8\ns_lshl_b32 s{sT1}, s{sG}, 6\ns_add_u32 s{sT0}, s{sT0}, s{sT1}\ns_lshl_b32 s{sT1}, s{sKH}, 5\ns_add_u32 s{sT0}, s{sT0}, s{sT1}")
    k(f"v_add_u32 {v(tmp[4])}, s{sT0}, {v(tmp[0])}")
    k(f"v_lshrrev_b32 {v(tmp[5])}, 4, {v(tmp[4])}\nv_mul_u32_u24 {v(tmp[5])}, 20480, {v(tmp[5])}")
    k(f"v_and_b32 {v(tmp[4])}, 15, {v(tmp[4])}\nv_lshl_add_u32 {v(tmp[5])}, {v(tmp[4])}, 4, {v(tmp[5])}")
    k(f"s_mul_i32 s{sT0}, s{sH}, 5\nv_add_u32 {v(tmp[6])}, s{sT0}, {v(tmp[2])}")
    for j in range(3):
        k(f"v_add_u32 {v(tmp[7])}, {2*j}, {v(tmp[6])}")
        k(f"v_lshrrev_b32 {v(tmp[4])}, 3, {v(tmp[7])}\nv_lshl_add_u32 {v(oad[j])}, {v(tmp[4])}, 10, {v(tmp[5])}")
        k(f"v_and_b32 {v(tmp[4])}, 3, {v(tmp[7])}\nv_lshl_add_u32 {v(oad[j])}, {v(tmp[4])}, 8, {v(oad[j])}")
        k(f"v_bfe_u32 {v(tmp[4])}, {v(tmp[7])}, 2, 1\nv_lshl_add_u32 {v(oad[j])}, {v(tmp[4])}, 3, {v(oad[j])}")
    k(f"s_mov_b32 s40, s34\ns_and_b32 s41, s35, 0xffff\ns_mov_b32 s42, {D*D*2}\ns_mov_b32 s43, 0x20000")
    k(f"s_mov_b32 s44, s36\ns_and_b32 s45, s37, 0xffff\ns_mov_b32 s46, {F*D*2}\ns_mov_b32 s47, 0x20000")
    k(f"s_add_u32 s48, s4, {WS_WOP}\ns_addc_u32 s49, s5, 0\ns_and_b32 s49, s49, 0xffff\ns_mov_b32 s50, {WOP_BYTES + W2P_BYTES}\ns_mov_b32 s51, 0x20000")
    k(f"v_lshrrev_b32 {v(vpk)}, 4, {v(lane)}\nv_mul_u32_u24 {v(vpk)}, 5120, {v(vpk)}\nv_and_b32 {v(tmp[4])}, 15, {v(lane)}\nv_lshl_add_u32 {v(vpk)}, {v(tmp[4])}, 1, {v(vpk)}")
    k(f"s_lshl_b32 s52, s2, 3\ns_add_u32 s52, s52, s{sW}")
    k(f"v_lshrrev_b32 {v(vpf)}, 3, {v(lane)}\nv_mul_u32_u24 {v(vpf)}, {F*2}, {v(vpf)}\nv_and_b32 {v(vpf+1)}, 7, {v(lane)}\nv_lshl_add_u32 {v(vpf)}, {v(vpf+1)}, 7, {v(vpf)}")
    k(f"v_min_u32 {v(vpf)}, {4*F*2 + 7*128}, {v(vpf)}")
    if pf_code:
        k(f"v_lshlrev_b32 {v(vpc)}, 7, {v(lane)}\ns_lshl_b32 s{sT0}, s{sW}, 13\nv_add_u32 {v(vpc)}, s{sT0}, {v(vpc)}\nv_min_u32 {v(vpc)}, {pf_code}_end - {pf_code} - 4, {v(vpc)}")
    def init_consts():
        ones = tmp[7]
        k(f"v_mov_b32 {v(tmp[6])}, 0x3f803f80\nv_mov_b32 {v(tmp[7])}, 0x3f803f80") if False else None
        if 'vones' in dbg:
            k(f"s_mov_b32 s86, 0x3f803f80\ns_mov_b32 s87, 0x3f803f80")
            for b in range(2):
                for f in range(2):
                    k(f"v_pk_mov_b32 {v(Vf[b][f],2)}, s[86:87], s[86:87]\nv_pk_mov_b32 {v(Vf[b][f]+2,2)}, s[86:87], s[86:87]")
        else:
            k(f"v_and_b32 {v(tmp[6])}, 31, {v(lane)}\nv_cmp_eq_u32 vcc, 20, {v(tmp[6])}\nv_mov_b32 {v(tmp[7])}, 0x3f803f80\nv_mov_b32 {v(tmp[6])}, 0")
            k(f"v_cndmask_b32 {v(tmp[6])}, {v(tmp[6])}, {v(tmp[7])}, vcc\nv_mov_b32 {v(tmp[7])}, {v(tmp[6])}") if False else None
            k(f"s_nop 0\nv_cndmask_b32 {v(tmp[6])}, {v(tmp[6])}, {v(tmp[7])}, vcc")
            k(f"v_mov_b32 {v(tmp[7])}, {v(tmp[6])}")
            for b in range(2):
                for f in range(2):
                    k(f"v_pk_mov_b32 {v(Vf[b][f],2)}, {v(tmp[6],2)}, {v(tmp[6],2)}\nv_pk_mov_b32 {v(Vf[b][f]+2,2)}, {v(tmp[6],2)}, {v(tmp[6],2)}")
        for i in range(0, 12, 2): k(f"v_pk_mov_b32 {v(OA+i,2)}, 0, 0\nv_pk_mov_b32 {v(OB+i,2)}, 0, 0")
        k(f"v_pk_mov_b32 {v(PB+4,2)}, 0, 0\nv_pk_mov_b32 {v(PB+6,2)}, 0, 0")
    init_consts()
    k("s_waitcnt vmcnt(0)")
    k("s_barrier")
    k.stamp(2)
    Lmax = k.L("max"); Lmloop = k.L("mloop")
    k.label(Lmax)
    mA, mB = tmp[4], tmp[5]
    k(f"v_mov_b32 {v(mA)}, 0xff800000\nv_mov_b32 {v(mB)}, 0xff800000")
    k(f"s_mov_b32 s{sT}, 0")
    k.label(Lmloop)
    k(f"s_lshr_b32 s{sT0}, s{sT}, 3\ns_mul_i32 s{sT0}, s{sT0}, {LBLK}\ns_and_b32 s{sT1}, s{sT}, 7")
    k(f"s_lshl_b32 s{sT2}, s{sT1}, 10\ns_add_u32 s{sT2}, s{sT2}, s{sT0}")
    k(f"s_lshl_b32 s{sT3}, s{sT1}, 8\ns_add_u32 s{sT3}, s{sT3}, s{sT0}")
    k(f"v_add_u32 {v(tmp[6])}, s{sT2}, {v(aK1)}\nv_add_u32 {v(tmp[7])}, s{sT3}, {v(aK2)}")
    k(f"ds_read_b128 {v(Kf[1][0],4)}, {v(tmp[6])}\nds_read_b64 {v(Kf[1][1],2)}, {v(tmp[7])}")
    k(f"ds_read_b128 {v(Kf[0][0],4)}, {v(aK1)}\nds_read_b64 {v(Kf[0][1],2)}, {v(aK2)}")
    k(f"s_mov_b64 exec, s[{sVM}:{sVM+1}]")
    k(f"ds_read_b128 {v(Vf[0][0],4)}, {v(aV)}\nds_read_b128 {v(Vf[0][1],4)}, {v(aV)} offset:640")
    k("s_mov_b64 exec, -1")
    k("s_waitcnt lgkmcnt(4)")
    k(f"v_mfma_f32_32x32x16_bf16 {v(SA,16)}, {v(Kf[1][0],4)}, {v(QA1,4)}, 0")
    k(f"v_mfma_f32_32x32x16_bf16 {v(SB,16)}, {v(Kf[1][0],4)}, {v(QB1,4)}, 0")
    k(f"v_mfma_f32_32x32x16_bf16 {v(SA,16)}, {v(Kf[1][1],4)}, {v(QA2,4)}, {v(SA,16)}")
    k(f"v_mfma_f32_32x32x16_bf16 {v(SB,16)}, {v(Kf[1][1],4)}, {v(QB2,4)}, {v(SB,16)}")
    k.nop(11)
    for (m, Sx) in ((mA, SA), (mB, SB)):
        for i in range(8):
            k(f"v_max3_f32 {v(m)}, {v(Sx+2*i)}, {v(Sx+2*i+1)}, {v(m)}")
    k(f"s_add_u32 s{sT}, s{sT}, 1\ns_cmp_lt_u32 s{sT}, s{sNmax}\ns_cbranch_scc1 {Lmloop}")
    k(f"v_mov_b32 {v(tmp[6])}, {v(mA)}\nv_mov_b32 {v(tmp[7])}, {v(mA)}\nv_mov_b32 {v(tmp[2])}, {v(mB)}\nv_mov_b32 {v(tmp[3])}, {v(mB)}")
    k.nop(1)
    k(f"v_permlane32_swap_b32 {v(tmp[6])}, {v(tmp[7])}\nv_permlane32_swap_b32 {v(tmp[2])}, {v(tmp[3])}")
    k.nop(1)
    k(f"v_max_f32 {v(tmp[6])}, {v(tmp[6])}, {v(tmp[7])}\nv_max_f32 {v(tmp[2])}, {v(tmp[2])}, {v(tmp[3])}")
    k(f"v_sub_f32 {v(NA)}, 0, {v(tmp[6])}\nv_sub_f32 {v(NA+1)}, 0, {v(tmp[6])}\nv_sub_f32 {v(NB)}, 0, {v(tmp[2])}\nv_sub_f32 {v(NB+1)}, 0, {v(tmp[2])}")
    for i in range(2, 16, 2): k(f"v_pk_mov_b32 {v(NA+i,2)}, {v(NA,2)}, {v(NA,2)}")
    k("s_waitcnt lgkmcnt(0)")
    k.nop(1)
    k(f"v_mfma_f32_32x32x16_bf16 {v(SA,16)}, {v(Kf[0][0],4)}, {v(QA1,4)}, {v(NA,16)}")
    k(f"v_mfma_f32_32x32x16_bf16 {v(SA,16)}, {v(Kf[0][1],4)}, {v(QA2,4)}, {v(SA,16)}")
    for i in range(2, 16, 2): k(f"v_pk_mov_b32 {v(NB+i,2)}, {v(NB,2)}, {v(NB,2)}")
    k(f"s_mov_b32 s{sIt}, 0")
    k.nop(3)
    k.stamp(3)
    M = lambda d, x, y, c: f"v_mfma_f32_32x32x16_bf16 {v(d,16)}, {v(x,4)}, {v(y,4)}, {v(c,16)}"
    def phase(Sx, Px, mf, pre, side):
        e = lambda i: f"v_exp_f32 {v(Sx+i)}, {v(Sx+i)}"
        c = lambda j: f"v_cvt_pk_bf16_f32 {v(Px+j)}, {v(Sx+2*j)}, {v(Sx+2*j+1)}"
        seq = [mf[0]] + pre + [e(0), e(1), e(2), e(3), c(0), mf[1], c(1), e(4), e(5), e(6), e(7), c(2),
               mf[2], c(3), e(8), e(9), e(10), e(11), c(4), mf[3], c(5), e(12), e(13), e(14), "s_waitcnt lgkmcnt(0)", e(15), c(6), c(7)]
        side = list(side)
        for x in seq:
            k(x)
            if side and x.startswith("v_exp") :
                k(side.pop(0))
        assert not side
    def pack_ops(slot):
        o = []
        pre = f"s_add_u32 s53, s52, {2048*slot}\ns_lshl_b32 s{54+slot}, s53, 10\n"
        if slot == 1: pre += f"s_cmp_ge_u32 s53, 2960\ns_cselect_b32 s55, -1, s55\ns_cselect_b32 s53, s52, s53\n"
        pre += f"s_cmp_lt_u32 s53, 800\ns_cselect_b32 s56, s40, s44\ns_cselect_b32 s57, s41, s45\ns_cselect_b32 s58, s42, s46\ns_mov_b32 s59, 0x20000"
        o.append(pre)
        o.append(f"s_cselect_b32 s60, 0, 800\ns_mov_b32 s61, 270\ns_cselect_b32 s61, 100, s61\ns_mov_b32 s62, {(1<<20)//270+1}\ns_cselect_b32 s62, {(1<<20)//100+1}, s62\ns_sub_u32 s53, s53, s60")
        o.append(f"s_mul_i32 s63, s53, s62\ns_lshr_b32 s63, s63, 20\ns_mul_i32 s60, s63, s61\ns_sub_u32 s53, s53, s60\ns_mul_i32 s60, s53, 52429\ns_lshr_b32 s60, s60, 18")
        o.append(f"s_mul_i32 s61, s60, 5\ns_sub_u32 s53, s53, s61\ns_mul_i32 s60, s60, {32*1280}\ns_mul_i32 s63, s63, 160\ns_lshl_b32 s53, s53, 5\ns_add_u32 s60, s60, s63\ns_add_u32 s60, s60, s53\ns_add_u32 s61, s60, {16*1280}")
        for sk in range(8):
            op = "buffer_load_short_d16" if sk % 2 == 0 else "buffer_load_short_d16_hi"
            o.append(f"{op} {v(PKW+8*slot+sk//2+4*(sk%2))}, {v(vpk)}, s[56:59], s{60 if sk < 4 else 61} offen offset:{(sk & 3)*1280}")
        return o
    def w13_prefetch():
        t = f"s_and_b32 s{sT0}, s2, 3\ns_mul_i32 s{sT0}, s{sT0}, 27\ns_lshr_b32 s{sT0}, s{sT0}, 2\ns_lshl_b32 s{sT0}, s{sT0}, 7\n"
        t += f"s_lshr_b32 s{sT1}, s2, 3\ns_lshl_b32 s{sT1}, s{sT1}, 3\ns_add_u32 s{sT1}, s{sT1}, s{sW}\n"
        t += f"s_and_b32 s{sT2}, s{sT1}, 127\ns_mul_i32 s{sT2}, s{sT2}, {5*F*2}\ns_add_u32 s{sT0}, s{sT0}, s{sT2}\n"
        t += f"s_cmp_ge_u32 s{sT1}, 128\ns_cselect_b32 s88, s82, s80\ns_cselect_b32 s89, s83, s81\ns_and_b32 s89, s89, 0xffff\ns_mov_b32 s90, {D*F*2}\ns_mov_b32 s91, 0x20000\n"
        t += f"buffer_load_dword {v(vpf+1)}, {v(vpf)}, s[88:91], s{sT0} offen"
        return [t]
    def code_prefetch():
        Lh = k.L("here")
        t = f"s_getpc_b64 s[88:89]\n{Lh}:\ns_add_u32 s88, s88, {pf_code} - {Lh}\ns_addc_u32 s89, s89, 0\nglobal_load_dword {v(vpf+1)}, {v(vpc)}, s[88:89]"
        return [t]
    def tile(tt, sideA=(), sideB=(), pre_hook=None):
        cur = tt & 1; nxt = cur ^ 1
        n1 = tt + 1
        koff1 = n1 * 1024 if n1 < 8 else LBLK
        koff2 = n1 * 256 if n1 < 8 else LBLK
        voff = n1 * 1280 if n1 < 8 else LBLK
        if pre_hook: k(pre_hook)
        pre = [f"ds_read_b128 {v(Kf[nxt][0],4)}, {v(aK1)} offset:{koff1}", f"ds_read_b64 {v(Kf[nxt][1],2)}, {v(aK2)} offset:{koff2}"]
        phase(SA, PA, [M(SB, Kf[cur][0], QB1, NB), M(OB, Vf[nxt][1], PB+4, OB), M(SB, Kf[cur][1], QB2, SB), M(OA, Vf[cur][0], PA, OA)], pre, sideA)
        pre = [f"s_mov_b64 exec, s[{sVM}:{sVM+1}]", f"ds_read_b128 {v(Vf[nxt][0],4)}, {v(aV)} offset:{voff}",
               f"ds_read_b128 {v(Vf[nxt][1],4)}, {v(aV)} offset:{voff+640}", "s_mov_b64 exec, -1"]
        phase(SB, PB, [M(SA, Kf[nxt][0], QA1, NA), M(OA, Vf[cur][1], PA+4, OA), M(SA, Kf[nxt][1], QA2, SA), M(OB, Vf[cur][0], PB, OB)], pre, sideB)
    def iter_end():
        k(f"v_add_u32 {v(aK1)}, {LBLK}, {v(aK1)}\nv_add_u32 {v(aK2)}, {LBLK}, {v(aK2)}\nv_add_u32 {v(aV)}, {LBLK}, {v(aV)}")
    Lloop = k.L("loop"); Lafter = k.L("after")
    if 'solo' in dbg:
        Lgo = k.L("go")
        k(f"s_cmp_eq_u32 s{sKH}, 0\ns_cbranch_scc1 {Lgo}")
        for _ in range(3):
            for o in dma_ops(): k(o)
        k("s_waitcnt vmcnt(0)\ns_barrier\ns_mov_b32 s55, -1\ns_mov_b32 s54, 0")
        k(f"s_branch {Lafter}")
        k.label(Lgo)
    if 'prio1' in dbg:
        Lp1 = k.L("p1")
        k(f"s_cmp_eq_u32 s{sKH}, 0\ns_cbranch_scc1 {Lp1}\ns_setprio 1")
        k.label(Lp1)
    k(f"s_cmp_lg_u32 s{sNmax}, 1\ns_cbranch_scc1 {Lloop}")
    side = dma_ops() + dma_ops() + dma_ops()
    ny = 0
    later = []
    if 'nopack' not in dbg: later += pack_ops(0) + pack_ops(1); ny += 16
    if 'nopf' not in dbg: later += w13_prefetch(); ny += 1
    if pf_code: later += code_prefetch(); ny += 1
    for tt in range(8):
        if tt < 3: tile(tt, sideA=side[5*tt:5*tt+5])
        elif tt < 7:
            n = (len(later) + (6 - tt)) // (7 - tt)
            mine, later = later[:n], later[n:]
            tile(tt, sideA=mine[:(len(mine)+1)//2], sideB=mine[(len(mine)+1)//2:])
        else: tile(tt, pre_hook=f"s_waitcnt vmcnt({ny})\ns_barrier")
    assert not later
    iter_end()
    k(f"s_mov_b32 s{sIt}, 1")
    k.lines.append(".p2align 6")
    k.label(Lloop)
    for tt in range(8): tile(tt)
    iter_end()
    k(f"s_add_u32 s{sIt}, s{sIt}, 1\ns_cmp_lt_u32 s{sIt}, 4\ns_cbranch_scc1 {Lloop}")
    k(M(OB, Vf[1][1], PB+4, OB))
    k.label(Lafter)
    k("s_waitcnt lgkmcnt(0)")
    if 'nopack' not in dbg:
        Lnp = k.L("nopk")
        k(f"s_cmp_lg_u32 s{sNmax}, 1\ns_cbranch_scc1 {Lnp}")
        k("s_waitcnt vmcnt(0)\ns_mov_b32 s53, 0x07060100")
        for slot in range(2):
            Lp = k.L("pks")
            if slot == 1: k(f"s_cmp_eq_u32 s55, -1\ns_cbranch_scc1 {Lp}")
            for q in range(4): k(f"v_perm_b32 {v(PKW+8*slot+q)}, {v(PKW+8*slot+4+q)}, {v(PKW+8*slot+q)}, s53")
            k(f"buffer_store_dwordx4 {v(PKW+8*slot,4)}, {v(vl16)}, s[48:51], s{54+slot} offen")
            k.label(Lp)
        k.label(Lnp)
    k.nop(14)
    k.stamp(4)
    Lok = k.L("ok")
    k(f"v_cmp_ngt_f32 vcc, s{sThr}, {v(OA+8)}")
    k(f"v_cmp_ngt_f32 s[86:87], s{sThr}, {v(OB+8)}")
    k.nop(4)
    k(f"s_or_b32 s{sT0}, s87, vcc_hi")
    k(f"s_cmp_eq_u32 s{sT0}, 0\ns_cbranch_scc1 {Lok}")
    k(f"s_cmp_lg_u32 s{sNmax}, 1\ns_cbranch_scc1 {Lok}")
    k(f"s_mov_b32 s{sNmax}, 32")
    k(f"v_subrev_u32 {v(aK1)}, {4*LBLK}, {v(aK1)}\nv_subrev_u32 {v(aK2)}, {4*LBLK}, {v(aK2)}\nv_subrev_u32 {v(aV)}, {4*LBLK}, {v(aV)}")
    init_consts()
    k(f"s_branch {Lmax}")
    k.label(Lok)
    Lns = k.L("noswap")
    k(f"s_cmp_eq_u32 s{sKH}, 0\ns_cbranch_scc1 {Lns}")
    for i in range(12): k(f"v_swap_b32 {v(OA+i)}, {v(OB+i)}")
    k(f"v_swap_b32 {v(NA)}, {v(NB)}")
    k.label(Lns)
    k(f"s_lshl_b32 s{sT0}, s{sW}, 12\ns_xor_b32 s{sT1}, s{sW}, 4\ns_lshl_b32 s{sT1}, s{sT1}, 12")
    k(f"v_add_u32 {v(tmp[0])}, s{sT0}, {v(vl16)}\nv_add_u32 {v(tmp[1])}, s{sT1}, {v(vl16)}")
    k("s_barrier")
    for j in range(3): k(f"ds_write_b128 {v(tmp[0])}, {v(OB+4*j,4)} offset:{j*1024}")
    k(f"ds_write_b32 {v(tmp[0])}, {v(NB)} offset:3072")
    k("s_waitcnt lgkmcnt(0)\ns_barrier")
    for j in range(3): k(f"ds_read_b128 {v(OB+4*j,4)}, {v(tmp[1])} offset:{j*1024}")
    k(f"ds_read_b32 {v(NB)}, {v(tmp[1])} offset:3072")
    k("s_waitcnt lgkmcnt(0)")
    f1, f2, nm = SA, SA + 1, SA + 2
    k(f"v_min_f32 {v(nm)}, {v(NA)}, {v(NB)}")
    k(f"v_sub_f32 {v(f1)}, {v(nm)}, {v(NA)}\nv_sub_f32 {v(f2)}, {v(nm)}, {v(NB)}")
    k(f"v_exp_f32 {v(f1)}, {v(f1)}\nv_exp_f32 {v(f2)}, {v(f2)}")
    k.nop(1)
    for i in range(12): k(f"v_mul_f32 {v(OA+i)}, {v(OA+i)}, {v(f1)}")
    for i in range(12): k(f"v_fmac_f32 {v(OA+i)}, {v(OB+i)}, {v(f2)}")
    t1, t2 = SA + 4, SA + 5
    k(f"v_mov_b32 {v(t1)}, {v(OA+8)}\nv_mov_b32 {v(t2)}, {v(OA+8)}")
    k.nop(2)
    k(f"v_permlane32_swap_b32 {v(t1)}, {v(t2)}")
    k.nop(1)
    k(f"v_rcp_f32 {v(t2)}, {v(t2)}")
    k.nop(1)
    for i in range(12): k(f"v_mul_f32 {v(OA+i)}, {v(OA+i)}, {v(t2)}")
    for j in range(6): k(f"v_cvt_pk_bf16_f32 {v(PA+j)}, {v(OA+2*j)}, {v(OA+2*j+1)}")
    k(f"buffer_store_dwordx2 {v(PA,2)}, {v(oad[0])}, s[12:15], 0 offen")
    k(f"buffer_store_dwordx2 {v(PA+2,2)}, {v(oad[1])}, s[12:15], 0 offen")
    k("s_mov_b32 exec_hi, 0")
    k(f"buffer_store_dwordx2 {v(PA+4,2)}, {v(oad[2])}, s[12:15], 0 offen")
    k("s_mov_b64 exec, -1")
    k.stamp(5); k.stamp_real(7)
    k.prof_store(8, 4, WS_END + PROF_OFF(k), tmp[0], sW)
    k.tl_end(2)
    k.label(done)
    k("s_endpgm")
    return k, nv, 102

if __name__ == "__main__":
    k, nv, ns = gen_attn()
    print("vgprs", nv, "hazards", check_kernel(k))
```

```python
from asm import *
from layout import *
def PROF_OFF(k): return {'qkv_kernel':0,'attn_kernel':1,'oproj_kernel':2,'ffn_kernel':3,'down_kernel':4}.get(k.name, 0) * 0x40000
import struct, math
def fbits(x): return struct.unpack("<I", struct.pack("<f", x))[0]

NCH = 10
LDS_FFN = 163840
def gen_ffn(name="ffn_kernel", prof=False, tl=None, PF=3, dbg=(), pf_code=None):
    k = Kernel(name); k.prof = prof; k.tl = tl
    V = Alloc(1, 256)
    lane = V("lane"); tmp = [V(f"t{i}") for i in range(8)]
    dB = V("dB"); vA = V("vA")
    vB = [[V(f"vB{h}{c}") for c in range(2)] for h in range(3)]
    acc = [V(f"acc{i}", 16, 4) for i in range(4)]
    NRA = PF + 1
    FA = [[V(f"FA{r}{q}", 4, 4) for q in range(4)] for r in range(NRA)]
    FB = [[V(f"FB{b}{i}", 4, 4) for i in range(4)] for b in range(2)]
    EX = V("EX", 48, 4)
    assert NRA == 4
    CS0 = FA[2][0]
    CS1 = FA[0][0]
    nv = V.next
    sW, sRB, sCB = 16, 17, 18
    sT0, sT1, sT2, sT3 = 20, 21, 22, 23
    sA, sB, sL = 24, 25, 26
    done = k.L("done")
    k(f"s_cmp_ge_u32 s2, 216\ns_cbranch_scc1 {done}") if False else None
    k(f"s_cmp_ge_u32 s2, 256\ns_cbranch_scc1 {done}")
    k.tl_start()
    k.stamp(0); k.stamp_real(6)
    k(f"s_load_dwordx2 s[4:5], s[0:1], {KA_WS}")
    k(f"s_load_dwordx4 s[28:31], s[0:1], {KA_W1}")
    k(f"s_and_b32 s{sT0}, s2, 7\ns_lshr_b32 s{sT1}, s2, 3")
    Lidle = k.L("idle")
    k(f"s_cmp_ge_u32 s{sT1}, 27\ns_cbranch_scc1 {Lidle}")
    k(f"s_and_b32 s{sT2}, s{sT0}, 3\ns_mul_i32 s{sT2}, s{sT2}, 27\ns_add_u32 s{sT2}, s{sT2}, s{sT1}")
    k(f"s_lshr_b32 s{sCB}, s{sT2}, 2\ns_and_b32 s{sT2}, s{sT2}, 3\ns_lshr_b32 s{sT3}, s{sT0}, 2\ns_lshl_b32 s{sT3}, s{sT3}, 2\ns_add_u32 s{sRB}, s{sT3}, s{sT2}")
    k(f"v_and_b32 {v(lane)}, 63, v0\nv_lshrrev_b32 {v(tmp[0])}, 6, v0")
    k.nop(1)
    k(f"v_readfirstlane_b32 s{sW}, {v(tmp[0])}")
    k(f"v_lshrrev_b32 {v(tmp[0])}, 3, {v(lane)}\ns_lshl_b32 s{sT0}, s{sW}, 3\nv_add_u32 {v(tmp[0])}, s{sT0}, {v(tmp[0])}\nv_mul_u32_u24 {v(tmp[0])}, {F*2}, {v(tmp[0])}")
    k(f"v_bfe_u32 {v(tmp[1])}, {v(lane)}, 2, 1\nv_bfe_u32 {v(tmp[2])}, {v(lane)}, 4, 1\nv_xor_b32 {v(tmp[1])}, {v(tmp[1])}, {v(tmp[2])}")
    k(f"v_and_b32 {v(tmp[2])}, 3, {v(lane)}\nv_lshl_add_u32 {v(tmp[1])}, {v(tmp[1])}, 2, {v(tmp[2])}\nv_lshl_add_u32 {v(dB)}, {v(tmp[1])}, 4, {v(tmp[0])}")
    k(f"v_lshlrev_b32 {v(vA)}, 4, {v(lane)}")
    k(f"s_lshl_b32 s{sT0}, s{sRB}, 3\ns_add_u32 s{sT0}, s{sT0}, s{sW}\ns_mul_i32 s{sA}, s{sT0}, 40960")
    k(f"s_lshl_b32 s{sB}, s{sCB}, 7\ns_lshl_b32 s{sL}, s{sW}, 10")
    k("s_waitcnt lgkmcnt(0)")
    k.stamp(1)
    k(f"s_add_u32 s8, s4, {WS_H}\ns_addc_u32 s9, s5, 0\ns_and_b32 s9, s9, 0xffff\ns_mov_b32 s10, {H_BYTES}\ns_mov_b32 s11, 0x20000")
    k(f"s_mov_b32 s12, s28\ns_and_b32 s13, s29, 0xffff\ns_mov_b32 s14, {D*F*2}\ns_mov_b32 s15, 0x20000")
    k(f"s_mov_b32 s32, s30\ns_and_b32 s33, s31, 0xffff\ns_mov_b32 s34, {D*F*2}\ns_mov_b32 s35, 0x20000")
    def load_ops(c):
        ops = []
        ops.append(f"s_add_u32 m0, s{sL}, {c*16384}\ns_add_u32 s{sT0}, s{sB}, {c*64*F*2}\nbuffer_load_dwordx4 {v(dB)}, s[12:15], s{sT0} offen lds")
        ops.append(f"s_add_u32 m0, s{sL}, {c*16384+8192}\ns_add_u32 s{sT1}, s{sA}, {c*4096}\nbuffer_load_dwordx4 {v(dB)}, s[32:35], s{sT0} offen lds")
        for q in range(4):
            ops.append(f"buffer_load_dwordx4 {v(FA[c % NRA][q],4)}, {v(vA)}, s[8:11], s{sT1} offen offset:{q*1024}")
        return ops
    NPRE = 2
    for c in range(NPRE):
        for o in load_ops(c): k(o)
    k.stamp(2)
    half = tmp[4]
    k(f"v_lshrrev_b32 {v(half)}, 5, {v(lane)}\nv_bfe_u32 {v(tmp[0])}, {v(lane)}, 2, 2\nv_lshl_add_u32 {v(tmp[0])}, {v(half)}, 3, {v(tmp[0])}\nv_lshlrev_b32 {v(tmp[0])}, 7, {v(tmp[0])}")
    k(f"v_bfe_u32 {v(tmp[1])}, {v(lane)}, 3, 1\nv_lshl_add_u32 {v(tmp[0])}, {v(tmp[1])}, 6, {v(tmp[0])}")
    k(f"v_bfe_u32 {v(tmp[1])}, {v(lane)}, 4, 1\nv_lshl_add_u32 {v(tmp[0])}, {v(tmp[1])}, 5, {v(tmp[0])}")
    k(f"v_and_b32 {v(tmp[1])}, 3, {v(lane)}\nv_lshl_add_u32 {v(vB[0][0])}, {v(tmp[1])}, 3, {v(tmp[0])}\nv_xor_b32 {v(vB[0][1])}, 64, {v(vB[0][0])}")
    for h in (1, 2):
        for c in range(2): k(f"v_add_u32 {v(vB[h][c])}, {h*65536}, {v(vB[0][c])}")
    def treads(q):
        c = q >> 2; ks = q & 3; b = q & 1
        base = c * 16384 + ks * 2048
        out = []
        for mt in range(2):
            for ch in range(2):
                for rd in range(2):
                    off = base + mt * 8192 + rd * 512
                    h = off >> 16
                    out.append(f"ds_read_b64_tr_b16 {v(FB[b][2*mt+ch]+2*rd,2)}, {v(vB[h][ch])} offset:{off & 65535}")
        return out
    pend = []
    for c in range(NPRE): pend += [c] * 6
    def wait_chunk(c):
        idx = max(i for i, x in enumerate(pend) if x == c)
        k(f"s_waitcnt vmcnt({len(pend) - 1 - idx})\ns_barrier")
    wait_chunk(0)
    k.stamp(3)
    for x in treads(0): k(x)
    nxt_load = NPRE
    sched = [[], [], [], []]
    for q in range(40):
        c = q >> 2; ks = q & 3
        last = q == 39
        rd = []
        if not last:
            if ks == 3: wait_chunk(c + 1)
            rd = treads(q + 1)
        if ks == 0:
            todo = []
            while nxt_load < NCH and nxt_load <= c + PF and len(todo) < (12 if c == 0 else 6):
                todo += [(nxt_load, o) for o in load_ops(nxt_load)]; nxt_load += 1
            per = (len(todo) + 3) // 4
            sched = [todo[i*per:(i+1)*per] for i in range(4)]
        b = q & 1
        tr = sched[ks]
        for i in range(4):
            k(f"s_waitcnt lgkmcnt({6 if not last else 2*(3-i)})")
            cin = v(acc[i], 16) if q > 0 else "0"
            k(f"v_mfma_f32_32x32x16_bf16 {v(acc[i],16)}, {v(FB[b][i],4)}, {v(FA[c % NRA][ks],4)}, {cin}")
            for x in rd[2*i: 2*i+2]: k(x)
            for (cc, o) in tr[i::4]:
                k(o); pend.append(cc)
        if q == 27:
            tok = tmp[5]
            k(f"v_and_b32 {v(tok)}, 31, {v(lane)}\ns_lshl_b32 s{sT0}, s{sRB}, 8\ns_lshl_b32 s{sT1}, s{sW}, 5\ns_add_u32 s{sT0}, s{sT0}, s{sT1}\nv_add_u32 {v(tok)}, s{sT0}, {v(tok)}")
            k(f"s_add_u32 s44, s4, {WS_ST}\ns_addc_u32 s45, s5, 0\ns_and_b32 s45, s45, 0xffff\ns_mov_b32 s46, {ST_BYTES + HH_BYTES + CS_BYTES}\ns_mov_b32 s47, 0x20000")
            k(f"v_lshlrev_b32 {v(tmp[6])}, 6, {v(tok)}")
            for j in range(4):
                k(f"buffer_load_dwordx4 {v(EX+4*j,4)}, {v(tmp[6])}, s[44:47], 0 offen offset:{16*j}"); pend.append(-1)
            k(f"s_lshl_b32 s{sT0}, s{sCB}, 8\ns_add_u32 s48, s{sT0}, {ST_BYTES + HH_BYTES}\ns_add_u32 s49, s48, {F*4}")
            k(f"v_lshlrev_b32 {v(tmp[7])}, 4, {v(half)}")
        if q == 35:
            for mt in range(2):
                for j in range(4):
                    k(f"buffer_load_dwordx4 {v(CS0+16*mt+4*j,4)}, {v(tmp[7])}, s[44:47], s{48+mt} offen offset:{32*j}"); pend.append(-2)
    assert nxt_load == NCH
    k.stamp(4)
    for mt in range(2):
        for j in range(4):
            k(f"buffer_load_dwordx4 {v(CS1+16*mt+4*j,4)}, {v(tmp[7])}, s[44:47], s{48+mt} offen offset:{128+32*j}")
    k(f"s_waitcnt vmcnt(16)")
    E = EX
    for i in range(4): k(f"v_add_f32 {v(E+4*i)}, {v(E+4*i)}, {v(E+4*i+2)}\nv_add_f32 {v(E+4*i+1)}, {v(E+4*i+1)}, {v(E+4*i+3)}")
    k(f"v_add_f32 {v(E)}, {v(E)}, {v(E+4)}\nv_add_f32 {v(E+1)}, {v(E+1)}, {v(E+5)}\nv_add_f32 {v(E+8)}, {v(E+8)}, {v(E+12)}\nv_add_f32 {v(E+9)}, {v(E+9)}, {v(E+13)}")
    k(f"v_add_f32 {v(E)}, {v(E)}, {v(E+8)}\nv_add_f32 {v(E+1)}, {v(E+1)}, {v(E+9)}")
    k(f"v_mul_f32 {v(E)}, {fbits(1.0/D)}, {v(E)}\nv_mul_f32 {v(E+1)}, {fbits(1.0/D)}, {v(E+1)}")
    k(f"v_fma_f32 {v(E+1)}, -{v(E)}, {v(E)}, {v(E+1)}\nv_max_f32 {v(E+1)}, 0, {v(E+1)}\nv_add_f32 {v(E+1)}, {fbits(1e-5)}, {v(E+1)}")
    k(f"v_rsq_f32 {v(E+1)}, {v(E+1)}")
    nmean, rstd, rneg, rsq2 = E + 2, E + 1, E + 3, E + 4
    k(f"v_sub_f32 {v(nmean)}, 0, {v(E)}")
    k(f"v_mul_f32 {v(rneg)}, {fbits(-math.log2(math.e))}, {v(rstd)}\nv_mul_f32 {v(rsq2)}, {v(rstd)}, {v(rstd)}")
    tok = tmp[5]
    k(f"v_lshrrev_b32 {v(tmp[0])}, 4, {v(tok)}\nv_mul_u32_u24 {v(tmp[0])}, {F*32}, {v(tmp[0])}\nv_and_b32 {v(tmp[1])}, 15, {v(tok)}\nv_lshl_add_u32 {v(tmp[0])}, {v(tmp[1])}, 4, {v(tmp[0])}")
    k(f"v_lshl_add_u32 {v(tmp[0])}, {v(half)}, 8, {v(tmp[0])}")
    k(f"s_add_u32 s52, s4, {WS_HH}\ns_addc_u32 s53, s5, 0\ns_and_b32 s53, s53, 0xffff\ns_mov_b32 s54, {HH_BYTES}\ns_mov_b32 s55, 0x20000")
    k(f"s_lshl_b32 s{sT0}, s{sCB}, 11")
    Tt = E + 8
    PKo = E + 32
    for ch in range(2):
        k(f"s_waitcnt vmcnt({8 if ch == 0 else 0})" if ch == 0 else "s_waitcnt vmcnt(2)")
        g, u = acc[ch], acc[2 + ch]
        c1, c3 = (CS0, CS0 + 16) if ch == 0 else (CS1, CS1 + 16)
        for r in range(16): k(f"v_fmac_f32 {v(g+r)}, {v(c1+r)}, {v(nmean)}")
        for r in range(16): k(f"v_fmac_f32 {v(u+r)}, {v(c3+r)}, {v(nmean)}")
        for r in range(16): k(f"v_mul_f32 {v(Tt+r)}, {v(g+r)}, {v(rneg)}")
        for r in range(16): k(f"v_exp_f32 {v(Tt+r)}, {v(Tt+r)}")
        for r in range(16): k(f"v_mul_f32 {v(g+r)}, {v(g+r)}, {v(u+r)}")
        for r in range(16): k(f"v_add_f32 {v(Tt+r)}, 1.0, {v(Tt+r)}")
        for r in range(16): k(f"v_rcp_f32 {v(Tt+r)}, {v(Tt+r)}")
        for r in range(16): k(f"v_mul_f32 {v(g+r)}, {v(g+r)}, {v(rsq2)}")
        for r in range(16): k(f"v_mul_f32 {v(g+r)}, {v(g+r)}, {v(Tt+r)}")
        for p in range(2):
            o = PKo + 4 * p + 8 * ch
            for hi in range(2):
                j = p + 2 * hi
                k(f"v_cvt_pk_bf16_f32 {v(o+2*hi)}, {v(g+4*j)}, {v(g+4*j+1)}\nv_cvt_pk_bf16_f32 {v(o+2*hi+1)}, {v(g+4*j+2)}, {v(g+4*j+3)}")
            k(f"buffer_store_dwordx4 {v(o,4)}, {v(tmp[0])}, s[52:55], s{sT0} offen offset:{ch*1024 + p*512}")
    k.stamp(5); k.stamp_real(7)
    k.prof_store(8, 4, WS_END + PROF_OFF(k), tmp[2], sW)
    k.tl_end(2)
    k.label(done)
    k("s_endpgm")
    k.label(Lidle)
    k(f"v_and_b32 {v(lane)}, 63, v0\nv_lshrrev_b32 {v(tmp[0])}, 6, v0")
    k.nop(1)
    k(f"v_readfirstlane_b32 s{sW}, {v(tmp[0])}")
    k(f"s_sub_u32 s{sT1}, s{sT1}, 27\ns_lshl_b32 s{sT1}, s{sT1}, 3\ns_add_u32 s{sT1}, s{sT1}, s{sW}")
    k(f"s_and_b32 s{sT0}, s{sT0}, 1\ns_mul_i32 s{sT0}, s{sT0}, {4*270*1024}\ns_mul_i32 s{sT1}, s{sT1}, 27648\ns_add_u32 s{sT0}, s{sT0}, s{sT1}")
    k(f"v_lshlrev_b32 {v(tmp[1])}, 7, {v(lane)}")
    k("s_waitcnt lgkmcnt(0)")
    k(f"s_add_u32 s8, s4, {WS_W2P}\ns_addc_u32 s9, s5, 0\ns_and_b32 s9, s9, 0xffff\ns_mov_b32 s10, {W2P_BYTES}\ns_mov_b32 s11, 0x20000")
    for i in range(4 if 'nopf2' not in dbg else 0):
        k(f"buffer_load_dword {v(tmp[2])}, {v(tmp[1])}, s[8:11], s{sT0} offen")
        if i < 3: k(f"s_add_u32 s{sT0}, s{sT0}, 8192")
    if pf_code: k.code_prefetch(pf_code, tmp[1], tmp[2], 12, sW, lane, sT0)
    k("s_waitcnt vmcnt(0)")
    k("s_endpgm")
    return k, nv, (102 if (prof or tl is not None) else 64)

if __name__ == "__main__":
    k, nv, ns = gen_ffn()
    print("vgprs", nv, "hazards", check_kernel(k), "lines", len(k.lines))
```

```python
from asm import *
from layout import *
def PROF_OFF(k): return {'qkv_kernel':0,'attn_kernel':1,'oproj_kernel':2,'ffn_kernel':3,'down_kernel':4}.get(k.name, 0) * 0x40000
import struct
def fbits(x): return struct.unpack("<I", struct.pack("<f", x))[0]

NST = 4
STG = 32768
NCH = 10
L_PS = NST * STG
L_PQ = L_PS + 4096
L_PC = L_PQ + 4096
L_RS = L_PC + 2048
L_MR = L_RS + 512
L_CS = L_MR + 512
LDS_QKV = L_CS + 512

def gen_qkv(name="qkv_kernel", prof=False, tl=None, dbg=()):
    k = Kernel(name); k.prof = prof; k.tl = tl
    V = Alloc(1, 256)
    lane = V("lane"); tmp = [V(f"t{i}") for i in range(10)]
    dA0 = V("dA0"); dA1 = V("dA1"); dB = V("dB")
    vA = [[V(f"vA{h}{j}") for j in range(4)] for h in range(2)]
    vB = [[V(f"vB{h}{j}") for j in range(4)] for h in range(2)]
    st = V("st", 8, 2)
    cs4 = V("cs4", 4, 4); sel = V("sel", 4, 4); rs4 = [V("rs4a", 4, 4), V("rs4b", 4, 4)]
    vtch = V("vtch", 2, 2)
    ut = V("ut", 8, 2)
    acc = [V("acc0", 16, 4), V("acc1", 16, 4)]
    FA = [[[V(f"FA{b}{j}{i}", 4, 4) for i in range(2)] for j in range(4)] for b in range(2)]
    FB = [[V(f"FB{b}{j}", 4, 4) for j in range(4)] for b in range(2)]
    nv = V.next
    sW, sM, sN, sRB, sCB, sSec = 16, 17, 18, 19, 20, 21
    sT0, sT1, sT2, sT3 = 22, 23, 24, 25
    sAo, sBo, sLw, sOnes = 26, 27, 28, 29
    sX, sY = 30, 31
    done = k.L("done")
    k(f"s_cmp_ge_u32 s2, 256\ns_cbranch_scc1 {done}")
    k.tl_start()
    k.stamp(0); k.stamp_real(6)
    k(f"s_load_dwordx4 s[4:7], s[0:1], {KA_X}")
    k(f"s_load_dwordx2 s[36:37], s[0:1], {KA_WS}")
    k(f"s_and_b32 s{sT0}, s2, 7\ns_lshr_b32 s{sT1}, s2, 3")
    k(f"s_lshr_b32 s{sT2}, s{sT0}, 1\ns_lshl_b32 s{sT2}, s{sT2}, 2\ns_and_b32 s{sT3}, s{sT1}, 3\ns_add_u32 s{sRB}, s{sT2}, s{sT3}")
    k(f"s_and_b32 s{sT2}, s{sT0}, 1\ns_lshl_b32 s{sT2}, s{sT2}, 3\ns_lshr_b32 s{sT3}, s{sT1}, 2\ns_add_u32 s{sCB}, s{sT2}, s{sT3}")
    Lcs = k.L("colsum")
    k(f"s_cmp_ge_u32 s{sCB}, 15\ns_cbranch_scc1 {Lcs}")
    k(f"v_and_b32 {v(lane)}, 63, v0\nv_lshrrev_b32 {v(tmp[0])}, 6, v0")
    k.nop(1)
    k(f"v_readfirstlane_b32 s{sW}, {v(tmp[0])}")
    k(f"v_lshrrev_b32 {v(tmp[0])}, 3, {v(lane)}")
    k(f"v_lshrrev_b32 {v(tmp[1])}, 4, {v(lane)}")
    k(f"v_and_b32 {v(tmp[2])}, 7, {v(lane)}")
    k(f"v_xor_b32 {v(tmp[3])}, {v(tmp[2])}, {v(tmp[1])}")
    k(f"v_xor_b32 {v(tmp[4])}, 4, {v(tmp[3])}")
    k(f"s_lshl_b32 s{sT0}, s{sW}, 4")
    k(f"v_add_u32 {v(tmp[0])}, s{sT0}, {v(tmp[0])}\nv_mul_u32_u24 {v(tmp[0])}, 1280, {v(tmp[0])}")
    k(f"v_lshl_add_u32 {v(dA0)}, {v(tmp[3])}, 4, {v(tmp[0])}")
    k(f"v_lshl_add_u32 {v(dA1)}, {v(tmp[4])}, 4, {v(tmp[0])}\nv_add_u32 {v(dA1)}, {8*1280}, {v(dA1)}")
    k(f"v_bfe_u32 {v(tmp[2])}, {v(lane)}, 2, 2\nv_and_b32 {v(tmp[3])}, 3, {v(tmp[1])}\nv_xor_b32 {v(tmp[2])}, {v(tmp[2])}, {v(tmp[3])}")
    k(f"v_and_b32 {v(tmp[3])}, 3, {v(lane)}\nv_lshl_add_u32 {v(tmp[2])}, {v(tmp[2])}, 2, {v(tmp[3])}")
    k(f"s_lshl_b32 s{sT0}, s{sW}, 3")
    k(f"v_add_u32 {v(tmp[1])}, s{sT0}, {v(tmp[1])}\nv_mul_u32_u24 {v(tmp[1])}, 3840, {v(tmp[1])}")
    k(f"v_lshl_add_u32 {v(dB)}, {v(tmp[2])}, 4, {v(tmp[1])}")
    k(f"s_mul_i32 s{sAo}, s{sRB}, {128*1280}\ns_lshl_b32 s{sBo}, s{sCB}, 8\ns_lshl_b32 s{sLw}, s{sW}, 11")
    k(f"s_lshr_b32 s{sM}, s{sW}, 2\ns_and_b32 s{sN}, s{sW}, 3")
    k("s_waitcnt lgkmcnt(0)")
    k(f"s_mov_b32 s8, s4\ns_and_b32 s9, s5, 0xffff\ns_mov_b32 s10, {S*D*2}\ns_mov_b32 s11, 0x20000")
    k(f"s_mov_b32 s12, s6\ns_and_b32 s13, s7, 0xffff\ns_mov_b32 s14, {D*3*D*2}\ns_mov_b32 s15, 0x20000")
    def dma_ops(c):
        stg = (c % NST) * STG
        return [f"s_add_u32 m0, s{sLw}, {stg}\ns_add_u32 s{sX}, s{sAo}, {c*128}\nbuffer_load_dwordx4 {v(dA0)}, s[8:11], s{sX} offen lds",
                f"s_add_u32 m0, s{sLw}, {stg+1024}\ns_add_u32 s{sY}, s{sBo}, {c*64*3840}\nbuffer_load_dwordx4 {v(dA1)}, s[8:11], s{sX} offen lds",
                f"s_add_u32 m0, s{sLw}, {stg+16384}\ns_add_u32 s{sX}, s{sY}, {4*3840}\nbuffer_load_dwordx4 {v(dB)}, s[12:15], s{sY} offen lds",
                f"s_add_u32 m0, s{sLw}, {stg+16384+1024}\ns_nop 0\nbuffer_load_dwordx4 {v(dB)}, s[12:15], s{sX} offen lds"]
    pend0 = []
    for c in range(2):
        for o in dma_ops(c): k(o); pend0.append(c)
    if 'notouch' not in dbg:
        Lt1 = k.L("t1"); Lt2 = k.L("t2")
        k(f"s_lshr_b32 s{sT0}, s2, 3\ns_lshl_b32 s{sT0}, s{sT0}, 3\ns_add_u32 s{sT0}, s{sT0}, s{sW}")
        k(f"s_cmp_ge_u32 s{sT0}, 80\ns_cbranch_scc1 {Lt1}")
        k(f"s_lshl_b32 s{sT0}, s{sT0}, 6\nv_add_u32 {v(vtch)}, s{sT0}, {v(lane)}")
        k(f"v_mul_u32_u24 {v(vtch+1)}, 6554, {v(vtch)}\nv_lshrrev_b32 {v(vtch+1)}, 16, {v(vtch+1)}")
        k(f"v_mul_u32_u24 {v(tmp[5])}, 10, {v(vtch+1)}\nv_sub_u32 {v(vtch)}, {v(vtch)}, {v(tmp[5])}")
        k(f"v_mul_u32_u24 {v(vtch+1)}, 1280, {v(vtch+1)}\nv_lshl_add_u32 {v(vtch)}, {v(vtch)}, 7, {v(vtch+1)}")
        k(f"s_and_b32 s{sT1}, s2, 6\ns_mul_i32 s{sT1}, s{sT1}, {256*1280}")
        k(f"buffer_load_dword {v(vtch+1)}, {v(vtch)}, s[8:11], s{sT1} offen\nbuffer_load_dword {v(vtch+1)}, {v(vtch)}, s[8:11], s{sT1} offen")
        k(f"s_branch {Lt2}")
        k.label(Lt1)
        k(f"s_sub_u32 s{sT0}, s{sT0}, 80\ns_min_u32 s{sT0}, s{sT0}, 79\ns_mul_i32 s{sT0}, s{sT0}, {8*3840}")
        k(f"v_lshrrev_b32 {v(vtch)}, 4, {v(lane)}\nv_mul_u32_u24 {v(vtch)}, 3840, {v(vtch)}\nv_and_b32 {v(vtch+1)}, 15, {v(lane)}\nv_lshl_add_u32 {v(vtch)}, {v(vtch+1)}, 7, {v(vtch)}")
        k(f"s_and_b32 s{sT1}, s2, 1\ns_lshl_b32 s{sT1}, s{sT1}, 11\ns_add_u32 s{sT0}, s{sT0}, s{sT1}\ns_add_u32 s{sT1}, s{sT0}, {4*3840}")
        k(f"buffer_load_dword {v(vtch+1)}, {v(vtch)}, s[12:15], s{sT0} offen\nbuffer_load_dword {v(vtch+1)}, {v(vtch)}, s[12:15], s{sT1} offen")
        k.label(Lt2)
        pend0 += [-1, -1]
    k.stamp(1)
    k(f"s_add_u32 s36, s36, {WS_QKV}\ns_addc_u32 s37, s37, 0\ns_and_b32 s37, s37, 0xffff\ns_mov_b32 s38, {QKV_BYTES}\ns_mov_b32 s39, 0x20000")
    k(f"s_lshl_b32 s{sT0}, s{sM}, 1\ns_add_u32 s{sT0}, s{sT0}, s{sN}")
    k(f"v_and_b32 {v(tmp[0])}, 31, {v(lane)}\nv_lshrrev_b32 {v(tmp[1])}, 5, {v(lane)}")
    k(f"s_lshl_b32 s{sT1}, s{sM}, 6\nv_add_u32 {v(tmp[2])}, s{sT1}, {v(tmp[0])}\nv_lshlrev_b32 {v(tmp[2])}, 7, {v(tmp[2])}")
    k(f"v_bfe_u32 {v(tmp[3])}, {v(lane)}, 1, 3")
    k(f"v_bfe_u32 {v(tmp[4])}, {v(lane)}, 2, 2")
    k(f"v_lshl_add_u32 {v(tmp[5])}, {v(tmp[1])}, 3, {v(tmp[4])}\nv_lshlrev_b32 {v(tmp[5])}, 8, {v(tmp[5])}")
    k(f"v_xor_b32 {v(tmp[4])}, s{sN}, {v(tmp[4])}\nv_lshl_add_u32 {v(tmp[5])}, {v(tmp[4])}, 6, {v(tmp[5])}")
    k(f"v_bfe_u32 {v(tmp[4])}, {v(lane)}, 4, 1\nv_lshl_add_u32 {v(tmp[5])}, {v(tmp[4])}, 5, {v(tmp[5])}")
    k(f"v_and_b32 {v(tmp[4])}, 3, {v(lane)}\nv_lshl_add_u32 {v(tmp[5])}, {v(tmp[4])}, 3, {v(tmp[5])}")
    k(f"v_add_u32 {v(tmp[5])}, 16384, {v(tmp[5])}")
    for j in range(4):
        k(f"s_add_u32 s{sT1}, s{sT0}, {j}\ns_and_b32 s{sT1}, s{sT1}, 3\ns_lshl_b32 s{sT2}, s{sT1}, 1\ns_lshl_b32 s{sT3}, s{sT1}, 12")
        k(f"v_add_u32 {v(tmp[4])}, s{sT2}, {v(tmp[1])}\nv_xor_b32 {v(tmp[4])}, {v(tmp[4])}, {v(tmp[3])}")
        k(f"v_lshl_add_u32 {v(vA[0][j])}, {v(tmp[4])}, 4, {v(tmp[2])}\nv_add_u32 {v(vA[1][j])}, 0x10000, {v(vA[0][j])}")
        k(f"v_add_u32 {v(vB[0][j])}, s{sT3}, {v(tmp[5])}\nv_add_u32 {v(vB[1][j])}, 0x10000, {v(vB[0][j])}")
    for i in range(8): k(f"v_mov_b32 {v(st+i)}, 0")
    k(f"v_bfe_u32 {v(tmp[4])}, {v(lane)}, 4, 1\nv_bfe_u32 {v(tmp[6])}, {v(lane)}, 3, 1")
    k(f"v_cmp_eq_u32 vcc, {v(tmp[4])}, {v(tmp[6])}")
    k(f"v_mov_b32 {v(tmp[4])}, 0x3f803f80\nv_mov_b32 {v(tmp[6])}, 0")
    for i in range(4): k(f"v_cndmask_b32 {v(sel+i)}, {v(tmp[6])}, {v(tmp[4])}, vcc")
    k(f"s_mov_b32 s{sOnes}, 0xffff0000")
    k(f"s_mul_i32 s{sSec}, s{sCB}, 52\ns_lshr_b32 s{sSec}, s{sSec}, 8")
    LV = k.L("vpath"); Lepi = k.L("epi")
    k(f"s_cmp_eq_u32 s{sSec}, 2\ns_cbranch_scc1 {LV}")

    def reads(c):
        b = c & 1; stg = c % NST; hi = stg >> 1; so = (stg & 1) * STG
        out = []
        for j in range(4):
            out.append(f"ds_read_b128 {v(FA[b][j][0],4)}, {v(vA[hi][j])} offset:{so}")
            out.append(f"ds_read_b64_tr_b16 {v(FB[b][j],2)}, {v(vB[hi][j])} offset:{so}")
            out.append(f"ds_read_b64_tr_b16 {v(FB[b][j]+2,2)}, {v(vB[hi][j])} offset:{so+1024}")
            out.append(f"ds_read_b128 {v(FA[b][j][1],4)}, {v(vA[hi][j])} offset:{so+4096}")
        return out
    def mainloop(vorient):
        pend = list(pend0)
        nxt_load = 2
        for c in range(-1, NCH):
            if c + 1 < NCH:
                idx = max(i for i, x in enumerate(pend) if x == c + 1)
                k(f"s_waitcnt vmcnt({len(pend) - 1 - idx})\ns_barrier")
            if c == -1: k.stamp(2)
            todo = []
            if c >= 0:
                while nxt_load < NCH and nxt_load - 4 <= c and len(todo) < 8 and (nxt_load <= c + 4):
                    todo += [(nxt_load, o) for o in dma_ops(nxt_load)]; nxt_load += 1
            rd = reads(c + 1) if (c + 1 < NCH and 'noread' not in dbg) else []
            mf = []; dots = [[] for _ in range(4)]
            if c >= 0:
                b = c & 1
                for j in range(4):
                    for i in range(2):
                        cin = v(acc[i], 16) if not (c == 0 and j == 0) else "0"
                        x, w_ = v(FA[b][j][i], 4), v(FB[b][j], 4)
                        if vorient: mf.append(f"v_mfma_f32_32x32x16_bf16 {v(acc[i],16)}, {x}, {w_}, {cin}")
                        else: mf.append(f"v_mfma_f32_32x32x16_bf16 {v(acc[i],16)}, {w_}, {x}, {cin}")
                dl = []
                g = []
                for i in range(2):
                    for r in range(4):
                        x = FA[b][0][i] + r; u = ut + 2 * ((4 * i + r) % 4)
                        g.append([f"v_lshlrev_b32 {v(u)}, 16, {v(x)}", f"v_and_b32 {v(u+1)}, s{sOnes}, {v(x)}",
                                  f"v_fmac_f32 {v(st+i)}, {v(u)}, {v(u)}", f"v_fmac_f32 {v(st+2+i)}, {v(u+1)}, {v(u+1)}"])
                dl += g[0][:2]
                for e in range(8):
                    if e + 1 < 8: dl += g[e+1][:2]
                    dl += g[e][2:]
                for i in range(2):
                    cin = v(rs4[i], 4) if c > 0 else "0"
                    mf.insert(1 + 5 * i, f"v_mfma_f32_16x16x32_bf16 {v(rs4[i],4)}, {v(sel,4)}, {v(FA[b][0][i],4)}, {cin}")
                for j in range(2):
                    cin = v(cs4, 4) if not (c == 0 and j == 0) else "0"
                    mf.insert(3 + 5 * j, f"v_mfma_f32_16x16x32_bf16 {v(cs4,4)}, {v(sel,4)}, {v(FB[b][j],4)}, {cin}")
            else:
                dl = []
            if 'novalu' in dbg: dl = []
            if 'nosel' in dbg and c >= 0: mf = [x for x in mf if '16x16' not in x]
            if 'nodot' in dbg and c >= 0: dl = []; mf = [x for x in mf if '16x16' not in x]
            if 'nomfma' in dbg: mf = []; rd = rd + dl
            if mf:
                nm = len(mf); ri = 0; di = 0; ti = 0
                per_d = (len(dl) + nm - 1) // nm
                for q in range(nm):
                    k(mf[q])
                    for x in rd[ri: ri+2]: k(x)
                    ri += 2
                    if ti < len(todo): k(todo[ti][1]); pend.append(todo[ti][0]); ti += 1
                    for x in dl[di: di+per_d]: k(x)
                    di += per_d
                assert ri >= len(rd) and di >= len(dl) and ti == len(todo)
            else:
                for x in rd: k(x)
            if rd: k("s_waitcnt lgkmcnt(0)")
    mainloop(False)
    k(f"s_branch {Lepi}")
    k.label(LV)
    mainloop(True)
    k.label(Lepi)
    k.stamp(3)
    k.nop(8)
    for i in range(2): k(f"v_add_f32 {v(st+i)}, {v(st+i)}, {v(st+2+i)}")
    r_, half = tmp[0], tmp[1]
    k(f"v_and_b32 {v(r_)}, 31, {v(lane)}\nv_lshrrev_b32 {v(half)}, 5, {v(lane)}")
    k(f"s_lshl_b32 s{sT0}, s{sM}, 11\ns_lshl_b32 s{sT1}, s{sN}, 3\ns_add_u32 s{sT0}, s{sT0}, s{sT1}\ns_add_u32 s{sT0}, s{sT0}, {L_PQ}")
    k(f"v_lshlrev_b32 {v(tmp[2])}, 5, {v(r_)}\nv_lshl_add_u32 {v(tmp[2])}, {v(half)}, 2, {v(tmp[2])}\nv_add_u32 {v(tmp[2])}, s{sT0}, {v(tmp[2])}")
    k(f"ds_write_b32 {v(tmp[2])}, {v(st)}\nds_write_b32 {v(tmp[2])}, {v(st+1)} offset:1024")
    k(f"s_lshl_b32 s{sT0}, s{sM}, 10\ns_lshl_b32 s{sT1}, s{sN}, 2\ns_add_u32 s{sT0}, s{sT0}, s{sT1}\ns_add_u32 s{sT0}, s{sT0}, {L_PS}")
    k(f"v_and_b32 {v(tmp[3])}, 15, {v(lane)}\nv_lshl_add_u32 {v(tmp[3])}, {v(half)}, 4, {v(tmp[3])}\nv_lshlrev_b32 {v(tmp[4])}, 4, {v(tmp[3])}\nv_add_u32 {v(tmp[4])}, s{sT0}, {v(tmp[4])}")
    k(f"ds_write_b32 {v(tmp[4])}, {v(rs4[0])}\nds_write_b32 {v(tmp[4])}, {v(rs4[1])} offset:512")
    k(f"s_lshl_b32 s{sT0}, s{sN}, 8\ns_lshl_b32 s{sT1}, s{sM}, 2\ns_add_u32 s{sT0}, s{sT0}, s{sT1}\ns_add_u32 s{sT0}, s{sT0}, {L_PC}")
    k(f"v_lshlrev_b32 {v(tmp[3])}, 3, {v(tmp[3])}\nv_add_u32 {v(tmp[3])}, s{sT0}, {v(tmp[3])}")
    k(f"ds_write_b32 {v(tmp[3])}, {v(cs4)}")
    k("s_waitcnt lgkmcnt(0)\ns_barrier")
    Lr2 = k.L("red2"); Lr3 = k.L("red3")
    T = FA[0][0][0]
    k(f"s_cmp_ge_u32 s{sW}, 2\ns_cbranch_scc1 {Lr2}")
    k(f"v_lshlrev_b32 {v(tmp[2])}, 5, v0\nv_add_u32 {v(tmp[2])}, {L_PQ}, {v(tmp[2])}\nv_lshlrev_b32 {v(tmp[3])}, 4, v0\nv_add_u32 {v(tmp[3])}, {L_PS}, {v(tmp[3])}")
    k(f"ds_read_b128 {v(T,4)}, {v(tmp[3])}")
    k(f"ds_read_b128 {v(T+8,4)}, {v(tmp[2])}\nds_read_b128 {v(T+12,4)}, {v(tmp[2])} offset:16")
    k("s_waitcnt lgkmcnt(0)")
    k(f"v_add_f32 {v(T)}, {v(T)}, {v(T+1)}\nv_add_f32 {v(T+2)}, {v(T+2)}, {v(T+3)}\nv_add_f32 {v(T)}, {v(T)}, {v(T+2)}")
    base = T + 8
    k(f"v_add_f32 {v(base)}, {v(base)}, {v(base+1)}\nv_add_f32 {v(base+2)}, {v(base+2)}, {v(base+3)}\nv_add_f32 {v(base+4)}, {v(base+4)}, {v(base+5)}\nv_add_f32 {v(base+6)}, {v(base+6)}, {v(base+7)}")
    k(f"v_add_f32 {v(base)}, {v(base)}, {v(base+2)}\nv_add_f32 {v(base+4)}, {v(base+4)}, {v(base+6)}\nv_add_f32 {v(base)}, {v(base)}, {v(base+4)}")
    k(f"v_mul_f32 {v(T)}, {fbits(1.0/D)}, {v(T)}\nv_mul_f32 {v(T+8)}, {fbits(1.0/D)}, {v(T+8)}")
    k(f"v_fma_f32 {v(T+8)}, -{v(T)}, {v(T)}, {v(T+8)}\nv_max_f32 {v(T+8)}, 0, {v(T+8)}\nv_add_f32 {v(T+8)}, {fbits(1e-5)}, {v(T+8)}")
    k(f"v_rsq_f32 {v(T+8)}, {v(T+8)}")
    k(f"s_cmp_eq_u32 s{sSec}, 0\ns_cselect_b32 s{sT0}, {fbits(QSCALE)}, 1.0")
    k(f"v_mul_f32 {v(T+8)}, s{sT0}, {v(T+8)}\nv_sub_f32 {v(T)}, 0, {v(T)}")
    k(f"v_lshlrev_b32 {v(tmp[2])}, 2, v0\nv_add_u32 {v(tmp[2])}, {L_RS}, {v(tmp[2])}")
    k(f"ds_write_b32 {v(tmp[2])}, {v(T+8)}\nds_write_b32 {v(tmp[2])}, {v(T)} offset:512")
    k(f"s_branch {Lr3}")
    k.label(Lr2)
    k(f"s_cmp_ge_u32 s{sW}, 4\ns_cbranch_scc1 {Lr3}")
    k(f"v_subrev_u32 {v(tmp[2])}, 128, v0\nv_lshlrev_b32 {v(tmp[3])}, 3, {v(tmp[2])}\nv_add_u32 {v(tmp[3])}, {L_PC}, {v(tmp[3])}")
    k(f"ds_read_b64 {v(T,2)}, {v(tmp[3])}\ns_waitcnt lgkmcnt(0)")
    k(f"v_add_f32 {v(T)}, {v(T)}, {v(T+1)}")
    k(f"v_lshlrev_b32 {v(tmp[2])}, 2, {v(tmp[2])}\nv_add_u32 {v(tmp[2])}, {L_CS}, {v(tmp[2])}\nds_write_b32 {v(tmp[2])}, {v(T)}")
    k.label(Lr3)
    k("s_waitcnt lgkmcnt(0)\ns_barrier")
    k.stamp(4)
    LVe = k.L("vepi")
    k(f"s_lshr_b32 s{sT0}, s{sRB}, 1\ns_mul_i32 s{sX}, s{sT0}, {BLK_STRIDE}")
    k(f"s_mul_i32 s{sT0}, s{sSec}, 5\ns_sub_u32 s{sCB}, s{sCB}, s{sT0}")
    k(f"s_cmp_eq_u32 s{sSec}, 2\ns_cbranch_scc1 {LVe}")
    CSr = T
    RS0, MR0, RS1, MR1 = tmp[4], tmp[5], tmp[6], tmp[7]
    k(f"s_lshl_b32 s{sT0}, s{sM}, 8\ns_add_u32 s{sT0}, s{sT0}, {L_RS}")
    k(f"v_lshl_add_u32 {v(tmp[2])}, {v(r_)}, 2, s{sT0}")
    k(f"ds_read_b32 {v(RS0)}, {v(tmp[2])}\nds_read_b32 {v(MR0)}, {v(tmp[2])} offset:512\nds_read_b32 {v(RS1)}, {v(tmp[2])} offset:128\nds_read_b32 {v(MR1)}, {v(tmp[2])} offset:{512+128}")
    k(f"s_lshl_b32 s{sT0}, s{sN}, 7\ns_add_u32 s{sT0}, s{sT0}, {L_CS}")
    k(f"v_lshl_add_u32 {v(tmp[2])}, {v(half)}, 4, s{sT0}")
    for j in range(4): k(f"ds_read_b128 {v(CSr+4*j,4)}, {v(tmp[2])} offset:{32*j}")
    k(f"s_and_b32 s{sT0}, s{sRB}, 1\ns_lshl_b32 s{sT0}, s{sT0}, 2\ns_lshl_b32 s{sT1}, s{sM}, 1\ns_add_u32 s{sT0}, s{sT0}, s{sT1}")
    k(f"s_cmp_eq_u32 s{sSec}, 0\ns_cselect_b32 s{sT1}, {Q1OFF}, {K1OFF}\ns_add_u32 s{sX}, s{sX}, s{sT1}")
    k(f"s_lshl_b32 s{sT2}, s{sT0}, 10\ns_lshl_b32 s{sT3}, s{sT0}, 8\ns_add_u32 s{sT3}, s{sT3}, {K2OFF}")
    k(f"s_lshl_b32 s{sT0}, s{sCB}, 5\ns_lshl_b32 s{sT1}, s{sN}, 3\ns_add_u32 s{sT0}, s{sT0}, s{sT1}")
    k(f"v_add_u32 {v(tmp[2])}, s{sT0}, {v(half)}")
    AD = T + 16
    a1, a2 = tmp[8], tmp[9]
    for j in range(4):
        q = tmp[3]
        k(f"v_add_u32 {v(q)}, {2*j}, {v(tmp[2])}")
        k(f"v_mul_u32_u24 {v(a1)}, 205, {v(q)}\nv_lshrrev_b32 {v(a1)}, 10, {v(a1)}")
        k(f"v_mul_u32_u24 {v(a2)}, 5, {v(a1)}\nv_sub_u32 {v(q)}, {v(q)}, {v(a2)}")
        k(f"v_mul_u32_u24 {v(a1)}, {HEAD_STRIDE}, {v(a1)}")
        k(f"v_lshrrev_b32 {v(a2)}, 1, {v(q)}\nv_lshlrev_b32 {v(a2)}, 9, {v(a2)}\nv_lshl_add_u32 {v(a2)}, {v(r_)}, 4, {v(a2)}")
        k(f"v_and_b32 {v(AD+2*j+1)}, 1, {v(q)}\nv_lshl_add_u32 {v(a2)}, {v(AD+2*j+1)}, 3, {v(a2)}\nv_add_u32 {v(a2)}, s{sT2}, {v(a2)}")
        k(f"v_lshl_add_u32 {v(AD+2*j+1)}, {v(r_)}, 3, s{sT3}")
        k(f"v_cmp_eq_u32 vcc, 4, {v(q)}")
        k(f"v_mov_b32 {v(q)}, 1024")
        k(f"v_mov_b32 {v(AD+2*j)}, 256")
        k(f"v_cndmask_b32 {v(a2)}, {v(a2)}, {v(AD+2*j+1)}, vcc")
        k(f"v_cndmask_b32 {v(q)}, {v(q)}, {v(AD+2*j)}, vcc")
        k(f"v_add_u32 {v(AD+2*j)}, {v(a1)}, {v(a2)}\nv_add_u32 {v(AD+2*j+1)}, {v(AD+2*j)}, {v(q)}")
    k("s_waitcnt lgkmcnt(0)")
    PK = T + 24
    for i in range(2):
        RS, MR = (RS0, MR0) if i == 0 else (RS1, MR1)
        for r in range(16):
            k(f"v_fmac_f32 {v(acc[i]+r)}, {v(CSr+r)}, {v(MR)}")
        for r in range(16):
            k(f"v_mul_f32 {v(acc[i]+r)}, {v(acc[i]+r)}, {v(RS)}")
        for j in range(4):
            p = PK + 8 * i + 2 * j
            k(f"v_cvt_pk_bf16_f32 {v(p)}, {v(acc[i]+4*j)}, {v(acc[i]+4*j+1)}\nv_cvt_pk_bf16_f32 {v(p+1)}, {v(acc[i]+4*j+2)}, {v(acc[i]+4*j+3)}")
            k(f"buffer_store_dwordx2 {v(p,2)}, {v(AD+2*j+i)}, s[36:39], s{sX} offen")
    k(f"s_branch L_qkv_end")
    k.label(LVe)
    CSv = tmp[4]
    k(f"s_lshl_b32 s{sT0}, s{sN}, 7\ns_add_u32 s{sT0}, s{sT0}, {L_CS}")
    k(f"v_lshl_add_u32 {v(tmp[2])}, {v(r_)}, 2, s{sT0}\nds_read_b32 {v(CSv)}, {v(tmp[2])}")
    k(f"s_lshl_b32 s{sT0}, s{sM}, 8\ns_add_u32 s{sT0}, s{sT0}, {L_RS}")
    k(f"v_lshl_add_u32 {v(tmp[2])}, {v(half)}, 4, s{sT0}")
    RSv = T; MRv = T + 32
    for i in range(2):
        for j in range(4):
            k(f"ds_read_b128 {v(RSv+16*i+4*j,4)}, {v(tmp[2])} offset:{128*i+32*j}")
            k(f"ds_read_b128 {v(MRv+16*i+4*j,4)}, {v(tmp[2])} offset:{512+128*i+32*j}")
    k(f"s_lshl_b32 s{sT0}, s{sCB}, 7\ns_lshl_b32 s{sT1}, s{sN}, 5\ns_add_u32 s{sT0}, s{sT0}, s{sT1}")
    k(f"v_add_u32 {v(tmp[3])}, s{sT0}, {v(r_)}")
    k(f"v_mul_u32_u24 {v(tmp[5])}, 3277, {v(tmp[3])}\nv_lshrrev_b32 {v(tmp[5])}, 16, {v(tmp[5])}")
    k(f"v_mul_u32_u24 {v(tmp[6])}, 20, {v(tmp[5])}\nv_sub_u32 {v(tmp[3])}, {v(tmp[3])}, {v(tmp[6])}")
    k(f"v_mul_u32_u24 {v(tmp[5])}, {HEAD_STRIDE}, {v(tmp[5])}\nv_lshl_add_u32 {v(tmp[5])}, {v(tmp[3])}, 4, {v(tmp[5])}")
    k(f"v_mul_u32_u24 {v(tmp[6])}, 320, {v(half)}\nv_add_u32 {v(tmp[5])}, {v(tmp[5])}, {v(tmp[6])}")
    k(f"s_and_b32 s{sT0}, s{sRB}, 1\ns_lshl_b32 s{sT0}, s{sT0}, 3\ns_lshl_b32 s{sT1}, s{sM}, 2\ns_add_u32 s{sT0}, s{sT0}, s{sT1}\ns_mul_i32 s{sT0}, s{sT0}, 640")
    k(f"s_add_u32 s{sX}, s{sX}, s{sT0}\ns_add_u32 s{sX}, s{sX}, {VOFF}")
    k("s_waitcnt lgkmcnt(0)")
    PK = T + 64
    for i in range(2):
        for r in range(16):
            k(f"v_fmac_f32 {v(acc[i]+r)}, {v(CSv)}, {v(MRv+16*i+r)}")
        for r in range(16):
            k(f"v_mul_f32 {v(acc[i]+r)}, {v(acc[i]+r)}, {v(RSv+16*i+r)}")
        for g in range(2):
            p = PK + 8 * i + 4 * g
            for q in range(4):
                k(f"v_cvt_pk_bf16_f32 {v(p+q)}, {v(acc[i]+8*g+2*q)}, {v(acc[i]+8*g+2*q+1)}")
            k(f"buffer_store_dwordx4 {v(p,4)}, {v(tmp[5])}, s[36:39], s{sX} offen offset:{(2*i+g)*640}")
    k.label("L_qkv_end")
    if prof:
        k.stamp(5); k.stamp_real(7)
        k("s_sub_u32 s36, s36, 0")
        k.prof_store(8, 36, WS_END + PROF_OFF(k), tmp[0], sW)
    k.tl_end(2)
    k.label(done)
    k("s_endpgm")
    k.label(Lcs)
    k(f"s_load_dwordx4 s[44:47], s[0:1], {KA_W1}")
    k(f"v_mul_u32_u24 {v(tmp[0])}, 2428, v0\nv_lshrrev_b32 {v(tmp[0])}, 16, {v(tmp[0])}")
    k(f"v_mul_u32_u24 {v(tmp[1])}, 27, {v(tmp[0])}\nv_sub_u32 {v(tmp[1])}, v0, {v(tmp[1])}")
    k(f"s_and_b32 s{sT0}, s{sRB}, 7\ns_mul_i32 s{sT0}, s{sT0}, 432")
    k(f"v_mul_u32_u24 {v(tmp[2])}, {40*F*2}, {v(tmp[0])}\nv_lshl_add_u32 {v(tmp[2])}, {v(tmp[1])}, 4, {v(tmp[2])}\nv_add_u32 {v(tmp[2])}, s{sT0}, {v(tmp[2])}")
    k("s_waitcnt lgkmcnt(0)")
    k(f"s_cmp_ge_u32 s{sRB}, 8\ns_cselect_b32 s8, s46, s44\ns_cselect_b32 s9, s47, s45\ns_and_b32 s9, s9, 0xffff\ns_mov_b32 s10, {D*F*2}\ns_mov_b32 s11, 0x20000")
    A8 = FA[0][0][0]; LD = A8 + 8
    for i in range(8): k(f"v_mov_b32 {v(A8+i)}, 0")
    Lsk = k.L("cs_skip")
    k(f"v_cmp_gt_u32 vcc, 16, {v(tmp[0])}")
    k(f"s_and_saveexec_b64 s[40:41], vcc\ns_cbranch_execz {Lsk}")
    k(f"s_mov_b32 s{sT1}, 0")
    Lcl = k.L("cs_loop")
    k.label(Lcl)
    for i in range(10):
        k(f"buffer_load_dwordx4 {v(LD+4*i,4)}, {v(tmp[2])}, s[8:11], s{sT1} offen\ns_add_u32 s{sT1}, s{sT1}, {F*2}")
    for i in range(10):
        k(f"s_waitcnt vmcnt({9-i})")
        for q in range(4):
            x = LD + 4 * i + q
            k(f"v_lshlrev_b32 {v(tmp[4])}, 16, {v(x)}\nv_and_b32 {v(tmp[5])}, 0xffff0000, {v(x)}")
            k(f"v_add_f32 {v(A8+2*q)}, {v(A8+2*q)}, {v(tmp[4])}\nv_add_f32 {v(A8+2*q+1)}, {v(A8+2*q+1)}, {v(tmp[5])}")
    k(f"s_cmp_lt_u32 s{sT1}, {40*F*2}\ns_cbranch_scc1 {Lcl}")
    k(f"v_mul_u32_u24 {v(tmp[3])}, 864, {v(tmp[0])}\nv_lshl_add_u32 {v(tmp[3])}, {v(tmp[1])}, 5, {v(tmp[3])}")
    k(f"ds_write_b128 {v(tmp[3])}, {v(A8,4)}\nds_write_b128 {v(tmp[3])}, {v(A8+4,4)} offset:16")
    k.label(Lsk)
    k("s_mov_b64 exec, s[40:41]")
    k("s_waitcnt lgkmcnt(0)\ns_barrier")
    Lsk2 = k.L("cs_skip2")
    k(f"v_cmp_gt_u32 vcc, 216, v0")
    k(f"s_and_saveexec_b64 s[40:41], vcc\ns_cbranch_execz {Lsk2}")
    k(f"v_lshlrev_b32 {v(tmp[3])}, 2, v0")
    for i in range(16): k(f"ds_read_b32 {v(LD+i)}, {v(tmp[3])} offset:{864*i}")
    k("s_waitcnt lgkmcnt(0)")
    for i in range(1, 16): k(f"v_add_f32 {v(LD)}, {v(LD)}, {v(LD+i)}")
    k(f"s_add_u32 s36, s36, {WS_CS}\ns_addc_u32 s37, s37, 0\ns_and_b32 s37, s37, 0xffff\ns_mov_b32 s38, {CS_BYTES}\ns_mov_b32 s39, 0x20000")
    k(f"s_mul_i32 s{sT0}, s{sRB}, 864")
    k(f"buffer_store_dword {v(LD)}, {v(tmp[3])}, s[36:39], s{sT0} offen")
    k.label(Lsk2)
    k("s_endpgm")
    return k, nv, (102 if (prof or tl is not None) else 48)

if __name__ == "__main__":
    k, nv, ns = gen_qkv()
    print("vgprs", nv, "hazards", check_kernel(k), "lines", len(k.lines))
```

```python
from asm import *
from layout import *
def PROF_OFF(k): return PROF_IDX.get(k.name, 0) * 0x40000
import struct
def fbits(x): return struct.unpack("<I", struct.pack("<f", x))[0]

def gen_t2p(mode, prof=False, tl=None, PFC=None, NPRE=2, dbg=('notouch',)):
    name = {"oproj": "oproj_kernel", "down": "down_kernel"}[mode]
    KS = 20 if mode == "oproj" else 54
    if PFC is None: PFC = 2
    NSH = KS // 2
    chunks = []
    s0 = 0
    while s0 < NSH:
        n = min(4, NSH - s0); chunks.append((s0, n)); s0 += n
    NC = len(chunks)
    NSTG = min(PFC + 1, NC)
    STG = 20480
    HALF = NSTG * STG
    LDS = max(2 * HALF, 20480)
    TSTR = KS * 1024
    NRA = min(PFC + 1, NC)
    k = Kernel(name); k.prof = prof; k.tl = tl
    V = Alloc(1, 256)
    lane = V("lane"); tmp = [V(f"t{i}") for i in range(8)]
    vl16 = V("vl16")
    vB = [V(f"vB{h}") for h in range((HALF + 40959) // 40960)]
    res = V("res", 10, 2)
    acc = [V(f"acc{j}", 4, 4) for j in range(5)]
    FA = [[V(f"FA{r}{q}", 4, 4) for q in range(4)] for r in range(NRA)]
    FB = [[V(f"FB{b}{j}", 4, 4) for j in range(5)] for b in range(2)]
    P2 = V("P2", 24, 4)
    nv = V.next
    sW, sRB, sCB, sI, sKH = 16, 17, 18, 19, 27
    sT0, sT1, sT2, sT3 = 20, 21, 22, 23
    sA, sB, sL = 24, 25, 26
    done = k.L("done")
    k(f"s_cmp_ge_u32 s2, 256\ns_cbranch_scc1 {done}")
    k.tl_start()
    k.stamp(0); k.stamp_real(6)
    k(f"s_load_dwordx2 s[4:5], s[0:1], {KA_WS}")
    k(f"s_load_dwordx2 s[28:29], s[0:1], {KA_X if mode == 'oproj' else KA_OUT}")
    k(f"s_and_b32 s{sT0}, s2, 7\ns_lshr_b32 s{sT1}, s2, 3")
    k(f"s_lshr_b32 s{sT2}, s{sT0}, 1\ns_lshl_b32 s{sT2}, s{sT2}, 3\ns_and_b32 s{sT3}, s{sT1}, 7\ns_add_u32 s{sRB}, s{sT2}, s{sT3}")
    k(f"s_and_b32 s{sT2}, s{sT0}, 1\ns_lshl_b32 s{sT2}, s{sT2}, 2\ns_lshr_b32 s{sT3}, s{sT1}, 3\ns_add_u32 s{sCB}, s{sT2}, s{sT3}")
    k(f"v_and_b32 {v(lane)}, 63, v0\nv_lshrrev_b32 {v(tmp[0])}, 6, v0")
    k(f"v_lshlrev_b32 {v(vl16)}, 4, {v(lane)}")
    k(f"v_readfirstlane_b32 s{sW}, {v(tmp[0])}")
    k(f"s_and_b32 s{sI}, s{sW}, 3\ns_lshr_b32 s{sKH}, s{sW}, 2")
    k(f"s_lshl_b32 s{sT0}, s{sRB}, 2\ns_add_u32 s{sT0}, s{sT0}, s{sI}\ns_mul_i32 s{sA}, s{sT0}, {TSTR}\ns_mul_i32 s{sT0}, s{sKH}, {NSH*1024}\ns_add_u32 s{sA}, s{sA}, s{sT0}")
    k(f"s_mul_i32 s{sB}, s{sCB}, {KS*5120}\ns_mul_i32 s{sT0}, s{sKH}, {NSH*5120}\ns_add_u32 s{sB}, s{sB}, s{sT0}\ns_mul_i32 s{sT1}, s{sI}, 5120\ns_add_u32 s{sB}, s{sB}, s{sT1}")
    k(f"s_mul_i32 s{sT2}, s{sKH}, {HALF}\ns_add_u32 s{sL}, s{sT2}, s{sT1}")
    k(f"v_add_u32 {v(vB[0])}, s{sT2}, {v(vl16)}")
    for h in range(1, len(vB)): k(f"v_add_u32 {v(vB[h])}, {h*40960}, {v(vB[0])}")
    k("s_waitcnt lgkmcnt(0)")
    aoff, abytes = (WS_O, O_BYTES) if mode == "oproj" else (WS_HH, HH_BYTES)
    boff, bbytes = (WS_WOP, WOP_BYTES) if mode == "oproj" else (WS_W2P, W2P_BYTES)
    k(f"s_add_u32 s8, s4, {aoff}\ns_addc_u32 s9, s5, 0\ns_and_b32 s9, s9, 0xffff\ns_mov_b32 s10, {abytes}\ns_mov_b32 s11, 0x20000")
    k(f"s_add_u32 s12, s4, {boff}\ns_addc_u32 s13, s5, 0\ns_and_b32 s13, s13, 0xffff\ns_mov_b32 s14, {bbytes}\ns_mov_b32 s15, 0x20000")
    def load_ops(c):
        s0, n = chunks[c]; stg = (c % NSTG) * STG
        ops = []
        for p in range(4):
            pre = f"s_add_u32 m0, s{sL}, {stg}\ns_add_u32 s{sT0}, s{sB}, {s0*5120}\n" if p == 0 else ""
            ops.append(pre + f"buffer_load_dwordx4 {v(vl16)}, s[12:15], s{sT0} offen offset:{p*1024} lds")
        ops.append(f"s_add_u32 m0, s{sL}, {stg+4096}\ns_add_u32 s{sT1}, s{sB}, {s0*5120+4096}\nbuffer_load_dwordx4 {v(vl16)}, s[12:15], s{sT1} offen lds")
        for q in range(n):
            pre = f"s_add_u32 s{sT2}, s{sA}, {s0*1024}\n" if q == 0 else ""
            ops.append(pre + f"buffer_load_dwordx4 {v(FA[c % NRA][q],4)}, {v(vl16)}, s[8:11], s{sT2} offen offset:{q*1024}")
        if 'noA' in dbg: ops = ops[:5]
        if 'noB' in dbg: ops = ops[5:]
        return ops
    nops = [len(load_ops(c)) for c in range(NC)]
    npre = min(NPRE, NC)
    vt = V("vt", 2, 2)
    nv = V.next
    ntouch = 0
    for c in range(npre):
        for o in load_ops(c): k(o)
        if c == 0 and 'notouch' not in dbg:
            nl = 32 * TSTR // 128 // 256
            k(f"s_lshr_b32 s{sT0}, s2, 3\ns_lshl_b32 s{sT0}, s{sT0}, 3\ns_add_u32 s{sT0}, s{sT0}, s{sW}\ns_mul_i32 s{sT0}, s{sT0}, {nl*128}")
            k(f"s_bfe_u32 s{sT1}, s2, 0x20001\ns_mul_i32 s{sT1}, s{sT1}, {32*TSTR}\ns_add_u32 s{sT0}, s{sT0}, s{sT1}")
            k(f"v_min_u32 {v(vt)}, {nl-1}, {v(lane)}\nv_lshlrev_b32 {v(vt)}, 7, {v(vt)}")
            k(f"buffer_load_dword {v(vt+1)}, {v(vt)}, s[8:11], s{sT0} offen")
            ntouch = 1
    k.stamp(1)
    tok, G = tmp[4], tmp[5]
    k(f"v_and_b32 {v(tok)}, 15, {v(lane)}\nv_lshrrev_b32 {v(G)}, 4, {v(lane)}")
    k(f"s_lshl_b32 s{sT0}, s{sRB}, 6\ns_lshl_b32 s{sT1}, s{sI}, 4\ns_add_u32 s{sT0}, s{sT0}, s{sT1}\nv_add_u32 {v(tok)}, s{sT0}, {v(tok)}")
    hb = tmp[6]
    k(f"v_lshrrev_b32 {v(tmp[0])}, 5, {v(tok)}\nv_mul_u32_u24 {v(hb)}, 40960, {v(tmp[0])}")
    k(f"v_and_b32 {v(tmp[0])}, 31, {v(tok)}\nv_lshl_add_u32 {v(hb)}, {v(tmp[0])}, 4, {v(hb)}")
    k(f"v_lshrrev_b32 {v(tmp[0])}, 1, {v(G)}\nv_lshl_add_u32 {v(hb)}, {v(tmp[0])}, 9, {v(hb)}")
    k(f"v_and_b32 {v(tmp[0])}, 1, {v(G)}\nv_lshl_add_u32 {v(hb)}, {v(tmp[0])}, 3, {v(hb)}")
    rm = tmp[7]
    k(f"v_mul_u32_u24 {v(rm)}, 1280, {v(tok)}\nv_lshl_add_u32 {v(rm)}, {v(G)}, 3, {v(rm)}")
    k(f"s_add_u32 s32, s4, {WS_H}\ns_addc_u32 s33, s5, 0\ns_and_b32 s33, s33, 0xffff\ns_mov_b32 s34, {H_BYTES}\ns_mov_b32 s35, 0x20000")
    k(f"s_mov_b32 s36, s28\ns_and_b32 s37, s29, 0xffff\ns_mov_b32 s38, {S*D*2}\ns_mov_b32 s39, 0x20000")
    k(f"s_mul_i32 s40, s{sCB}, 5120\ns_mul_i32 s41, s{sCB}, 160\ns_add_u32 s42, s40, 4096")
    def bread(c, q, j):
        off = (c % NSTG) * STG + (q * 5 + j) * 1024
        h = off // 40960
        gs = chunks[c][0] + q
        return f"ds_read_b128 {v(FB[gs & 1][j],4)}, {v(vB[h])} offset:{off - h*40960}"
    pend = []
    for c in range(npre):
        pend += [c] * nops[c]
        if c == 0: pend += [-3] * ntouch
    def wait_chunk(c):
        idx = max(i for i, x in enumerate(pend) if x == c)
        k(f"s_waitcnt vmcnt({len(pend) - 1 - idx}) lgkmcnt(0)\ns_barrier")
    wait_chunk(0)
    k.stamp(2)
    for j in range(5): k(bread(0, 0, j))
    nxt_load = npre
    steps = [(c, q) for c in range(NC) for q in range(chunks[c][1])]
    res_issued = False
    for si, (c, q) in enumerate(steps):
        gs = chunks[c][0] + q
        last = si + 1 == len(steps)
        if not last:
            c2, q2 = steps[si + 1]
            if c2 != c: wait_chunk(c2)
        trick = []
        if q == 0:
            todo = []
            while nxt_load < NC and nxt_load <= c + PFC and nxt_load < c + NSTG + (1 if False else 0) and len(todo) < (20 if c == 0 else 9):
                todo += [(nxt_load, o) for o in load_ops(nxt_load)]; nxt_load += 1
            n_ = chunks[c][1]
            per = (len(todo) + n_ - 1) // n_
            sched = [todo[i*per:(i+1)*per] for i in range(n_)]
        trick = sched[q]
        for j in range(5):
            k(f"s_waitcnt lgkmcnt({4 if not last else 4 - j})") if not (last and j == 4) else k("s_waitcnt lgkmcnt(0)")
            cin = v(acc[j], 4) if si > 0 else "0"
            if 'nomfma' not in dbg: k(f"v_mfma_f32_16x16x32_bf16 {v(acc[j],4)}, {v(FB[gs & 1][j],4)}, {v(FA[c % NRA][q],4)}, {cin}")
            if not last: k(bread(c2, q2, j))
            for (cc, o) in trick[j::5]:
                k(o); pend.append(cc)
        if si == len(steps) - 6 or (len(steps) < 6 and si == 0):
            for j in range(5):
                if mode == "oproj": k(f"buffer_load_dwordx2 {v(res+2*j,2)}, {v(rm)}, s[36:39], s41 offen offset:{32*j}")
                else: k(f"buffer_load_dwordx2 {v(res+2*j,2)}, {v(hb)}, s[32:35], {'s40' if j < 4 else 's42'} offen" + (f" offset:{1024*j}" if j < 4 else ""))
                pend.append(-1)
    assert nxt_load == NC
    k.stamp(3)
    Lw = k.L("wr"); Lend = k.L("end")
    k.nop(8)
    k("s_barrier")
    k(f"s_mul_i32 s{sT0}, s{sI}, 5120\nv_add_u32 {v(tmp[1])}, s{sT0}, {v(vl16)}")
    k(f"s_cmp_eq_u32 s{sKH}, 0\ns_cbranch_scc1 {Lw}")
    for j in range(5): k(f"ds_write_b128 {v(tmp[1])}, {v(acc[j],4)} offset:{j*1024}")
    k("s_waitcnt lgkmcnt(0)\ns_barrier")
    k(f"s_branch {Lend}")
    k.label(Lw)
    k("s_barrier")
    P = P2
    for j in range(5): k(f"ds_read_b128 {v(P+4*j,4)}, {v(tmp[1])} offset:{j*1024}")
    k("s_waitcnt lgkmcnt(0)")
    for j in range(5):
        for r in range(4): k(f"v_add_f32 {v(P+4*j+r)}, {v(P+4*j+r)}, {v(acc[j]+r)}")
    k.stamp(4)
    k("s_waitcnt vmcnt(0)")
    U = P + 20
    for j in range(5):
        for q in range(2):
            x = res + 2 * j + q
            k(f"v_lshlrev_b32 {v(U)}, 16, {v(x)}\nv_and_b32 {v(U+1)}, 0xffff0000, {v(x)}")
            k(f"v_add_f32 {v(P+4*j+2*q)}, {v(P+4*j+2*q)}, {v(U)}\nv_add_f32 {v(P+4*j+2*q+1)}, {v(P+4*j+2*q+1)}, {v(U+1)}")
            k(f"v_cvt_pk_bf16_f32 {v(x)}, {v(P+4*j+2*q)}, {v(P+4*j+2*q+1)}")
    if mode == "oproj":
        for j in range(5):
            k(f"buffer_store_dwordx2 {v(res+2*j,2)}, {v(hb)}, s[32:35], {'s40' if j < 4 else 's42'} offen" + (f" offset:{1024*j}" if j < 4 else ""))
        U = FA[0][0]
        sm, sq = U + 2, U + 3
        k(f"v_mov_b32 {v(sm)}, 0\nv_mov_b32 {v(sq)}, 0")
        for x in range(10):
            k(f"v_lshlrev_b32 {v(U)}, 16, {v(res+x)}\nv_and_b32 {v(U+1)}, 0xffff0000, {v(res+x)}")
            k(f"v_add_f32 {v(sm)}, {v(sm)}, {v(U)}\nv_fmac_f32 {v(sq)}, {v(U)}, {v(U)}\nv_add_f32 {v(sm)}, {v(sm)}, {v(U+1)}\nv_fmac_f32 {v(sq)}, {v(U+1)}, {v(U+1)}")
        for sw in ("v_permlane16_swap_b32", "v_permlane32_swap_b32"):
            k(f"v_mov_b32 {v(U+4)}, {v(sm)}\nv_mov_b32 {v(U+5)}, {v(sm)}\nv_mov_b32 {v(U+6)}, {v(sq)}\nv_mov_b32 {v(U+7)}, {v(sq)}")
            k.nop(2)
            k(f"{sw} {v(U+4)}, {v(U+5)}\n{sw} {v(U+6)}, {v(U+7)}")
            k.nop(1)
            k(f"v_add_f32 {v(sm)}, {v(U+4)}, {v(U+5)}\nv_add_f32 {v(sq)}, {v(U+6)}, {v(U+7)}")
        k(f"s_add_u32 s44, s4, {WS_ST}\ns_addc_u32 s45, s5, 0\ns_and_b32 s45, s45, 0xffff\ns_mov_b32 s46, {ST_BYTES}\ns_mov_b32 s47, 0x20000")
        k(f"v_lshlrev_b32 {v(tmp[0])}, 6, {v(tok)}\ns_lshl_b32 s{sT0}, s{sCB}, 3")
        k("s_mov_b64 exec, 0xffff")
        k(f"buffer_store_dwordx2 {v(sm,2)}, {v(tmp[0])}, s[44:47], s{sT0} offen")
        k("s_mov_b64 exec, -1")
    else:
        for j in range(5):
            k(f"buffer_store_dwordx2 {v(res+2*j,2)}, {v(rm)}, s[36:39], s41 offen offset:{32*j}")
    k.label(Lend)
    if prof:
        Lp = k.L("p4")
        k(f"s_cmp_eq_u32 s{sKH}, 0\ns_cbranch_scc1 {Lp}")
        k.stamp(4)
        k.label(Lp)
    k.stamp(5); k.stamp_real(7)
    k.prof_store(8, 4, WS_END + PROF_OFF(k), tmp[0], sW)
    k.tl_end(2)
    k.label(done)
    k("s_endpgm")
    return k, nv, (102 if (prof or tl is not None) else 56), LDS

if __name__ == "__main__":
    for m in ("oproj", "down"):
        k, nv, ns, lds = gen_t2p(m)
        print(m, "vgprs", nv, "hazards", check_kernel(k), "lines", len(k.lines), "lds", lds)
```

```python
S = 2048; D = 640; H = 32; DH = 20; F = 1728
HEAD_STRIDE = 245760
BLK_STRIDE = 30720
K1OFF = 0; K2OFF = 8192; VOFF = 10240; Q1OFF = 20480; Q2OFF = 28672
LBLK = 20480
WS_QKV = 0
QKV_BYTES = 32 * HEAD_STRIDE
WS_O = QKV_BYTES
O_BYTES = S * D * 2
WS_H = WS_O + O_BYTES
H_BYTES = S * D * 2
WS_ST = WS_H + H_BYTES
ST_BYTES = S * 8 * 2 * 4
WS_HH = WS_ST + ST_BYTES
HH_BYTES = S * F * 2
WS_CS = WS_HH + HH_BYTES
CS_BYTES = 2 * F * 4
WS_WOP = (WS_CS + CS_BYTES + 1023) // 1024 * 1024
WOP_BYTES = 800 * 1024
WS_W2P = WS_WOP + WOP_BYTES
W2P_BYTES = 2160 * 1024
WS_END = WS_W2P + W2P_BYTES
PROF_IDX = {'qkv_kernel':0,'attn_kernel':1,'oproj_kernel':2,'ffn_kernel':3,'down_kernel':4}
KA_X = 0; KA_WQKV = 8; KA_WO = 16; KA_BX = 24; KA_W1 = 32; KA_W3 = 40; KA_W2 = 48; KA_OUT = 56; KA_DBG = 64; KA_WS = 72
import math
QSCALE = (DH ** -0.5) * math.log2(math.e)
```

```python
import sys
from asm import *
from layout import *
import build as B, k_qkv, k_attn, k_t3, k_ffn, k_t2p
def make(prof=False, tl=False, attn_dbg=(), ffn_dbg=(), qkv_dbg=('notouch',), t2p_kw={}, pf=True):
    T = (lambda i: i) if tl else (lambda i: None)
    k1, nv1, ns1 = k_qkv.gen_qkv(prof=prof, tl=T(0), dbg=qkv_dbg)
    k2, nv2, ns2 = k_attn.gen_attn(prof=prof, tl=T(1), dbg=attn_dbg, pf_code=('oproj_kernel' if pf else None))
    k3, nv3, ns3, l3 = k_t2p.gen_t2p("oproj", prof=prof, tl=T(2), **t2p_kw)
    k4, nv4, ns4 = k_ffn.gen_ffn(prof=prof, tl=T(3), dbg=ffn_dbg, pf_code=('down_kernel' if pf else None))
    k5, nv5, ns5, l5 = k_t2p.gen_t2p("down", prof=prof, tl=T(4), **t2p_kw)
    ks = [(k1, nv1, ns1, 256, 512, k_qkv.LDS_QKV), (k2, nv2, ns2, 256, 512, 163840), (k3, nv3, ns3, 256, 512, l3),
          (k4, nv4, ns4, 256, 512, k_ffn.LDS_FFN), (k5, nv5, ns5, 256, 512, l5)]
    return ks
if __name__ == "__main__":
    out = B.assemble(make(tl=("--tl" in sys.argv)))
    path = sys.argv[1] if len(sys.argv) > 1 else "sequential_preLN__softmax_full_mha__glu_gated_swiglu__prompt.s"
    open(path, "w").write(out)
    print("wrote", path, len(out), "bytes")
```

```python
import re

def v(b, n=1):
    return f"v{b}" if n == 1 else f"v[{b}:{b+n-1}]"
def a(b, n=1):
    return f"a{b}" if n == 1 else f"a[{b}:{b+n-1}]"
def s(b, n=1):
    return f"s{b}" if n == 1 else f"s[{b}:{b+n-1}]"

class Alloc:
    def __init__(self, start=0, limit=256):
        self.next = start; self.limit = limit; self.names = {}
    def __call__(self, name, n=1, align=1):
        b = (self.next + align - 1) // align * align
        self.next = b + n
        assert self.next <= self.limit, f"out of registers allocating {name}: {self.next}"
        self.names[name] = (b, n)
        return b

class Kernel:
    def __init__(self, name):
        self.name = name; self.lines = []; self.uid = 0
    def __call__(self, txt):
        for t in txt.split("\n"):
            t = t.strip()
            if t: self.lines.append(t if t.endswith(":") else "  " + t)
    def label(self, l): self.lines.append(f"{l}:")
    def L(self, base):
        self.uid += 1
        return f"L_{self.name}_{base}_{self.uid}"
    def c(self, txt): self.lines.append(f"  ; {txt}")
    def nop(self, n):
        while n > 0:
            k = min(n, 16); self(f"s_nop {k-1}"); n -= k
    prof = False
    def stamp(self, i):
        if self.prof and self.prof != "light":
            self(f"s_memtime s[{64+2*i}:{65+2*i}]")
    def stamp_real(self, i):
        if self.prof:
            self(f"s_memrealtime s[{64+2*i}:{65+2*i}]")
    def prof_store(self, n, ws_pair, off, vtmp, wave_sgpr):
        if not self.prof: return
        if self.prof == "light":
            self("s_waitcnt lgkmcnt(0)")
            self(f"s_add_u32 s96, s{ws_pair}, {off}\ns_addc_u32 s97, s{ws_pair+1}, 0\ns_and_b32 s97, s97, 0xffff\ns_mov_b32 s98, 0x40000\ns_mov_b32 s99, 0x20000")
            self(f"s_lshl_b32 s62, s2, 4\ns_add_u32 s62, s62, s{wave_sgpr}\ns_lshl_b32 s62, s62, 6")
            self("s_mov_b64 exec, 1")
            self(f"v_mov_b32 v{vtmp}, s76\nv_mov_b32 v{vtmp+1}, s78\nv_mov_b32 v{vtmp+2}, 24")
            self(f"buffer_store_dwordx2 v[{vtmp}:{vtmp+1}], v{vtmp+2}, s[96:99], s62 offen")
            return
        self("s_waitcnt lgkmcnt(0)")
        self(f"s_add_u32 s96, s{ws_pair}, {off}\ns_addc_u32 s97, s{ws_pair+1}, 0\ns_and_b32 s97, s97, 0xffff\ns_mov_b32 s98, 0x40000\ns_mov_b32 s99, 0x20000")
        self(f"s_lshl_b32 s62, s2, 4\ns_add_u32 s62, s62, s{wave_sgpr}\ns_lshl_b32 s62, s62, 6")
        self("s_mov_b64 exec, 1")
        for i in range(n):
            self(f"v_mov_b32 v{vtmp}, s{64+2*i}")
            self(f"v_mov_b32 v{vtmp+1}, {4*i}")
            self(f"buffer_store_dword v{vtmp}, v{vtmp+1}, s[96:99], s62 offen")
            self("s_waitcnt vmcnt(0)")
        self("s_mov_b64 exec, -1")
    tl = None
    def tl_start(self):
        if self.tl is None: return
        self("s_memrealtime s[90:91]\ns_load_dwordx2 s[92:93], s[0:1], 64")
    def tl_end(self, vt):
        if self.tl is None: return
        i = self.tl
        L = self.L("tlskip")
        self("s_waitcnt vmcnt(0) lgkmcnt(0)\ns_memrealtime s[94:95]\ns_waitcnt lgkmcnt(0)")
        self(f"s_cmp_lg_u32 s2, 0\ns_cbranch_scc1 {L}")
        self(f"v_readfirstlane_b32 s95, v0\ns_nop 4\ns_cmp_ge_u32 s95, 64\ns_cbranch_scc1 {L}")
        for tgt in (0, 4):
            d = (tgt - i) * 512
            if d >= 0: self(f"s_add_u32 s96, s92, {d}\ns_addc_u32 s97, s93, 0")
            else: self(f"s_sub_u32 s96, s92, {-d}\ns_subb_u32 s97, s93, 0")
            self("s_and_b32 s97, s97, 0xffff\ns_mov_b32 s98, 256\ns_mov_b32 s99, 0x20000\ns_mov_b64 exec, 1")
            self(f"v_mov_b32 v{vt}, s90\nv_mov_b32 v{vt+1}, s94\nv_mov_b32 v{vt+2}, {8*i}")
            self(f"buffer_store_dwordx2 v[{vt}:{vt+1}], v{vt+2}, s[96:99], 0 offen")
            self("s_waitcnt vmcnt(0)")
        self.label(L)
    def code_prefetch(self, target, vaddr, vdst, spair, swave, lane, stmp):
        Lh = self.L("here")
        self(f"s_getpc_b64 s[{spair}:{spair+1}]")
        self.label(Lh)
        self(f"s_add_u32 s{spair}, s{spair}, {target} - {Lh}\ns_addc_u32 s{spair+1}, s{spair+1}, 0")
        self(f"v_lshlrev_b32 v{vaddr}, 7, v{lane}\ns_lshl_b32 s{stmp}, s{swave}, 13\nv_add_u32 v{vaddr}, s{stmp}, v{vaddr}")
        self(f"v_min_u32 v{vaddr}, {target}_end - {target} - 4, v{vaddr}")
        self(f"global_load_dword v{vdst}, v{vaddr}, s[{spair}:{spair+1}]")
    def code_prefetch_dist(self, targets, vaddr, vdst, spair, stmp):
        Lh = self.L("here")
        self(f"s_getpc_b64 s[{spair}:{spair+1}]")
        self.label(Lh)
        self(f"s_lshr_b32 s{stmp}, s2, 3\ns_and_b32 s{stmp}, s{stmp}, 31\ns_lshl_b32 s{stmp}, s{stmp}, 10")
        self(f"v_lshrrev_b32 v{vaddr}, 6, v0\nv_lshlrev_b32 v{vaddr}, 7, v{vaddr}\nv_add_u32 v{vaddr}, s{stmp}, v{vaddr}")
        self(f"s_mov_b64 s[{spair+2}:{spair+3}], exec\ns_mov_b64 exec, 1")
        self(f"s_sub_u32 s{spair+4}, s{spair}, 0x100000\ns_subb_u32 s{spair+5}, s{spair+1}, 0")
        for t in targets:
            self(f"v_min_u32 v{vdst+1}, {t}_end - {t} - 4, v{vaddr}")
            self(f"v_add_u32 v{vdst+1}, {t} - {Lh} + 0x100000, v{vdst+1}")
            self(f"global_load_dword v{vdst}, v{vdst+1}, s[{spair+4}:{spair+5}]")
        self(f"s_mov_b64 exec, s[{spair+2}:{spair+3}]")
    def text(self, nvgpr, nsgpr, accum_offset=None, extra=()):
        nv = nvgpr
        ao = accum_offset if accum_offset is not None else (nv + 3) // 4 * 4
        head = f""".text
.globl {self.name}
.p2align 8
.type {self.name},@function
{self.name}:
"""
        tail = f"""
.section .rodata,"a"
.p2align 6
.amdhsa_kernel {self.name}
  .amdhsa_next_free_vgpr {nv}
  .amdhsa_next_free_sgpr {nsgpr}
  .amdhsa_accum_offset {ao}
  .amdhsa_group_segment_fixed_size 0
  .amdhsa_kernarg_size 80
  .amdhsa_user_sgpr_count 2
  .amdhsa_user_sgpr_kernarg_segment_ptr 1
  .amdhsa_system_sgpr_workgroup_id_x 1
  .amdhsa_float_denorm_mode_32 3
  .amdhsa_float_denorm_mode_16_64 3
.end_amdhsa_kernel
"""
        return head + "\n".join(self.lines) + f"\n{self.name}_end:\n" + tail

_reg_re = re.compile(r"\b([vas])(\d+)\b|\b([vas])\[(\d+):(\d+)\]")
def regs_of(op):
    out = []
    op = op.strip()
    m = re.fullmatch(r"-?\|?(?:abs\()?([vas])(\d+)\)?\|?", op)
    if m: return [(m.group(1), int(m.group(2)))]
    m = re.fullmatch(r"-?([vas])\[(\d+):(\d+)\]", op)
    if m: return [(m.group(1), i) for i in range(int(m.group(2)), int(m.group(3)) + 1)]
    if op in ("vcc", "vcc_lo", "vcc_hi"): return [("s", "vcc")]
    if op in ("exec", "exec_lo", "exec_hi"): return [("s", "exec")]
    if op == "m0": return [("s", "m0")]
    return []

TRANS = ("v_exp_f32", "v_log_f32", "v_rcp_f32", "v_rsq_f32", "v_sqrt_f32", "v_sin_f32", "v_cos_f32", "v_exp_f16", "v_rcp_iflag_f32")
def parse(line):
    t = line.split(";")[0].strip()
    if not t or t.endswith(":") or t.startswith("."): return None
    parts = t.split(None, 1)
    opc = parts[0]
    ops = []
    if len(parts) > 1:
        cur = ""; depth = 0
        for ch in parts[1]:
            if ch in "[(": depth += 1
            if ch in "])": depth -= 1
            if ch == "," and depth == 0: ops.append(cur.strip()); cur = ""
            else: cur += ch
        ops.append(cur.strip())
        last = ops[-1].split()
        ops[-1] = last[0]; mods = last[1:]
    else:
        mods = []
    return opc, ops, mods

def passes(opc):
    if "32x32x16" in opc or "32x32x8" in opc: return 8
    if "16x16x32" in opc or "16x16x16" in opc: return 4
    raise ValueError(opc)

class Ins:
    __slots__ = ("opc", "dst", "src", "srcc", "kind", "states", "line", "mods", "ops")

def decode(line):
    p = parse(line)
    if p is None: return None
    opc, ops, mods = p
    I = Ins(); I.opc = opc; I.line = line.strip(); I.mods = mods; I.ops = ops
    I.dst = []; I.src = []; I.srcc = []; I.states = 1
    base = opc.replace("_e32", "").replace("_e64", "").replace("_dpp", "").replace("_sdwa", "")
    if opc == "s_nop":
        I.kind = "nop"; I.states = int(ops[0], 0) + 1; return I
    if opc.startswith("v_mfma"):
        I.kind = "mfma"; I.dst = regs_of(ops[0]); I.src = regs_of(ops[1]) + regs_of(ops[2]); I.srcc = regs_of(ops[3]); return I
    if opc.startswith("v_"):
        I.kind = "valu"
        if base in TRANS: I.kind = "trans"
        if base.startswith("v_cmp"):
            I.dst = regs_of(ops[0]); I.src = sum((regs_of(o) for o in ops[1:]), [])
            if base.startswith("v_cmpx"): I.dst += [("s", "exec")]
        elif base in ("v_readfirstlane_b32", "v_readlane_b32"):
            I.dst = regs_of(ops[0]); I.src = sum((regs_of(o) for o in ops[1:]), []); I.kind = "readlane"
        elif base in ("v_permlane32_swap_b32", "v_permlane16_swap_b32", "v_swap_b32"):
            I.dst = regs_of(ops[0]) + regs_of(ops[1]); I.src = list(I.dst)
            I.kind = "permlane" if "permlane" in base else "valu"
        elif base in ("v_add_co_u32", "v_sub_co_u32", "v_addc_co_u32", "v_subb_co_u32", "v_div_scale_f32", "v_mad_u64_u32"):
            I.dst = regs_of(ops[0]) + regs_of(ops[1]); I.src = sum((regs_of(o) for o in ops[2:]), [])
        else:
            I.dst = regs_of(ops[0]); I.src = sum((regs_of(o) for o in ops[1:]), [])
            if base in ("v_fmac_f32", "v_dot2c_f32_bf16", "v_writelane_b32", "v_pk_fmac_f16") or "UNUSED_PRESERVE" in " ".join(mods):
                I.src += I.dst
            if base == "v_cndmask_b32" and len(ops) == 3: I.src += [("s", "vcc")]
        if "dpp" in opc or any(m.startswith(("quad_perm", "row_", "wave_")) for m in mods):
            I.kind = "dpp" if I.kind == "valu" else I.kind
        return I
    if opc.startswith("ds_"):
        I.kind = "ds"
        if opc.startswith(("ds_read", "ds_bpermute", "ds_permute", "ds_swizzle")):
            I.dst = regs_of(ops[0]); I.src = sum((regs_of(o) for o in ops[1:]), [])
        else:
            I.src = sum((regs_of(o) for o in ops), [])
        return I
    if opc.startswith(("buffer_", "global_")):
        I.kind = "vmem"
        islds = "lds" in mods or "load_lds" in opc
        if "load" in opc and not islds:
            I.dst = regs_of(ops[0]); I.src = sum((regs_of(o) for o in ops[1:]), [])
        else:
            I.src = sum((regs_of(o) for o in ops), [])
        if islds: I.src += [("s", "m0")]; I.kind = "vmem_lds"
        if "store" in opc: I.kind = "vmem_store"
        return I
    if opc.startswith("s_"):
        I.kind = "salu"
        if opc.startswith(("s_cmp", "s_cbranch", "s_branch", "s_waitcnt", "s_barrier", "s_endpgm", "s_setprio", "s_sleep", "s_bitcmp")):
            I.src = sum((regs_of(o) for o in ops), [])
        else:
            I.dst = regs_of(ops[0]) if ops else []; I.src = sum((regs_of(o) for o in ops[1:]), [])
            if "saveexec" in opc: I.dst += [("s", "exec")]
        return I
    raise ValueError("unknown instr: " + line)

def isv(r): return r[0] in ("v", "a")

def check_seq(ins, name, problems):
    n = len(ins)
    for i, I in enumerate(ins):
        dist = 0
        D = set(I.dst)
        for j in range(i + 1, min(n, i + 40)):
            J = ins[j]
            need = 0; why = ""
            Jsrc = set(J.src); Jc = set(J.srcc); Jd = set(J.dst)
            if I.kind == "mfma":
                p = passes(I.opc)
                tbl = {4: (6, 8, 8, 3), 8: (10, 12, 12, 7)}[p]
                if J.kind == "mfma":
                    if D & Jc:
                        exact = (list(I.dst) == list(J.srcc)) and passes(J.opc) == p
                        if not exact: need = max(need, tbl[0]); why = "mfma D->mfma C partial"
                    if D & Jsrc: need = max(need, tbl[1]); why = "mfma D->mfma A/B"
                else:
                    if D & (Jsrc | Jd) and J.kind in ("valu", "trans", "dpp", "permlane", "readlane", "vmem", "vmem_store", "vmem_lds", "ds"):
                        need = max(need, tbl[2]); why = "mfma D->valu/mem"
                    if set(I.srcc) & Jd and J.kind in ("valu", "trans", "dpp", "permlane") :
                        need = max(need, tbl[3]); why = why or "mfma C read -> valu write (WAR)"
            if I.kind in ("valu", "trans", "dpp", "permlane", "readlane"):
                Dv = {r for r in D if isv(r)}; Ds = {r for r in D if not isv(r)}
                if J.kind == "mfma" and Dv & (Jsrc | Jc): need = max(need, 2); why = "valu->mfma operand"
                if I.kind == "trans" and J.kind in ("valu", "dpp", "permlane", "readlane", "mfma") and Dv & (Jsrc | Jc) : need = max(need, 1); why = why or "trans->use"
                if J.kind == "dpp" and Dv & Jsrc: need = max(need, 2); why = "valu->dpp"
                if J.kind == "permlane" and Dv & Jsrc: need = max(need, 2); why = "valu->permlane"
                if J.kind == "readlane" and Dv & Jsrc: need = max(need, 1); why = "valu->readlane"
                if Ds:
                    if J.kind in ("vmem", "vmem_store", "vmem_lds") and Ds & Jsrc: need = max(need, 5); why = "valu sgpr write->vmem"
                    if J.kind in ("valu", "trans", "dpp", "permlane", "mfma") and Ds & Jsrc and ("s", "exec") not in Ds: need = max(need, 2); why = "valu sgpr write->valu read"
                    if J.kind == "readlane" and Ds & Jsrc: need = max(need, 4); why = "valu sgpr->readlane sel"
                    if ("s", "exec") in Ds and J.kind == "mfma": need = max(need, 4); why = "valu exec->mfma"
                    if ("s", "exec") in Ds and J.kind in ("dpp",): need = max(need, 5); why = "valu exec->dpp"
                    if ("s", "exec") in Ds and J.kind in ("readlane", "permlane"): need = max(need, 4); why = "valu exec->lane op"
            if I.kind == "salu" and ("s", "m0") in D and J.kind == "vmem_lds": need = max(need, 1); why = "m0->lds dma"
            if I.kind == "vmem_store" and ("x4" in I.opc or "x3" in I.opc):
                data = set(regs_of(I.ops[0])) if I.opc.startswith("buffer") else set(regs_of(I.ops[1]))
                if data & Jd:
                    need = max(need, 2 if J.kind in ("valu", "trans", "dpp", "permlane") else 1); why = "wide store data WAR"
            if need > dist:
                problems.append(f"[{name}] {why}: need {need} have {dist}\n    {I.line}\n    {J.line}")
            dist += J.states
            if dist >= 21: break

def check_kernel(k):
    items = []
    labels = {}
    for ln in k.lines:
        t = ln.split(";")[0].strip()
        if t.endswith(":"):
            labels[t[:-1]] = len(items); continue
        I = decode(ln)
        if I is not None: items.append(I)
    problems = []
    check_seq(items, k.name + ":linear", problems)
    for i, I in enumerate(items):
        if I.opc.startswith(("s_cbranch", "s_branch")):
            tgt = labels.get(I.ops[0])
            if tgt is None: raise ValueError("label? " + I.line)
            seq = items[max(0, i - 40): i + 1] + items[tgt: tgt + 40]
            check_seq(seq, k.name + f":branch@{I.line}", problems)
    seen = [];
    for p in problems:
        key = p.split("\n", 1)[1]
        if key not in seen: seen.append(key); print("HAZARD", p)
    return len(seen)
```

```python
from asm import *
from layout import *
def PROF_OFF(k): return PROF_IDX.get(k.name, 0) * 0x40000
import struct
def fbits(x): return struct.unpack("<I", struct.pack("<f", x))[0]

def gen_attn(name="attn_kernel", prof=False, tl=None, dbg=(), pf_code=None):
    k = Kernel(name); k.prof = prof; k.tl = tl
    V = Alloc(1, 256)
    lane = V("lane"); tmp = [V(f"t{i}") for i in range(8)]
    aK1 = V("aK1"); aK2 = V("aK2"); aV = V("aV"); vl16 = V("lane16")
    oad = [V(f"oad{j}") for j in range(3)]
    QA1 = V("QA1", 4, 4); QA2 = V("QA2", 4, 4); QB1 = V("QB1", 4, 4); QB2 = V("QB2", 4, 4)
    Kf = [(V(f"K{i}f1", 4, 4), V(f"K{i}f2", 4, 4)) for i in range(2)]
    Vf = [(V(f"V{i}f1", 4, 4), V(f"V{i}f2", 4, 4)) for i in range(2)]
    PA = V("PA", 8, 4); PB = V("PB", 8, 4)
    NA = V("negmA", 16, 4); NB = V("negmB", 16, 4)
    SA = V("SA", 16, 4); SB = V("SB", 16, 4)
    OA = V("OA", 16, 4); OB = V("OB", 16, 4)
    PKW = V("PKW", 16, 4); vpk = V("vpk"); vpf = V("vpf", 2, 2); vpf2 = V("vpf2", 2, 2)
    nv = V.next
    sW, sG, sKH, sH, sQB = 16, 17, 18, 19, 20
    sT0, sT1, sT2, sT3 = 21, 22, 23, 28
    sVM = 24
    sIt, sNmax, sBar = 26, 27, 29
    sThr = 30; sT = 31; sLB = 32
    sDG, sDL = 66, 67
    sDG, sDL = 84, 85
    done = k.L("done")
    k(f"s_cmp_ge_u32 s2, 256\ns_cbranch_scc1 {done}")
    k.tl_start()
    k.stamp(0); k.stamp_real(6)
    k(f"s_load_dwordx2 s[4:5], s[0:1], {KA_WS}")
    k(f"s_load_dwordx2 s[34:35], s[0:1], {KA_WO}")
    k(f"s_load_dwordx4 s[80:83], s[0:1], {KA_W1}")
    k(f"s_load_dwordx2 s[36:37], s[0:1], {KA_W2}")
    k(f"v_and_b32 {v(lane)}, 63, v0")
    k(f"v_lshrrev_b32 {v(tmp[0])}, 6, v0")
    k(f"v_lshlrev_b32 {v(vl16)}, 4, {v(lane)}")
    k(f"v_readfirstlane_b32 s{sW}, {v(tmp[0])}")
    k(f"s_and_b32 s{sT0}, s2, 7\ns_lshl_b32 s{sT0}, s{sT0}, 2\ns_lshr_b32 s{sT1}, s2, 6\ns_add_u32 s{sH}, s{sT0}, s{sT1}")
    k(f"s_lshr_b32 s{sT1}, s2, 3\ns_and_b32 s{sQB}, s{sT1}, 7")
    k(f"s_and_b32 s{sG}, s{sW}, 3\ns_lshr_b32 s{sKH}, s{sW}, 2")
    k(f"s_mul_i32 s33, s{sH}, {HEAD_STRIDE}")
    k(f"s_mul_i32 s{sT0}, s{sQB}, {BLK_STRIDE}")
    k(f"s_lshl_b32 s{sT1}, s{sG}, 11\ns_add_u32 s{sT1}, s{sT1}, s{sT0}\ns_add_u32 s38, s{sT1}, {Q1OFF}")
    k(f"s_lshl_b32 s{sT2}, s{sG}, 9\ns_add_u32 s{sT2}, s{sT2}, s{sT0}\ns_add_u32 s39, s{sT2}, {Q2OFF}")
    k(f"s_lshl_b32 s{sT0}, s{sKH}, 2")
    k(f"s_mul_i32 s{sDG}, s{sT0}, {BLK_STRIDE}\ns_mul_i32 s{sT2}, s{sG}, 5120\ns_add_u32 s{sDG}, s{sDG}, s{sT2}")
    k(f"s_mul_i32 s{sLB}, s{sT0}, {LBLK}\ns_add_u32 s{sDL}, s{sLB}, s{sT2}")
    for q in (QA2, QB2):
        k(f"v_pk_mov_b32 {v(q,2)}, 0, 0\nv_pk_mov_b32 {v(q+2,2)}, 0, 0")
    k(f"v_and_b32 {v(tmp[0])}, 31, {v(lane)}\nv_lshlrev_b32 {v(tmp[1])}, 3, {v(tmp[0])}")
    k("s_waitcnt lgkmcnt(0)")
    k(f"s_add_u32 s8, s4, s33\ns_addc_u32 s9, s5, 0\ns_and_b32 s9, s9, 0xffff\ns_mov_b32 s10, {HEAD_STRIDE}\ns_mov_b32 s11, 0x20000")
    k(f"buffer_load_dwordx4 {v(QA1,4)}, {v(vl16)}, s[8:11], s38 offen")
    k(f"buffer_load_dwordx4 {v(QB1,4)}, {v(vl16)}, s[8:11], s38 offen offset:1024")
    k("s_mov_b32 exec_hi, 0")
    k(f"buffer_load_dwordx2 {v(QA2,2)}, {v(tmp[1])}, s[8:11], s39 offen")
    k(f"buffer_load_dwordx2 {v(QB2,2)}, {v(tmp[1])}, s[8:11], s39 offen offset:256")
    k("s_mov_b32 exec_hi, -1")
    def dma_ops():
        ops = []
        for i in range(4):
            pre = f"s_mov_b32 m0, s{sDL}\ns_add_u32 s{sT3}, s{sDG}, 4096\n" if i == 0 else ""
            ops.append(pre + f"buffer_load_dwordx4 {v(vl16)}, s[8:11], s{sDG} offen offset:{i*1024} lds")
        ops.append(f"s_add_u32 m0, s{sDL}, 4096\ns_add_u32 s{sDG}, s{sDG}, {BLK_STRIDE}\nbuffer_load_dwordx4 {v(vl16)}, s[8:11], s{sT3} offen lds\ns_add_u32 s{sDL}, s{sDL}, {LBLK}")
        return ops
    for o in dma_ops(): k(o)
    k.stamp(1)
    k(f"s_add_u32 s12, s4, {WS_O}\ns_addc_u32 s13, s5, 0\ns_and_b32 s13, s13, 0xffff\ns_mov_b32 s14, {O_BYTES}\ns_mov_b32 s15, 0x20000")
    k(f"v_add_u32 {v(aK1)}, s{sLB}, {v(vl16)}")
    k(f"s_add_u32 s{sT0}, s{sLB}, {K2OFF}\nv_add_u32 {v(aK2)}, s{sT0}, {v(tmp[1])}")
    k(f"v_lshrrev_b32 {v(tmp[2])}, 5, {v(lane)}")
    k(f"v_mul_u32_u24 {v(tmp[3])}, 320, {v(tmp[2])}")
    k(f"v_lshl_add_u32 {v(tmp[3])}, {v(tmp[0])}, 4, {v(tmp[3])}")
    k(f"s_add_u32 s{sT0}, s{sLB}, {VOFF}\nv_add_u32 {v(aV)}, s{sT0}, {v(tmp[3])}")
    k(f"s_mov_b32 s{sVM}, 0x000fffff\ns_mov_b32 s{sVM+1}, 0x000fffff")
    k(f"s_mov_b32 s{sThr}, 0x5f800000")
    k(f"s_mov_b32 s{sNmax}, 1")
    for b in range(2): k(f"v_pk_mov_b32 {v(Kf[b][1]+2,2)}, 0, 0")
    k(f"s_lshl_b32 s{sT0}, s{sQB}, 8\ns_lshl_b32 s{sT1}, s{sG}, 6\ns_add_u32 s{sT0}, s{sT0}, s{sT1}\ns_lshl_b32 s{sT1}, s{sKH}, 5\ns_add_u32 s{sT0}, s{sT0}, s{sT1}")
    k(f"v_add_u32 {v(tmp[4])}, s{sT0}, {v(tmp[0])}")
    k(f"v_lshrrev_b32 {v(tmp[5])}, 4, {v(tmp[4])}\nv_mul_u32_u24 {v(tmp[5])}, 20480, {v(tmp[5])}")
    k(f"v_and_b32 {v(tmp[4])}, 15, {v(tmp[4])}\nv_lshl_add_u32 {v(tmp[5])}, {v(tmp[4])}, 4, {v(tmp[5])}")
    k(f"s_mul_i32 s{sT0}, s{sH}, 5\nv_add_u32 {v(tmp[6])}, s{sT0}, {v(tmp[2])}")
    for j in range(3):
        k(f"v_add_u32 {v(tmp[7])}, {2*j}, {v(tmp[6])}")
        k(f"v_lshrrev_b32 {v(tmp[4])}, 3, {v(tmp[7])}\nv_lshl_add_u32 {v(oad[j])}, {v(tmp[4])}, 10, {v(tmp[5])}")
        k(f"v_and_b32 {v(tmp[4])}, 3, {v(tmp[7])}\nv_lshl_add_u32 {v(oad[j])}, {v(tmp[4])}, 8, {v(oad[j])}")
        k(f"v_bfe_u32 {v(tmp[4])}, {v(tmp[7])}, 2, 1\nv_lshl_add_u32 {v(oad[j])}, {v(tmp[4])}, 3, {v(oad[j])}")
    k(f"s_mov_b32 s40, s34\ns_and_b32 s41, s35, 0xffff\ns_mov_b32 s42, {D*D*2}\ns_mov_b32 s43, 0x20000")
    k(f"s_mov_b32 s44, s36\ns_and_b32 s45, s37, 0xffff\ns_mov_b32 s46, {F*D*2}\ns_mov_b32 s47, 0x20000")
    k(f"s_add_u32 s48, s4, {WS_WOP}\ns_addc_u32 s49, s5, 0\ns_and_b32 s49, s49, 0xffff\ns_mov_b32 s50, {WOP_BYTES + W2P_BYTES}\ns_mov_b32 s51, 0x20000")
    k(f"v_lshrrev_b32 {v(vpk)}, 4, {v(lane)}\nv_mul_u32_u24 {v(vpk)}, 5120, {v(vpk)}\nv_and_b32 {v(tmp[4])}, 15, {v(lane)}\nv_lshl_add_u32 {v(vpk)}, {v(tmp[4])}, 1, {v(vpk)}")
    k(f"s_lshl_b32 s52, s2, 3\ns_add_u32 s52, s52, s{sW}")
    k(f"v_lshrrev_b32 {v(vpf)}, 3, {v(lane)}\nv_mul_u32_u24 {v(vpf)}, {F*2}, {v(vpf)}\nv_and_b32 {v(vpf+1)}, 7, {v(lane)}\nv_lshl_add_u32 {v(vpf)}, {v(vpf+1)}, 7, {v(vpf)}")
    k(f"v_min_u32 {v(vpf)}, {4*F*2 + 7*128}, {v(vpf)}")
    def init_consts():
        ones = tmp[7]
        k(f"v_mov_b32 {v(tmp[6])}, 0x3f803f80\nv_mov_b32 {v(tmp[7])}, 0x3f803f80") if False else None
        if 'vones' in dbg:
            k(f"s_mov_b32 s86, 0x3f803f80\ns_mov_b32 s87, 0x3f803f80")
            for b in range(2):
                for f in range(2):
                    k(f"v_pk_mov_b32 {v(Vf[b][f],2)}, s[86:87], s[86:87]\nv_pk_mov_b32 {v(Vf[b][f]+2,2)}, s[86:87], s[86:87]")
        else:
            k(f"v_and_b32 {v(tmp[6])}, 31, {v(lane)}\nv_cmp_eq_u32 vcc, 20, {v(tmp[6])}\nv_mov_b32 {v(tmp[7])}, 0x3f803f80\nv_mov_b32 {v(tmp[6])}, 0")
            k(f"v_cndmask_b32 {v(tmp[6])}, {v(tmp[6])}, {v(tmp[7])}, vcc\nv_mov_b32 {v(tmp[7])}, {v(tmp[6])}") if False else None
            k(f"s_nop 0\nv_cndmask_b32 {v(tmp[6])}, {v(tmp[6])}, {v(tmp[7])}, vcc")
            k(f"v_mov_b32 {v(tmp[7])}, {v(tmp[6])}")
            for b in range(2):
                for f in range(2):
                    k(f"v_pk_mov_b32 {v(Vf[b][f],2)}, {v(tmp[6],2)}, {v(tmp[6],2)}\nv_pk_mov_b32 {v(Vf[b][f]+2,2)}, {v(tmp[6],2)}, {v(tmp[6],2)}")
        for i in range(0, 12, 2): k(f"v_pk_mov_b32 {v(OA+i,2)}, 0, 0\nv_pk_mov_b32 {v(OB+i,2)}, 0, 0")
        k(f"v_pk_mov_b32 {v(PB+4,2)}, 0, 0\nv_pk_mov_b32 {v(PB+6,2)}, 0, 0")
    init_consts()
    k("s_waitcnt vmcnt(0)")
    if pf_code: k.code_prefetch_dist(pf_code, tmp[2], vpf2, 86, 92)
    k("s_barrier")
    k.stamp(2)
    Lmax = k.L("max"); Lmloop = k.L("mloop")
    k.label(Lmax)
    mA, mB = tmp[4], tmp[5]
    k(f"v_mov_b32 {v(mA)}, 0xff800000\nv_mov_b32 {v(mB)}, 0xff800000")
    k(f"s_mov_b32 s{sT}, 0")
    k.label(Lmloop)
    k(f"s_lshr_b32 s{sT0}, s{sT}, 3\ns_mul_i32 s{sT0}, s{sT0}, {LBLK}\ns_and_b32 s{sT1}, s{sT}, 7")
    k(f"s_lshl_b32 s{sT2}, s{sT1}, 10\ns_add_u32 s{sT2}, s{sT2}, s{sT0}")
    k(f"s_lshl_b32 s{sT3}, s{sT1}, 8\ns_add_u32 s{sT3}, s{sT3}, s{sT0}")
    k(f"v_add_u32 {v(tmp[6])}, s{sT2}, {v(aK1)}\nv_add_u32 {v(tmp[7])}, s{sT3}, {v(aK2)}")
    k(f"ds_read_b128 {v(Kf[1][0],4)}, {v(tmp[6])}\nds_read_b64 {v(Kf[1][1],2)}, {v(tmp[7])}")
    k(f"ds_read_b128 {v(Kf[0][0],4)}, {v(aK1)}\nds_read_b64 {v(Kf[0][1],2)}, {v(aK2)}")
    k(f"s_mov_b64 exec, s[{sVM}:{sVM+1}]")
    k(f"ds_read_b128 {v(Vf[0][0],4)}, {v(aV)}\nds_read_b128 {v(Vf[0][1],4)}, {v(aV)} offset:640")
    k("s_mov_b64 exec, -1")
    k("s_waitcnt lgkmcnt(4)")
    k(f"v_mfma_f32_32x32x16_bf16 {v(SA,16)}, {v(Kf[1][0],4)}, {v(QA1,4)}, 0")
    k(f"v_mfma_f32_32x32x16_bf16 {v(SB,16)}, {v(Kf[1][0],4)}, {v(QB1,4)}, 0")
    k(f"v_mfma_f32_32x32x16_bf16 {v(SA,16)}, {v(Kf[1][1],4)}, {v(QA2,4)}, {v(SA,16)}")
    k(f"v_mfma_f32_32x32x16_bf16 {v(SB,16)}, {v(Kf[1][1],4)}, {v(QB2,4)}, {v(SB,16)}")
    k.nop(11)
    for (m, Sx) in ((mA, SA), (mB, SB)):
        for i in range(8):
            k(f"v_max3_f32 {v(m)}, {v(Sx+2*i)}, {v(Sx+2*i+1)}, {v(m)}")
    k(f"s_add_u32 s{sT}, s{sT}, 1\ns_cmp_lt_u32 s{sT}, s{sNmax}\ns_cbranch_scc1 {Lmloop}")
    k(f"v_mov_b32 {v(tmp[6])}, {v(mA)}\nv_mov_b32 {v(tmp[7])}, {v(mA)}\nv_mov_b32 {v(tmp[2])}, {v(mB)}\nv_mov_b32 {v(tmp[3])}, {v(mB)}")
    k.nop(1)
    k(f"v_permlane32_swap_b32 {v(tmp[6])}, {v(tmp[7])}\nv_permlane32_swap_b32 {v(tmp[2])}, {v(tmp[3])}")
    k.nop(1)
    k(f"v_max_f32 {v(tmp[6])}, {v(tmp[6])}, {v(tmp[7])}\nv_max_f32 {v(tmp[2])}, {v(tmp[2])}, {v(tmp[3])}")
    k(f"v_sub_f32 {v(NA)}, 0, {v(tmp[6])}\nv_sub_f32 {v(NA+1)}, 0, {v(tmp[6])}\nv_sub_f32 {v(NB)}, 0, {v(tmp[2])}\nv_sub_f32 {v(NB+1)}, 0, {v(tmp[2])}")
    for i in range(2, 16, 2): k(f"v_pk_mov_b32 {v(NA+i,2)}, {v(NA,2)}, {v(NA,2)}")
    k("s_waitcnt lgkmcnt(0)")
    k.nop(1)
    k(f"v_mfma_f32_32x32x16_bf16 {v(SA,16)}, {v(Kf[0][0],4)}, {v(QA1,4)}, {v(NA,16)}")
    k(f"v_mfma_f32_32x32x16_bf16 {v(SA,16)}, {v(Kf[0][1],4)}, {v(QA2,4)}, {v(SA,16)}")
    for i in range(2, 16, 2): k(f"v_pk_mov_b32 {v(NB+i,2)}, {v(NB,2)}, {v(NB,2)}")
    k(f"s_mov_b32 s{sIt}, 0")
    k.nop(3)
    k.stamp(3)
    M = lambda d, x, y, c: f"v_mfma_f32_32x32x16_bf16 {v(d,16)}, {v(x,4)}, {v(y,4)}, {v(c,16)}"
    def phase(Sx, Px, mf, pre, side):
        e = lambda i: f"v_exp_f32 {v(Sx+i)}, {v(Sx+i)}"
        if 'x_noexp' in dbg: e = lambda i: f"v_rcp_iflag_f32 {v(tmp[7])}, {v(tmp[6])}" if False else f"v_exp_f32 {v(Sx+i)}, {v(tmp[6])}"
        c = lambda j: f"v_cvt_pk_bf16_f32 {v(Px+j)}, {v(Sx+2*j)}, {v(Sx+2*j+1)}"
        if 'x_nopv' in dbg: mf = [mf[0], "s_nop 1", mf[2], "s_nop 1"]
        if 'x_noqk' in dbg: mf = ["s_nop 1", mf[1], "s_nop 1", mf[3]]
        if 'x_nomf' in dbg: mf = ["s_nop 1"] * 4
        seq = [mf[0]] + pre + [e(0), e(1), e(2), e(3), c(0), mf[1], c(1), e(4), e(5), e(6), e(7), c(2),
               mf[2], c(3), e(8), e(9), e(10), e(11), c(4), mf[3], c(5), e(12), e(13), e(14), "s_waitcnt lgkmcnt(0)", e(15), c(6), c(7)]
        side = list(side)
        for x in seq:
            k(x)
            if side and (x.startswith("v_exp")) :
                k(side.pop(0))
        assert not side
    def pack_ops(slot):
        o = []
        pre = f"s_add_u32 s53, s52, {2048*slot}\ns_lshl_b32 s{54+slot}, s53, 10\n"
        if slot == 1: pre += f"s_cmp_ge_u32 s53, 2960\ns_cselect_b32 s55, -1, s55\ns_cselect_b32 s53, s52, s53\n"
        pre += f"s_cmp_lt_u32 s53, 800\ns_cselect_b32 s56, s40, s44\ns_cselect_b32 s57, s41, s45\ns_cselect_b32 s58, s42, s46\ns_mov_b32 s59, 0x20000"
        o.append(pre)
        o.append(f"s_cselect_b32 s60, 0, 800\ns_mov_b32 s61, 270\ns_cselect_b32 s61, 100, s61\ns_mov_b32 s62, {(1<<20)//270+1}\ns_cselect_b32 s62, {(1<<20)//100+1}, s62\ns_sub_u32 s53, s53, s60")
        o.append(f"s_mul_i32 s63, s53, s62\ns_lshr_b32 s63, s63, 20\ns_mul_i32 s60, s63, s61\ns_sub_u32 s53, s53, s60\ns_mul_i32 s60, s53, 52429\ns_lshr_b32 s60, s60, 18")
        o.append(f"s_mul_i32 s61, s60, 5\ns_sub_u32 s53, s53, s61\ns_mul_i32 s60, s60, {32*1280}\ns_mul_i32 s63, s63, 160\ns_lshl_b32 s53, s53, 5\ns_add_u32 s60, s60, s63\ns_add_u32 s60, s60, s53\ns_add_u32 s61, s60, {16*1280}")
        for sk in range(8):
            op = "buffer_load_short_d16" if sk % 2 == 0 else "buffer_load_short_d16_hi"
            o.append(f"{op} {v(PKW+8*slot+sk//2+4*(sk%2))}, {v(vpk)}, s[56:59], s{60 if sk < 4 else 61} offen offset:{(sk & 3)*1280}")
        return o
    def w13_prefetch():
        t = f"s_and_b32 s{sT0}, s2, 3\ns_mul_i32 s{sT0}, s{sT0}, 27\ns_lshr_b32 s{sT0}, s{sT0}, 2\ns_lshl_b32 s{sT0}, s{sT0}, 7\n"
        t += f"s_lshr_b32 s{sT1}, s2, 3\ns_lshl_b32 s{sT1}, s{sT1}, 3\ns_add_u32 s{sT1}, s{sT1}, s{sW}\n"
        t += f"s_and_b32 s{sT2}, s{sT1}, 127\ns_mul_i32 s{sT2}, s{sT2}, {5*F*2}\ns_add_u32 s{sT0}, s{sT0}, s{sT2}\n"
        t += f"s_cmp_ge_u32 s{sT1}, 128\ns_cselect_b32 s88, s82, s80\ns_cselect_b32 s89, s83, s81\ns_and_b32 s89, s89, 0xffff\ns_mov_b32 s90, {D*F*2}\ns_mov_b32 s91, 0x20000\n"
        t += f"buffer_load_dword {v(vpf+1)}, {v(vpf)}, s[88:91], s{sT0} offen"
        return [t]
    def code_prefetch():
        Lh = k.L("here")
        t = f"s_getpc_b64 s[88:89]\n{Lh}:\ns_add_u32 s88, s88, {pf_code} - {Lh}\ns_addc_u32 s89, s89, 0\nglobal_load_dword {v(vpf+1)}, {v(vpc)}, s[88:89]"
        return [t]
    def tile(tt, sideA=(), sideB=(), pre_hook=None):
        cur = tt & 1; nxt = cur ^ 1
        n1 = tt + 1
        koff1 = n1 * 1024 if n1 < 8 else LBLK
        koff2 = n1 * 256 if n1 < 8 else LBLK
        voff = n1 * 1280 if n1 < 8 else LBLK
        if pre_hook: k(pre_hook)
        pre = [f"ds_read_b128 {v(Kf[nxt][0],4)}, {v(aK1)} offset:{koff1}", f"ds_read_b64 {v(Kf[nxt][1],2)}, {v(aK2)} offset:{koff2}"]
        phase(SA, PA, [M(SB, Kf[cur][0], QB1, NB), M(OB, Vf[nxt][1], PB+4, OB), M(SB, Kf[cur][1], QB2, SB), M(OA, Vf[cur][0], PA, OA)], pre, sideA)
        pre = [f"s_mov_b64 exec, s[{sVM}:{sVM+1}]", f"ds_read_b128 {v(Vf[nxt][0],4)}, {v(aV)} offset:{voff}",
               f"ds_read_b128 {v(Vf[nxt][1],4)}, {v(aV)} offset:{voff+640}", "s_mov_b64 exec, -1"]
        phase(SB, PB, [M(SA, Kf[nxt][0], QA1, NA), M(OA, Vf[cur][1], PA+4, OA), M(SA, Kf[nxt][1], QA2, SA), M(OB, Vf[cur][0], PB, OB)], pre, sideB)
    def iter_end():
        k(f"v_add_u32 {v(aK1)}, {LBLK}, {v(aK1)}\nv_add_u32 {v(aK2)}, {LBLK}, {v(aK2)}\nv_add_u32 {v(aV)}, {LBLK}, {v(aV)}")
    Lloop = k.L("loop"); Lafter = k.L("after")
    if 'solo' in dbg:
        Lgo = k.L("go")
        k(f"s_cmp_eq_u32 s{sKH}, 0\ns_cbranch_scc1 {Lgo}")
        for _ in range(3):
            for o in dma_ops(): k(o)
        k("s_waitcnt vmcnt(0)\ns_barrier\ns_mov_b32 s55, -1\ns_mov_b32 s54, 0")
        k(f"s_branch {Lafter}")
        k.label(Lgo)
    if 'prio1' in dbg:
        Lp1 = k.L("p1")
        k(f"s_cmp_eq_u32 s{sKH}, 0\ns_cbranch_scc1 {Lp1}\ns_setprio 1")
        k.label(Lp1)
    k(f"s_cmp_lg_u32 s{sNmax}, 1\ns_cbranch_scc1 {Lloop}")
    side = dma_ops() + dma_ops() + dma_ops()
    ny = 0
    later = []
    if 'nopack' not in dbg: later += pack_ops(0) + pack_ops(1); ny += 16
    if 'nopf' not in dbg: later += w13_prefetch(); ny += 1
    for tt in range(8):
        if tt < 3: tile(tt, sideA=side[5*tt:5*tt+5])
        elif tt < 7:
            n = (len(later) + (6 - tt)) // (7 - tt)
            mine, later = later[:n], later[n:]
            tile(tt, sideA=mine[:(len(mine)+1)//2], sideB=mine[(len(mine)+1)//2:])
        else: tile(tt, pre_hook=f"s_waitcnt vmcnt({ny})\ns_barrier")
    assert not later
    iter_end()
    k(f"s_mov_b32 s{sIt}, 1")
    k.lines.append(".p2align 6")
    k.label(Lloop)
    for tt in range(8): tile(tt)
    iter_end()
    k(f"s_add_u32 s{sIt}, s{sIt}, 1\ns_cmp_lt_u32 s{sIt}, 4\ns_cbranch_scc1 {Lloop}")
    k(M(OB, Vf[1][1], PB+4, OB))
    k.label(Lafter)
    k("s_waitcnt lgkmcnt(0)")
    if 'nopack' not in dbg:
        Lnp = k.L("nopk")
        k(f"s_cmp_lg_u32 s{sNmax}, 1\ns_cbranch_scc1 {Lnp}")
        k("s_waitcnt vmcnt(0)\ns_mov_b32 s53, 0x07060100")
        for slot in range(2):
            Lp = k.L("pks")
            if slot == 1: k(f"s_cmp_eq_u32 s55, -1\ns_cbranch_scc1 {Lp}")
            for q in range(4): k(f"v_perm_b32 {v(PKW+8*slot+q)}, {v(PKW+8*slot+4+q)}, {v(PKW+8*slot+q)}, s53")
            k(f"buffer_store_dwordx4 {v(PKW+8*slot,4)}, {v(vl16)}, s[48:51], s{54+slot} offen")
            k.label(Lp)
        k.label(Lnp)
    k.nop(14)
    k.stamp(4)
    Lok = k.L("ok")
    k(f"v_cmp_ngt_f32 vcc, s{sThr}, {v(OA+8)}")
    k(f"v_cmp_ngt_f32 s[86:87], s{sThr}, {v(OB+8)}")
    k.nop(4)
    k(f"s_or_b32 s{sT0}, s87, vcc_hi")
    k(f"s_cmp_eq_u32 s{sT0}, 0\ns_cbranch_scc1 {Lok}")
    k(f"s_cmp_lg_u32 s{sNmax}, 1\ns_cbranch_scc1 {Lok}")
    k(f"s_mov_b32 s{sNmax}, 32")
    k(f"v_subrev_u32 {v(aK1)}, {4*LBLK}, {v(aK1)}\nv_subrev_u32 {v(aK2)}, {4*LBLK}, {v(aK2)}\nv_subrev_u32 {v(aV)}, {4*LBLK}, {v(aV)}")
    init_consts()
    k(f"s_branch {Lmax}")
    k.label(Lok)
    Lns = k.L("noswap")
    k(f"s_cmp_eq_u32 s{sKH}, 0\ns_cbranch_scc1 {Lns}")
    for i in range(12): k(f"v_swap_b32 {v(OA+i)}, {v(OB+i)}")
    k(f"v_swap_b32 {v(NA)}, {v(NB)}")
    k.label(Lns)
    k(f"s_lshl_b32 s{sT0}, s{sW}, 12\ns_xor_b32 s{sT1}, s{sW}, 4\ns_lshl_b32 s{sT1}, s{sT1}, 12")
    k(f"v_add_u32 {v(tmp[0])}, s{sT0}, {v(vl16)}\nv_add_u32 {v(tmp[1])}, s{sT1}, {v(vl16)}")
    k("s_barrier")
    for j in range(3): k(f"ds_write_b128 {v(tmp[0])}, {v(OB+4*j,4)} offset:{j*1024}")
    k(f"ds_write_b32 {v(tmp[0])}, {v(NB)} offset:3072")
    k("s_waitcnt lgkmcnt(0)\ns_barrier")
    for j in range(3): k(f"ds_read_b128 {v(OB+4*j,4)}, {v(tmp[1])} offset:{j*1024}")
    k(f"ds_read_b32 {v(NB)}, {v(tmp[1])} offset:3072")
    k("s_waitcnt lgkmcnt(0)")
    f1, f2, nm = SA, SA + 1, SA + 2
    k(f"v_min_f32 {v(nm)}, {v(NA)}, {v(NB)}")
    k(f"v_sub_f32 {v(f1)}, {v(nm)}, {v(NA)}\nv_sub_f32 {v(f2)}, {v(nm)}, {v(NB)}")
    k(f"v_exp_f32 {v(f1)}, {v(f1)}\nv_exp_f32 {v(f2)}, {v(f2)}")
    k.nop(1)
    for i in range(12): k(f"v_mul_f32 {v(OA+i)}, {v(OA+i)}, {v(f1)}")
    for i in range(12): k(f"v_fmac_f32 {v(OA+i)}, {v(OB+i)}, {v(f2)}")
    t1, t2 = SA + 4, SA + 5
    k(f"v_mov_b32 {v(t1)}, {v(OA+8)}\nv_mov_b32 {v(t2)}, {v(OA+8)}")
    k.nop(2)
    k(f"v_permlane32_swap_b32 {v(t1)}, {v(t2)}")
    k.nop(1)
    k(f"v_rcp_f32 {v(t2)}, {v(t2)}")
    k.nop(1)
    for i in range(12): k(f"v_mul_f32 {v(OA+i)}, {v(OA+i)}, {v(t2)}")
    for j in range(6): k(f"v_cvt_pk_bf16_f32 {v(PA+j)}, {v(OA+2*j)}, {v(OA+2*j+1)}")
    k(f"buffer_store_dwordx2 {v(PA,2)}, {v(oad[0])}, s[12:15], 0 offen")
    k(f"buffer_store_dwordx2 {v(PA+2,2)}, {v(oad[1])}, s[12:15], 0 offen")
    k("s_mov_b32 exec_hi, 0")
    k(f"buffer_store_dwordx2 {v(PA+4,2)}, {v(oad[2])}, s[12:15], 0 offen")
    k("s_mov_b64 exec, -1")
    k.stamp(5); k.stamp_real(7)
    k.prof_store(8, 4, WS_END + PROF_OFF(k), tmp[0], sW)
    k.tl_end(2)
    k.label(done)
    k("s_endpgm")
    return k, nv, 102

if __name__ == "__main__":
    k, nv, ns = gen_attn()
    print("vgprs", nv, "hazards", check_kernel(k))
```

```python
from asm import *
from layout import *
def PROF_OFF(k): return {'qkv_kernel':0,'attn_kernel':1,'oproj_kernel':2,'ffn_kernel':3,'down_kernel':4}.get(k.name, 0) * 0x40000
import struct, math
def fbits(x): return struct.unpack("<I", struct.pack("<f", x))[0]

NCH = 10
LDS_FFN = 163840
def gen_ffn(name="ffn_kernel", prof=False, tl=None, PF=3, dbg=(), pf_code=None):
    k = Kernel(name); k.prof = prof; k.tl = tl
    V = Alloc(1, 256)
    lane = V("lane"); tmp = [V(f"t{i}") for i in range(8)]
    dB = V("dB"); vA = V("vA")
    vB = [[V(f"vB{h}{c}") for c in range(2)] for h in range(3)]
    acc = [V(f"acc{i}", 16, 4) for i in range(4)]
    NRA = PF + 1
    FA = [[V(f"FA{r}{q}", 4, 4) for q in range(4)] for r in range(NRA)]
    FB = [[V(f"FB{b}{i}", 4, 4) for i in range(4)] for b in range(2)]
    vcp = V("vcp", 3, 2)
    EX = V("EX", 48, 4)
    assert NRA == 4
    CS0 = FA[2][0]
    CS1 = FA[0][0]
    nv = V.next
    sW, sRB, sCB = 16, 17, 18
    sT0, sT1, sT2, sT3 = 20, 21, 22, 23
    sA, sB, sL = 24, 25, 26
    done = k.L("done")
    k(f"s_cmp_ge_u32 s2, 216\ns_cbranch_scc1 {done}") if False else None
    k(f"s_cmp_ge_u32 s2, 256\ns_cbranch_scc1 {done}")
    k.tl_start()
    k.stamp(0); k.stamp_real(6)
    k(f"s_load_dwordx2 s[4:5], s[0:1], {KA_WS}")
    k(f"s_load_dwordx4 s[28:31], s[0:1], {KA_W1}")
    k(f"s_and_b32 s{sT0}, s2, 7\ns_lshr_b32 s{sT1}, s2, 3")
    Lidle = k.L("idle")
    k(f"s_cmp_ge_u32 s{sT1}, 27\ns_cbranch_scc1 {Lidle}")
    k(f"s_and_b32 s{sT2}, s{sT0}, 3\ns_mul_i32 s{sT2}, s{sT2}, 27\ns_add_u32 s{sT2}, s{sT2}, s{sT1}")
    k(f"s_lshr_b32 s{sCB}, s{sT2}, 2\ns_and_b32 s{sT2}, s{sT2}, 3\ns_lshr_b32 s{sT3}, s{sT0}, 2\ns_lshl_b32 s{sT3}, s{sT3}, 2\ns_add_u32 s{sRB}, s{sT3}, s{sT2}")
    k(f"v_and_b32 {v(lane)}, 63, v0\nv_lshrrev_b32 {v(tmp[0])}, 6, v0")
    k.nop(1)
    k(f"v_readfirstlane_b32 s{sW}, {v(tmp[0])}")
    k(f"v_lshrrev_b32 {v(tmp[0])}, 3, {v(lane)}\ns_lshl_b32 s{sT0}, s{sW}, 3\nv_add_u32 {v(tmp[0])}, s{sT0}, {v(tmp[0])}\nv_mul_u32_u24 {v(tmp[0])}, {F*2}, {v(tmp[0])}")
    k(f"v_bfe_u32 {v(tmp[1])}, {v(lane)}, 2, 1\nv_bfe_u32 {v(tmp[2])}, {v(lane)}, 4, 1\nv_xor_b32 {v(tmp[1])}, {v(tmp[1])}, {v(tmp[2])}")
    k(f"v_and_b32 {v(tmp[2])}, 3, {v(lane)}\nv_lshl_add_u32 {v(tmp[1])}, {v(tmp[1])}, 2, {v(tmp[2])}\nv_lshl_add_u32 {v(dB)}, {v(tmp[1])}, 4, {v(tmp[0])}")
    k(f"v_lshlrev_b32 {v(vA)}, 4, {v(lane)}")
    k(f"s_lshl_b32 s{sT0}, s{sRB}, 3\ns_add_u32 s{sT0}, s{sT0}, s{sW}\ns_mul_i32 s{sA}, s{sT0}, 40960")
    k(f"s_lshl_b32 s{sB}, s{sCB}, 7\ns_lshl_b32 s{sL}, s{sW}, 10")
    k("s_waitcnt lgkmcnt(0)")
    k.stamp(1)
    k(f"s_add_u32 s8, s4, {WS_H}\ns_addc_u32 s9, s5, 0\ns_and_b32 s9, s9, 0xffff\ns_mov_b32 s10, {H_BYTES}\ns_mov_b32 s11, 0x20000")
    k(f"s_mov_b32 s12, s28\ns_and_b32 s13, s29, 0xffff\ns_mov_b32 s14, {D*F*2}\ns_mov_b32 s15, 0x20000")
    k(f"s_mov_b32 s32, s30\ns_and_b32 s33, s31, 0xffff\ns_mov_b32 s34, {D*F*2}\ns_mov_b32 s35, 0x20000")
    def load_ops(c):
        ops = []
        ops.append(f"s_add_u32 m0, s{sL}, {c*16384}\ns_add_u32 s{sT0}, s{sB}, {c*64*F*2}\nbuffer_load_dwordx4 {v(dB)}, s[12:15], s{sT0} offen lds")
        ops.append(f"s_add_u32 m0, s{sL}, {c*16384+8192}\ns_add_u32 s{sT1}, s{sA}, {c*4096}\nbuffer_load_dwordx4 {v(dB)}, s[32:35], s{sT0} offen lds")
        for q in range(4):
            ops.append(f"buffer_load_dwordx4 {v(FA[c % NRA][q],4)}, {v(vA)}, s[8:11], s{sT1} offen offset:{q*1024}")
        return ops
    NPRE = 2
    for c in range(NPRE):
        for o in load_ops(c): k(o)
    k.stamp(2)
    if pf_code: k.code_prefetch_dist(pf_code, vcp + 2, vcp, 56, 62)
    half = tmp[4]
    k(f"v_lshrrev_b32 {v(half)}, 5, {v(lane)}\nv_bfe_u32 {v(tmp[0])}, {v(lane)}, 2, 2\nv_lshl_add_u32 {v(tmp[0])}, {v(half)}, 3, {v(tmp[0])}\nv_lshlrev_b32 {v(tmp[0])}, 7, {v(tmp[0])}")
    k(f"v_bfe_u32 {v(tmp[1])}, {v(lane)}, 3, 1\nv_lshl_add_u32 {v(tmp[0])}, {v(tmp[1])}, 6, {v(tmp[0])}")
    k(f"v_bfe_u32 {v(tmp[1])}, {v(lane)}, 4, 1\nv_lshl_add_u32 {v(tmp[0])}, {v(tmp[1])}, 5, {v(tmp[0])}")
    k(f"v_and_b32 {v(tmp[1])}, 3, {v(lane)}\nv_lshl_add_u32 {v(vB[0][0])}, {v(tmp[1])}, 3, {v(tmp[0])}\nv_xor_b32 {v(vB[0][1])}, 64, {v(vB[0][0])}")
    for h in (1, 2):
        for c in range(2): k(f"v_add_u32 {v(vB[h][c])}, {h*65536}, {v(vB[0][c])}")
    def treads(q):
        c = q >> 2; ks = q & 3; b = q & 1
        base = c * 16384 + ks * 2048
        out = []
        for mt in range(2):
            for ch in range(2):
                for rd in range(2):
                    off = base + mt * 8192 + rd * 512
                    h = off >> 16
                    out.append(f"ds_read_b64_tr_b16 {v(FB[b][2*mt+ch]+2*rd,2)}, {v(vB[h][ch])} offset:{off & 65535}")
        return out
    pend = []
    for c in range(NPRE): pend += [c] * 6
    if pf_code: pend += [-4] * len(pf_code)
    def wait_chunk(c):
        idx = max(i for i, x in enumerate(pend) if x == c)
        k(f"s_waitcnt vmcnt({len(pend) - 1 - idx})\ns_barrier")
    wait_chunk(0)
    k.stamp(3)
    for x in treads(0): k(x)
    nxt_load = NPRE
    sched = [[], [], [], []]
    for q in range(40):
        c = q >> 2; ks = q & 3
        last = q == 39
        rd = []
        if not last:
            if ks == 3: wait_chunk(c + 1)
            rd = treads(q + 1)
        if ks == 0:
            todo = []
            while nxt_load < NCH and nxt_load <= c + PF and len(todo) < (12 if c == 0 else 6):
                todo += [(nxt_load, o) for o in load_ops(nxt_load)]; nxt_load += 1
            per = (len(todo) + 3) // 4
            sched = [todo[i*per:(i+1)*per] for i in range(4)]
        b = q & 1
        tr = sched[ks]
        for i in range(4):
            k(f"s_waitcnt lgkmcnt({6 if not last else 2*(3-i)})")
            cin = v(acc[i], 16) if q > 0 else "0"
            if 'x16' in dbg:
                for hh in range(2):
                    o = acc[i] + 4 * hh + 8 * (q & 1)
                    k(f"v_mfma_f32_16x16x32_bf16 {v(o,4)}, {v(FB[b][i],4)}, {v(FA[c % NRA][ks],4)}, {v(o,4) if q > 1 else 0}")
            else:
                k(f"v_mfma_f32_32x32x16_bf16 {v(acc[i],16)}, {v(FB[b][i],4)}, {v(FA[c % NRA][ks],4)}, {cin}")
            for x in rd[2*i: 2*i+2]: k(x)
            for (cc, o) in tr[i::4]:
                k(o); pend.append(cc)
        if q == 27:
            tok = tmp[5]
            k(f"v_and_b32 {v(tok)}, 31, {v(lane)}\ns_lshl_b32 s{sT0}, s{sRB}, 8\ns_lshl_b32 s{sT1}, s{sW}, 5\ns_add_u32 s{sT0}, s{sT0}, s{sT1}\nv_add_u32 {v(tok)}, s{sT0}, {v(tok)}")
            k(f"s_add_u32 s44, s4, {WS_ST}\ns_addc_u32 s45, s5, 0\ns_and_b32 s45, s45, 0xffff\ns_mov_b32 s46, {ST_BYTES + HH_BYTES + CS_BYTES}\ns_mov_b32 s47, 0x20000")
            k(f"v_lshlrev_b32 {v(tmp[6])}, 6, {v(tok)}")
            for j in range(4):
                k(f"buffer_load_dwordx4 {v(EX+4*j,4)}, {v(tmp[6])}, s[44:47], 0 offen offset:{16*j}"); pend.append(-1)
            k(f"s_lshl_b32 s{sT0}, s{sCB}, 8\ns_add_u32 s48, s{sT0}, {ST_BYTES + HH_BYTES}\ns_add_u32 s49, s48, {F*4}")
            k(f"v_lshlrev_b32 {v(tmp[7])}, 4, {v(half)}")
        if q == 35:
            for mt in range(2):
                for j in range(4):
                    k(f"buffer_load_dwordx4 {v(CS0+16*mt+4*j,4)}, {v(tmp[7])}, s[44:47], s{48+mt} offen offset:{32*j}"); pend.append(-2)
    assert nxt_load == NCH
    k.stamp(4)
    for mt in range(2):
        for j in range(4):
            k(f"buffer_load_dwordx4 {v(CS1+16*mt+4*j,4)}, {v(tmp[7])}, s[44:47], s{48+mt} offen offset:{128+32*j}")
    k(f"s_waitcnt vmcnt(16)")
    E = EX
    for i in range(4): k(f"v_add_f32 {v(E+4*i)}, {v(E+4*i)}, {v(E+4*i+2)}\nv_add_f32 {v(E+4*i+1)}, {v(E+4*i+1)}, {v(E+4*i+3)}")
    k(f"v_add_f32 {v(E)}, {v(E)}, {v(E+4)}\nv_add_f32 {v(E+1)}, {v(E+1)}, {v(E+5)}\nv_add_f32 {v(E+8)}, {v(E+8)}, {v(E+12)}\nv_add_f32 {v(E+9)}, {v(E+9)}, {v(E+13)}")
    k(f"v_add_f32 {v(E)}, {v(E)}, {v(E+8)}\nv_add_f32 {v(E+1)}, {v(E+1)}, {v(E+9)}")
    k(f"v_mul_f32 {v(E)}, {fbits(1.0/D)}, {v(E)}\nv_mul_f32 {v(E+1)}, {fbits(1.0/D)}, {v(E+1)}")
    k(f"v_fma_f32 {v(E+1)}, -{v(E)}, {v(E)}, {v(E+1)}\nv_max_f32 {v(E+1)}, 0, {v(E+1)}\nv_add_f32 {v(E+1)}, {fbits(1e-5)}, {v(E+1)}")
    k(f"v_rsq_f32 {v(E+1)}, {v(E+1)}")
    nmean, rstd, rneg, rsq2 = E + 2, E + 1, E + 3, E + 4
    k(f"v_sub_f32 {v(nmean)}, 0, {v(E)}")
    k(f"v_mul_f32 {v(rneg)}, {fbits(-math.log2(math.e))}, {v(rstd)}\nv_mul_f32 {v(rsq2)}, {v(rstd)}, {v(rstd)}")
    tok = tmp[5]
    k(f"v_lshrrev_b32 {v(tmp[0])}, 4, {v(tok)}\nv_mul_u32_u24 {v(tmp[0])}, {F*32}, {v(tmp[0])}\nv_and_b32 {v(tmp[1])}, 15, {v(tok)}\nv_lshl_add_u32 {v(tmp[0])}, {v(tmp[1])}, 4, {v(tmp[0])}")
    k(f"v_lshl_add_u32 {v(tmp[0])}, {v(half)}, 8, {v(tmp[0])}")
    k(f"s_add_u32 s52, s4, {WS_HH}\ns_addc_u32 s53, s5, 0\ns_and_b32 s53, s53, 0xffff\ns_mov_b32 s54, {HH_BYTES}\ns_mov_b32 s55, 0x20000")
    k(f"s_lshl_b32 s{sT0}, s{sCB}, 11")
    Tt = E + 8
    PKo = E + 32
    for ch in range(2):
        k(f"s_waitcnt vmcnt({8 if ch == 0 else 0})" if ch == 0 else "s_waitcnt vmcnt(2)")
        g, u = acc[ch], acc[2 + ch]
        c1, c3 = (CS0, CS0 + 16) if ch == 0 else (CS1, CS1 + 16)
        for r in range(16): k(f"v_fmac_f32 {v(g+r)}, {v(c1+r)}, {v(nmean)}")
        for r in range(16): k(f"v_fmac_f32 {v(u+r)}, {v(c3+r)}, {v(nmean)}")
        for r in range(16): k(f"v_mul_f32 {v(Tt+r)}, {v(g+r)}, {v(rneg)}")
        for r in range(16): k(f"v_exp_f32 {v(Tt+r)}, {v(Tt+r)}")
        for r in range(16): k(f"v_mul_f32 {v(g+r)}, {v(g+r)}, {v(u+r)}")
        for r in range(16): k(f"v_add_f32 {v(Tt+r)}, 1.0, {v(Tt+r)}")
        for r in range(16): k(f"v_rcp_f32 {v(Tt+r)}, {v(Tt+r)}")
        for r in range(16): k(f"v_mul_f32 {v(g+r)}, {v(g+r)}, {v(rsq2)}")
        for r in range(16): k(f"v_mul_f32 {v(g+r)}, {v(g+r)}, {v(Tt+r)}")
        for p in range(2):
            o = PKo + 4 * p + 8 * ch
            for hi in range(2):
                j = p + 2 * hi
                k(f"v_cvt_pk_bf16_f32 {v(o+2*hi)}, {v(g+4*j)}, {v(g+4*j+1)}\nv_cvt_pk_bf16_f32 {v(o+2*hi+1)}, {v(g+4*j+2)}, {v(g+4*j+3)}")
            k(f"buffer_store_dwordx4 {v(o,4)}, {v(tmp[0])}, s[52:55], s{sT0} offen offset:{ch*1024 + p*512}")
    k.stamp(5); k.stamp_real(7)
    k.prof_store(8, 4, WS_END + PROF_OFF(k), tmp[2], sW)
    k.tl_end(2)
    k.label(done)
    k("s_endpgm")
    k.label(Lidle)
    k(f"v_and_b32 {v(lane)}, 63, v0\nv_lshrrev_b32 {v(tmp[0])}, 6, v0")
    k.nop(1)
    k(f"v_readfirstlane_b32 s{sW}, {v(tmp[0])}")
    k(f"s_sub_u32 s{sT1}, s{sT1}, 27\ns_lshl_b32 s{sT1}, s{sT1}, 3\ns_add_u32 s{sT1}, s{sT1}, s{sW}")
    k(f"s_and_b32 s{sT0}, s{sT0}, 1\ns_mul_i32 s{sT0}, s{sT0}, {4*270*1024}\ns_mul_i32 s{sT1}, s{sT1}, 27648\ns_add_u32 s{sT0}, s{sT0}, s{sT1}")
    k(f"v_lshlrev_b32 {v(tmp[1])}, 7, {v(lane)}")
    k("s_waitcnt lgkmcnt(0)")
    k(f"s_add_u32 s8, s4, {WS_W2P}\ns_addc_u32 s9, s5, 0\ns_and_b32 s9, s9, 0xffff\ns_mov_b32 s10, {W2P_BYTES}\ns_mov_b32 s11, 0x20000")
    for i in range(4 if 'nopf2' not in dbg else 0):
        k(f"buffer_load_dword {v(tmp[2])}, {v(tmp[1])}, s[8:11], s{sT0} offen")
        if i < 3: k(f"s_add_u32 s{sT0}, s{sT0}, 8192")
    k("s_waitcnt vmcnt(0)")
    k("s_endpgm")
    return k, nv, (102 if (prof or tl is not None) else 72)

if __name__ == "__main__":
    k, nv, ns = gen_ffn()
    print("vgprs", nv, "hazards", check_kernel(k), "lines", len(k.lines))
```

```python
from asm import *
from layout import *
def PROF_OFF(k): return {'qkv_kernel':0,'attn_kernel':1,'oproj_kernel':2,'ffn_kernel':3,'down_kernel':4}.get(k.name, 0) * 0x40000
import struct
def fbits(x): return struct.unpack("<I", struct.pack("<f", x))[0]

NST = 4
STG = 32768
NCH = 10
L_PS = NST * STG
L_PQ = L_PS + 4096
L_PC = L_PQ + 4096
L_RS = L_PC + 2048
L_MR = L_RS + 512
L_CS = L_MR + 512
LDS_QKV = L_CS + 512

def gen_qkv(name="qkv_kernel", prof=False, tl=None, dbg=(), pf_code=None):
    k = Kernel(name); k.prof = prof; k.tl = tl
    V = Alloc(1, 256)
    lane = V("lane"); tmp = [V(f"t{i}") for i in range(10)]
    dA0 = V("dA0"); dA1 = V("dA1"); dB = V("dB")
    vA = [[V(f"vA{h}{j}") for j in range(4)] for h in range(2)]
    vB = [[V(f"vB{h}{j}") for j in range(4)] for h in range(2)]
    st = V("st", 8, 2)
    cs4 = V("cs4", 4, 4); sel = V("sel", 4, 4); rs4 = [V("rs4a", 4, 4), V("rs4b", 4, 4)]
    vtch = V("vtch", 2, 2); vcp = V("vcp", 3, 2)
    ut = V("ut", 8, 2)
    acc = [V("acc0", 16, 4), V("acc1", 16, 4)]
    FA = [[[V(f"FA{b}{j}{i}", 4, 4) for i in range(2)] for j in range(4)] for b in range(2)]
    FB = [[V(f"FB{b}{j}", 4, 4) for j in range(4)] for b in range(2)]
    nv = V.next
    sW, sM, sN, sRB, sCB, sSec = 16, 17, 18, 19, 20, 21
    sT0, sT1, sT2, sT3 = 22, 23, 24, 25
    sAo, sBo, sLw, sOnes = 26, 27, 28, 29
    sX, sY = 30, 31
    done = k.L("done")
    k(f"s_cmp_ge_u32 s2, 256\ns_cbranch_scc1 {done}")
    k.tl_start()
    k.stamp(0); k.stamp_real(6)
    k(f"s_load_dwordx4 s[4:7], s[0:1], {KA_X}")
    if pf_code: k.code_prefetch_dist(pf_code, vcp + 2, vcp, 48, 54)
    k(f"s_load_dwordx2 s[36:37], s[0:1], {KA_WS}")
    k(f"s_and_b32 s{sT0}, s2, 7\ns_lshr_b32 s{sT1}, s2, 3")
    k(f"s_lshr_b32 s{sT2}, s{sT0}, 1\ns_lshl_b32 s{sT2}, s{sT2}, 2\ns_and_b32 s{sT3}, s{sT1}, 3\ns_add_u32 s{sRB}, s{sT2}, s{sT3}")
    k(f"s_and_b32 s{sT2}, s{sT0}, 1\ns_lshl_b32 s{sT2}, s{sT2}, 3\ns_lshr_b32 s{sT3}, s{sT1}, 2\ns_add_u32 s{sCB}, s{sT2}, s{sT3}")
    Lcs = k.L("colsum")
    k(f"s_cmp_ge_u32 s{sCB}, 15\ns_cbranch_scc1 {Lcs}")
    k(f"v_and_b32 {v(lane)}, 63, v0\nv_lshrrev_b32 {v(tmp[0])}, 6, v0")
    k.nop(1)
    k(f"v_readfirstlane_b32 s{sW}, {v(tmp[0])}")
    k(f"v_lshrrev_b32 {v(tmp[0])}, 3, {v(lane)}")
    k(f"v_lshrrev_b32 {v(tmp[1])}, 4, {v(lane)}")
    k(f"v_and_b32 {v(tmp[2])}, 7, {v(lane)}")
    k(f"v_xor_b32 {v(tmp[3])}, {v(tmp[2])}, {v(tmp[1])}")
    k(f"v_xor_b32 {v(tmp[4])}, 4, {v(tmp[3])}")
    k(f"s_lshl_b32 s{sT0}, s{sW}, 4")
    k(f"v_add_u32 {v(tmp[0])}, s{sT0}, {v(tmp[0])}\nv_mul_u32_u24 {v(tmp[0])}, 1280, {v(tmp[0])}")
    k(f"v_lshl_add_u32 {v(dA0)}, {v(tmp[3])}, 4, {v(tmp[0])}")
    k(f"v_lshl_add_u32 {v(dA1)}, {v(tmp[4])}, 4, {v(tmp[0])}\nv_add_u32 {v(dA1)}, {8*1280}, {v(dA1)}")
    k(f"v_bfe_u32 {v(tmp[2])}, {v(lane)}, 2, 2\nv_and_b32 {v(tmp[3])}, 3, {v(tmp[1])}\nv_xor_b32 {v(tmp[2])}, {v(tmp[2])}, {v(tmp[3])}")
    k(f"v_and_b32 {v(tmp[3])}, 3, {v(lane)}\nv_lshl_add_u32 {v(tmp[2])}, {v(tmp[2])}, 2, {v(tmp[3])}")
    k(f"s_lshl_b32 s{sT0}, s{sW}, 3")
    k(f"v_add_u32 {v(tmp[1])}, s{sT0}, {v(tmp[1])}\nv_mul_u32_u24 {v(tmp[1])}, 3840, {v(tmp[1])}")
    k(f"v_lshl_add_u32 {v(dB)}, {v(tmp[2])}, 4, {v(tmp[1])}")
    k(f"s_mul_i32 s{sAo}, s{sRB}, {128*1280}\ns_lshl_b32 s{sBo}, s{sCB}, 8\ns_lshl_b32 s{sLw}, s{sW}, 11")
    k(f"s_lshr_b32 s{sM}, s{sW}, 2\ns_and_b32 s{sN}, s{sW}, 3")
    k("s_waitcnt lgkmcnt(0)")
    k(f"s_mov_b32 s8, s4\ns_and_b32 s9, s5, 0xffff\ns_mov_b32 s10, {S*D*2}\ns_mov_b32 s11, 0x20000")
    k(f"s_mov_b32 s12, s6\ns_and_b32 s13, s7, 0xffff\ns_mov_b32 s14, {D*3*D*2}\ns_mov_b32 s15, 0x20000")
    def dma_ops(c):
        stg = (c % NST) * STG
        return [f"s_add_u32 m0, s{sLw}, {stg}\ns_add_u32 s{sX}, s{sAo}, {c*128}\nbuffer_load_dwordx4 {v(dA0)}, s[8:11], s{sX} offen lds",
                f"s_add_u32 m0, s{sLw}, {stg+1024}\ns_add_u32 s{sY}, s{sBo}, {c*64*3840}\nbuffer_load_dwordx4 {v(dA1)}, s[8:11], s{sX} offen lds",
                f"s_add_u32 m0, s{sLw}, {stg+16384}\ns_add_u32 s{sX}, s{sY}, {4*3840}\nbuffer_load_dwordx4 {v(dB)}, s[12:15], s{sY} offen lds",
                f"s_add_u32 m0, s{sLw}, {stg+16384+1024}\ns_nop 0\nbuffer_load_dwordx4 {v(dB)}, s[12:15], s{sX} offen lds"]
    pend0 = [-9] * (len(pf_code) if pf_code else 0)
    for c in range(2):
        for o in dma_ops(c): k(o); pend0.append(c)
    if 'notouch' not in dbg:
        Lt1 = k.L("t1"); Lt2 = k.L("t2")
        k(f"s_lshr_b32 s{sT0}, s2, 3\ns_lshl_b32 s{sT0}, s{sT0}, 3\ns_add_u32 s{sT0}, s{sT0}, s{sW}")
        k(f"s_cmp_ge_u32 s{sT0}, 80\ns_cbranch_scc1 {Lt1}")
        k(f"s_lshl_b32 s{sT0}, s{sT0}, 6\nv_add_u32 {v(vtch)}, s{sT0}, {v(lane)}")
        k(f"v_mul_u32_u24 {v(vtch+1)}, 6554, {v(vtch)}\nv_lshrrev_b32 {v(vtch+1)}, 16, {v(vtch+1)}")
        k(f"v_mul_u32_u24 {v(tmp[5])}, 10, {v(vtch+1)}\nv_sub_u32 {v(vtch)}, {v(vtch)}, {v(tmp[5])}")
        k(f"v_mul_u32_u24 {v(vtch+1)}, 1280, {v(vtch+1)}\nv_lshl_add_u32 {v(vtch)}, {v(vtch)}, 7, {v(vtch+1)}")
        k(f"s_and_b32 s{sT1}, s2, 6\ns_mul_i32 s{sT1}, s{sT1}, {256*1280}")
        k(f"buffer_load_dword {v(vtch+1)}, {v(vtch)}, s[8:11], s{sT1} offen\nbuffer_load_dword {v(vtch+1)}, {v(vtch)}, s[8:11], s{sT1} offen")
        k(f"s_branch {Lt2}")
        k.label(Lt1)
        k(f"s_sub_u32 s{sT0}, s{sT0}, 80\ns_min_u32 s{sT0}, s{sT0}, 79\ns_mul_i32 s{sT0}, s{sT0}, {8*3840}")
        k(f"v_lshrrev_b32 {v(vtch)}, 4, {v(lane)}\nv_mul_u32_u24 {v(vtch)}, 3840, {v(vtch)}\nv_and_b32 {v(vtch+1)}, 15, {v(lane)}\nv_lshl_add_u32 {v(vtch)}, {v(vtch+1)}, 7, {v(vtch)}")
        k(f"s_and_b32 s{sT1}, s2, 1\ns_lshl_b32 s{sT1}, s{sT1}, 11\ns_add_u32 s{sT0}, s{sT0}, s{sT1}\ns_add_u32 s{sT1}, s{sT0}, {4*3840}")
        k(f"buffer_load_dword {v(vtch+1)}, {v(vtch)}, s[12:15], s{sT0} offen\nbuffer_load_dword {v(vtch+1)}, {v(vtch)}, s[12:15], s{sT1} offen")
        k.label(Lt2)
        pend0 += [-1, -1]
    k.stamp(1)
    k(f"s_add_u32 s36, s36, {WS_QKV}\ns_addc_u32 s37, s37, 0\ns_and_b32 s37, s37, 0xffff\ns_mov_b32 s38, {QKV_BYTES}\ns_mov_b32 s39, 0x20000")
    k(f"s_lshl_b32 s{sT0}, s{sM}, 1\ns_add_u32 s{sT0}, s{sT0}, s{sN}")
    k(f"v_and_b32 {v(tmp[0])}, 31, {v(lane)}\nv_lshrrev_b32 {v(tmp[1])}, 5, {v(lane)}")
    k(f"s_lshl_b32 s{sT1}, s{sM}, 6\nv_add_u32 {v(tmp[2])}, s{sT1}, {v(tmp[0])}\nv_lshlrev_b32 {v(tmp[2])}, 7, {v(tmp[2])}")
    k(f"v_bfe_u32 {v(tmp[3])}, {v(lane)}, 1, 3")
    k(f"v_bfe_u32 {v(tmp[4])}, {v(lane)}, 2, 2")
    k(f"v_lshl_add_u32 {v(tmp[5])}, {v(tmp[1])}, 3, {v(tmp[4])}\nv_lshlrev_b32 {v(tmp[5])}, 8, {v(tmp[5])}")
    k(f"v_xor_b32 {v(tmp[4])}, s{sN}, {v(tmp[4])}\nv_lshl_add_u32 {v(tmp[5])}, {v(tmp[4])}, 6, {v(tmp[5])}")
    k(f"v_bfe_u32 {v(tmp[4])}, {v(lane)}, 4, 1\nv_lshl_add_u32 {v(tmp[5])}, {v(tmp[4])}, 5, {v(tmp[5])}")
    k(f"v_and_b32 {v(tmp[4])}, 3, {v(lane)}\nv_lshl_add_u32 {v(tmp[5])}, {v(tmp[4])}, 3, {v(tmp[5])}")
    k(f"v_add_u32 {v(tmp[5])}, 16384, {v(tmp[5])}")
    for j in range(4):
        k(f"s_add_u32 s{sT1}, s{sT0}, {j}\ns_and_b32 s{sT1}, s{sT1}, 3\ns_lshl_b32 s{sT2}, s{sT1}, 1\ns_lshl_b32 s{sT3}, s{sT1}, 12")
        k(f"v_add_u32 {v(tmp[4])}, s{sT2}, {v(tmp[1])}\nv_xor_b32 {v(tmp[4])}, {v(tmp[4])}, {v(tmp[3])}")
        k(f"v_lshl_add_u32 {v(vA[0][j])}, {v(tmp[4])}, 4, {v(tmp[2])}\nv_add_u32 {v(vA[1][j])}, 0x10000, {v(vA[0][j])}")
        k(f"v_add_u32 {v(vB[0][j])}, s{sT3}, {v(tmp[5])}\nv_add_u32 {v(vB[1][j])}, 0x10000, {v(vB[0][j])}")
    for i in range(8): k(f"v_mov_b32 {v(st+i)}, 0")
    k(f"v_bfe_u32 {v(tmp[4])}, {v(lane)}, 4, 1\nv_bfe_u32 {v(tmp[6])}, {v(lane)}, 3, 1")
    k(f"v_cmp_eq_u32 vcc, {v(tmp[4])}, {v(tmp[6])}")
    k(f"v_mov_b32 {v(tmp[4])}, 0x3f803f80\nv_mov_b32 {v(tmp[6])}, 0")
    for i in range(4): k(f"v_cndmask_b32 {v(sel+i)}, {v(tmp[6])}, {v(tmp[4])}, vcc")
    k(f"s_mov_b32 s{sOnes}, 0xffff0000")
    k(f"s_mul_i32 s{sSec}, s{sCB}, 52\ns_lshr_b32 s{sSec}, s{sSec}, 8")
    LV = k.L("vpath"); Lepi = k.L("epi")
    k(f"s_cmp_eq_u32 s{sSec}, 2\ns_cbranch_scc1 {LV}")

    def reads(c):
        b = c & 1; stg = c % NST; hi = stg >> 1; so = (stg & 1) * STG
        out = []
        for j in range(4):
            out.append(f"ds_read_b128 {v(FA[b][j][0],4)}, {v(vA[hi][j])} offset:{so}")
            out.append(f"ds_read_b64_tr_b16 {v(FB[b][j],2)}, {v(vB[hi][j])} offset:{so}")
            out.append(f"ds_read_b64_tr_b16 {v(FB[b][j]+2,2)}, {v(vB[hi][j])} offset:{so+1024}")
            out.append(f"ds_read_b128 {v(FA[b][j][1],4)}, {v(vA[hi][j])} offset:{so+4096}")
        return out
    def mainloop(vorient):
        pend = list(pend0)
        nxt_load = 2
        for c in range(-1, NCH):
            if c + 1 < NCH:
                idx = max(i for i, x in enumerate(pend) if x == c + 1)
                k(f"s_waitcnt vmcnt({len(pend) - 1 - idx})\ns_barrier")
            if c == -1: k.stamp(2)
            todo = []
            if c >= 0:
                while nxt_load < NCH and nxt_load - 4 <= c and len(todo) < 8 and (nxt_load <= c + 4):
                    todo += [(nxt_load, o) for o in dma_ops(nxt_load)]; nxt_load += 1
            rd = reads(c + 1) if (c + 1 < NCH and 'noread' not in dbg) else []
            mf = []; dots = [[] for _ in range(4)]
            if c >= 0:
                b = c & 1
                for j in range(4):
                    for i in range(2):
                        cin = v(acc[i], 16) if not (c == 0 and j == 0) else "0"
                        x, w_ = v(FA[b][j][i], 4), v(FB[b][j], 4)
                        if vorient: mf.append(f"v_mfma_f32_32x32x16_bf16 {v(acc[i],16)}, {x}, {w_}, {cin}")
                        else: mf.append(f"v_mfma_f32_32x32x16_bf16 {v(acc[i],16)}, {w_}, {x}, {cin}")
                dl = []
                g = []
                for i in range(2):
                    for r in range(4):
                        x = FA[b][0][i] + r; u = ut + 2 * ((4 * i + r) % 4)
                        g.append([f"v_lshlrev_b32 {v(u)}, 16, {v(x)}", f"v_and_b32 {v(u+1)}, s{sOnes}, {v(x)}",
                                  f"v_fmac_f32 {v(st+i)}, {v(u)}, {v(u)}", f"v_fmac_f32 {v(st+2+i)}, {v(u+1)}, {v(u+1)}"])
                dl += g[0][:2]
                for e in range(8):
                    if e + 1 < 8: dl += g[e+1][:2]
                    dl += g[e][2:]
                for i in range(2):
                    cin = v(rs4[i], 4) if c > 0 else "0"
                    mf.insert(1 + 5 * i, f"v_mfma_f32_16x16x32_bf16 {v(rs4[i],4)}, {v(sel,4)}, {v(FA[b][0][i],4)}, {cin}")
                for j in range(2):
                    cin = v(cs4, 4) if not (c == 0 and j == 0) else "0"
                    mf.insert(3 + 5 * j, f"v_mfma_f32_16x16x32_bf16 {v(cs4,4)}, {v(sel,4)}, {v(FB[b][j],4)}, {cin}")
            else:
                dl = []
            if 'novalu' in dbg: dl = []
            if 'nosel' in dbg and c >= 0: mf = [x for x in mf if '16x16' not in x]
            if 'nodot' in dbg and c >= 0: dl = []; mf = [x for x in mf if '16x16' not in x]
            if 'nomfma' in dbg: mf = []; rd = rd + dl
            if mf:
                nm = len(mf); ri = 0; di = 0; ti = 0
                per_d = (len(dl) + nm - 1) // nm
                for q in range(nm):
                    k(mf[q])
                    for x in rd[ri: ri+2]: k(x)
                    ri += 2
                    if ti < len(todo): k(todo[ti][1]); pend.append(todo[ti][0]); ti += 1
                    for x in dl[di: di+per_d]: k(x)
                    di += per_d
                assert ri >= len(rd) and di >= len(dl) and ti == len(todo)
            else:
                for x in rd: k(x)
            if rd: k("s_waitcnt lgkmcnt(0)")
    mainloop(False)
    k(f"s_branch {Lepi}")
    k.label(LV)
    mainloop(True)
    k.label(Lepi)
    k.stamp(3)
    k.nop(8)
    for i in range(2): k(f"v_add_f32 {v(st+i)}, {v(st+i)}, {v(st+2+i)}")
    r_, half = tmp[0], tmp[1]
    k(f"v_and_b32 {v(r_)}, 31, {v(lane)}\nv_lshrrev_b32 {v(half)}, 5, {v(lane)}")
    k(f"s_lshl_b32 s{sT0}, s{sM}, 11\ns_lshl_b32 s{sT1}, s{sN}, 3\ns_add_u32 s{sT0}, s{sT0}, s{sT1}\ns_add_u32 s{sT0}, s{sT0}, {L_PQ}")
    k(f"v_lshlrev_b32 {v(tmp[2])}, 5, {v(r_)}\nv_lshl_add_u32 {v(tmp[2])}, {v(half)}, 2, {v(tmp[2])}\nv_add_u32 {v(tmp[2])}, s{sT0}, {v(tmp[2])}")
    k(f"ds_write_b32 {v(tmp[2])}, {v(st)}\nds_write_b32 {v(tmp[2])}, {v(st+1)} offset:1024")
    k(f"s_lshl_b32 s{sT0}, s{sM}, 10\ns_lshl_b32 s{sT1}, s{sN}, 2\ns_add_u32 s{sT0}, s{sT0}, s{sT1}\ns_add_u32 s{sT0}, s{sT0}, {L_PS}")
    k(f"v_and_b32 {v(tmp[3])}, 15, {v(lane)}\nv_lshl_add_u32 {v(tmp[3])}, {v(half)}, 4, {v(tmp[3])}\nv_lshlrev_b32 {v(tmp[4])}, 4, {v(tmp[3])}\nv_add_u32 {v(tmp[4])}, s{sT0}, {v(tmp[4])}")
    k(f"ds_write_b32 {v(tmp[4])}, {v(rs4[0])}\nds_write_b32 {v(tmp[4])}, {v(rs4[1])} offset:512")
    k(f"s_lshl_b32 s{sT0}, s{sN}, 8\ns_lshl_b32 s{sT1}, s{sM}, 2\ns_add_u32 s{sT0}, s{sT0}, s{sT1}\ns_add_u32 s{sT0}, s{sT0}, {L_PC}")
    k(f"v_lshlrev_b32 {v(tmp[3])}, 3, {v(tmp[3])}\nv_add_u32 {v(tmp[3])}, s{sT0}, {v(tmp[3])}")
    k(f"ds_write_b32 {v(tmp[3])}, {v(cs4)}")
    k("s_waitcnt lgkmcnt(0)\ns_barrier")
    Lr2 = k.L("red2"); Lr3 = k.L("red3")
    T = FA[0][0][0]
    k(f"s_cmp_ge_u32 s{sW}, 2\ns_cbranch_scc1 {Lr2}")
    k(f"v_lshlrev_b32 {v(tmp[2])}, 5, v0\nv_add_u32 {v(tmp[2])}, {L_PQ}, {v(tmp[2])}\nv_lshlrev_b32 {v(tmp[3])}, 4, v0\nv_add_u32 {v(tmp[3])}, {L_PS}, {v(tmp[3])}")
    k(f"ds_read_b128 {v(T,4)}, {v(tmp[3])}")
    k(f"ds_read_b128 {v(T+8,4)}, {v(tmp[2])}\nds_read_b128 {v(T+12,4)}, {v(tmp[2])} offset:16")
    k("s_waitcnt lgkmcnt(0)")
    k(f"v_add_f32 {v(T)}, {v(T)}, {v(T+1)}\nv_add_f32 {v(T+2)}, {v(T+2)}, {v(T+3)}\nv_add_f32 {v(T)}, {v(T)}, {v(T+2)}")
    base = T + 8
    k(f"v_add_f32 {v(base)}, {v(base)}, {v(base+1)}\nv_add_f32 {v(base+2)}, {v(base+2)}, {v(base+3)}\nv_add_f32 {v(base+4)}, {v(base+4)}, {v(base+5)}\nv_add_f32 {v(base+6)}, {v(base+6)}, {v(base+7)}")
    k(f"v_add_f32 {v(base)}, {v(base)}, {v(base+2)}\nv_add_f32 {v(base+4)}, {v(base+4)}, {v(base+6)}\nv_add_f32 {v(base)}, {v(base)}, {v(base+4)}")
    k(f"v_mul_f32 {v(T)}, {fbits(1.0/D)}, {v(T)}\nv_mul_f32 {v(T+8)}, {fbits(1.0/D)}, {v(T+8)}")
    k(f"v_fma_f32 {v(T+8)}, -{v(T)}, {v(T)}, {v(T+8)}\nv_max_f32 {v(T+8)}, 0, {v(T+8)}\nv_add_f32 {v(T+8)}, {fbits(1e-5)}, {v(T+8)}")
    k(f"v_rsq_f32 {v(T+8)}, {v(T+8)}")
    k(f"s_cmp_eq_u32 s{sSec}, 0\ns_cselect_b32 s{sT0}, {fbits(QSCALE)}, 1.0")
    k(f"v_mul_f32 {v(T+8)}, s{sT0}, {v(T+8)}\nv_sub_f32 {v(T)}, 0, {v(T)}")
    k(f"v_lshlrev_b32 {v(tmp[2])}, 2, v0\nv_add_u32 {v(tmp[2])}, {L_RS}, {v(tmp[2])}")
    k(f"ds_write_b32 {v(tmp[2])}, {v(T+8)}\nds_write_b32 {v(tmp[2])}, {v(T)} offset:512")
    k(f"s_branch {Lr3}")
    k.label(Lr2)
    k(f"s_cmp_ge_u32 s{sW}, 4\ns_cbranch_scc1 {Lr3}")
    k(f"v_subrev_u32 {v(tmp[2])}, 128, v0\nv_lshlrev_b32 {v(tmp[3])}, 3, {v(tmp[2])}\nv_add_u32 {v(tmp[3])}, {L_PC}, {v(tmp[3])}")
    k(f"ds_read_b64 {v(T,2)}, {v(tmp[3])}\ns_waitcnt lgkmcnt(0)")
    k(f"v_add_f32 {v(T)}, {v(T)}, {v(T+1)}")
    k(f"v_lshlrev_b32 {v(tmp[2])}, 2, {v(tmp[2])}\nv_add_u32 {v(tmp[2])}, {L_CS}, {v(tmp[2])}\nds_write_b32 {v(tmp[2])}, {v(T)}")
    k.label(Lr3)
    k("s_waitcnt lgkmcnt(0)\ns_barrier")
    k.stamp(4)
    LVe = k.L("vepi")
    k(f"s_lshr_b32 s{sT0}, s{sRB}, 1\ns_mul_i32 s{sX}, s{sT0}, {BLK_STRIDE}")
    k(f"s_mul_i32 s{sT0}, s{sSec}, 5\ns_sub_u32 s{sCB}, s{sCB}, s{sT0}")
    k(f"s_cmp_eq_u32 s{sSec}, 2\ns_cbranch_scc1 {LVe}")
    CSr = T
    RS0, MR0, RS1, MR1 = tmp[4], tmp[5], tmp[6], tmp[7]
    k(f"s_lshl_b32 s{sT0}, s{sM}, 8\ns_add_u32 s{sT0}, s{sT0}, {L_RS}")
    k(f"v_lshl_add_u32 {v(tmp[2])}, {v(r_)}, 2, s{sT0}")
    k(f"ds_read_b32 {v(RS0)}, {v(tmp[2])}\nds_read_b32 {v(MR0)}, {v(tmp[2])} offset:512\nds_read_b32 {v(RS1)}, {v(tmp[2])} offset:128\nds_read_b32 {v(MR1)}, {v(tmp[2])} offset:{512+128}")
    k(f"s_lshl_b32 s{sT0}, s{sN}, 7\ns_add_u32 s{sT0}, s{sT0}, {L_CS}")
    k(f"v_lshl_add_u32 {v(tmp[2])}, {v(half)}, 4, s{sT0}")
    for j in range(4): k(f"ds_read_b128 {v(CSr+4*j,4)}, {v(tmp[2])} offset:{32*j}")
    k(f"s_and_b32 s{sT0}, s{sRB}, 1\ns_lshl_b32 s{sT0}, s{sT0}, 2\ns_lshl_b32 s{sT1}, s{sM}, 1\ns_add_u32 s{sT0}, s{sT0}, s{sT1}")
    k(f"s_cmp_eq_u32 s{sSec}, 0\ns_cselect_b32 s{sT1}, {Q1OFF}, {K1OFF}\ns_add_u32 s{sX}, s{sX}, s{sT1}")
    k(f"s_lshl_b32 s{sT2}, s{sT0}, 10\ns_lshl_b32 s{sT3}, s{sT0}, 8\ns_add_u32 s{sT3}, s{sT3}, {K2OFF}")
    k(f"s_lshl_b32 s{sT0}, s{sCB}, 5\ns_lshl_b32 s{sT1}, s{sN}, 3\ns_add_u32 s{sT0}, s{sT0}, s{sT1}")
    k(f"v_add_u32 {v(tmp[2])}, s{sT0}, {v(half)}")
    AD = T + 16
    a1, a2 = tmp[8], tmp[9]
    for j in range(4):
        q = tmp[3]
        k(f"v_add_u32 {v(q)}, {2*j}, {v(tmp[2])}")
        k(f"v_mul_u32_u24 {v(a1)}, 205, {v(q)}\nv_lshrrev_b32 {v(a1)}, 10, {v(a1)}")
        k(f"v_mul_u32_u24 {v(a2)}, 5, {v(a1)}\nv_sub_u32 {v(q)}, {v(q)}, {v(a2)}")
        k(f"v_mul_u32_u24 {v(a1)}, {HEAD_STRIDE}, {v(a1)}")
        k(f"v_lshrrev_b32 {v(a2)}, 1, {v(q)}\nv_lshlrev_b32 {v(a2)}, 9, {v(a2)}\nv_lshl_add_u32 {v(a2)}, {v(r_)}, 4, {v(a2)}")
        k(f"v_and_b32 {v(AD+2*j+1)}, 1, {v(q)}\nv_lshl_add_u32 {v(a2)}, {v(AD+2*j+1)}, 3, {v(a2)}\nv_add_u32 {v(a2)}, s{sT2}, {v(a2)}")
        k(f"v_lshl_add_u32 {v(AD+2*j+1)}, {v(r_)}, 3, s{sT3}")
        k(f"v_cmp_eq_u32 vcc, 4, {v(q)}")
        k(f"v_mov_b32 {v(q)}, 1024")
        k(f"v_mov_b32 {v(AD+2*j)}, 256")
        k(f"v_cndmask_b32 {v(a2)}, {v(a2)}, {v(AD+2*j+1)}, vcc")
        k(f"v_cndmask_b32 {v(q)}, {v(q)}, {v(AD+2*j)}, vcc")
        k(f"v_add_u32 {v(AD+2*j)}, {v(a1)}, {v(a2)}\nv_add_u32 {v(AD+2*j+1)}, {v(AD+2*j)}, {v(q)}")
    k("s_waitcnt lgkmcnt(0)")
    PK = T + 24
    for i in range(2):
        RS, MR = (RS0, MR0) if i == 0 else (RS1, MR1)
        for r in range(16):
            k(f"v_fmac_f32 {v(acc[i]+r)}, {v(CSr+r)}, {v(MR)}")
        for r in range(16):
            k(f"v_mul_f32 {v(acc[i]+r)}, {v(acc[i]+r)}, {v(RS)}")
        for j in range(4):
            p = PK + 8 * i + 2 * j
            k(f"v_cvt_pk_bf16_f32 {v(p)}, {v(acc[i]+4*j)}, {v(acc[i]+4*j+1)}\nv_cvt_pk_bf16_f32 {v(p+1)}, {v(acc[i]+4*j+2)}, {v(acc[i]+4*j+3)}")
            k(f"buffer_store_dwordx2 {v(p,2)}, {v(AD+2*j+i)}, s[36:39], s{sX} offen")
    k(f"s_branch L_qkv_end")
    k.label(LVe)
    CSv = tmp[4]
    k(f"s_lshl_b32 s{sT0}, s{sN}, 7\ns_add_u32 s{sT0}, s{sT0}, {L_CS}")
    k(f"v_lshl_add_u32 {v(tmp[2])}, {v(r_)}, 2, s{sT0}\nds_read_b32 {v(CSv)}, {v(tmp[2])}")
    k(f"s_lshl_b32 s{sT0}, s{sM}, 8\ns_add_u32 s{sT0}, s{sT0}, {L_RS}")
    k(f"v_lshl_add_u32 {v(tmp[2])}, {v(half)}, 4, s{sT0}")
    RSv = T; MRv = T + 32
    for i in range(2):
        for j in range(4):
            k(f"ds_read_b128 {v(RSv+16*i+4*j,4)}, {v(tmp[2])} offset:{128*i+32*j}")
            k(f"ds_read_b128 {v(MRv+16*i+4*j,4)}, {v(tmp[2])} offset:{512+128*i+32*j}")
    k(f"s_lshl_b32 s{sT0}, s{sCB}, 7\ns_lshl_b32 s{sT1}, s{sN}, 5\ns_add_u32 s{sT0}, s{sT0}, s{sT1}")
    k(f"v_add_u32 {v(tmp[3])}, s{sT0}, {v(r_)}")
    k(f"v_mul_u32_u24 {v(tmp[5])}, 3277, {v(tmp[3])}\nv_lshrrev_b32 {v(tmp[5])}, 16, {v(tmp[5])}")
    k(f"v_mul_u32_u24 {v(tmp[6])}, 20, {v(tmp[5])}\nv_sub_u32 {v(tmp[3])}, {v(tmp[3])}, {v(tmp[6])}")
    k(f"v_mul_u32_u24 {v(tmp[5])}, {HEAD_STRIDE}, {v(tmp[5])}\nv_lshl_add_u32 {v(tmp[5])}, {v(tmp[3])}, 4, {v(tmp[5])}")
    k(f"v_mul_u32_u24 {v(tmp[6])}, 320, {v(half)}\nv_add_u32 {v(tmp[5])}, {v(tmp[5])}, {v(tmp[6])}")
    k(f"s_and_b32 s{sT0}, s{sRB}, 1\ns_lshl_b32 s{sT0}, s{sT0}, 3\ns_lshl_b32 s{sT1}, s{sM}, 2\ns_add_u32 s{sT0}, s{sT0}, s{sT1}\ns_mul_i32 s{sT0}, s{sT0}, 640")
    k(f"s_add_u32 s{sX}, s{sX}, s{sT0}\ns_add_u32 s{sX}, s{sX}, {VOFF}")
    k("s_waitcnt lgkmcnt(0)")
    PK = T + 64
    for i in range(2):
        for r in range(16):
            k(f"v_fmac_f32 {v(acc[i]+r)}, {v(CSv)}, {v(MRv+16*i+r)}")
        for r in range(16):
            k(f"v_mul_f32 {v(acc[i]+r)}, {v(acc[i]+r)}, {v(RSv+16*i+r)}")
        for g in range(2):
            p = PK + 8 * i + 4 * g
            for q in range(4):
                k(f"v_cvt_pk_bf16_f32 {v(p+q)}, {v(acc[i]+8*g+2*q)}, {v(acc[i]+8*g+2*q+1)}")
            k(f"buffer_store_dwordx4 {v(p,4)}, {v(tmp[5])}, s[36:39], s{sX} offen offset:{(2*i+g)*640}")
    k.label("L_qkv_end")
    if prof:
        k.stamp(5); k.stamp_real(7)
        k("s_sub_u32 s36, s36, 0")
        k.prof_store(8, 36, WS_END + PROF_OFF(k), tmp[0], sW)
    k.tl_end(2)
    k.label(done)
    k("s_endpgm")
    k.label(Lcs)
    k(f"s_load_dwordx4 s[44:47], s[0:1], {KA_W1}")
    k(f"v_mul_u32_u24 {v(tmp[0])}, 2428, v0\nv_lshrrev_b32 {v(tmp[0])}, 16, {v(tmp[0])}")
    k(f"v_mul_u32_u24 {v(tmp[1])}, 27, {v(tmp[0])}\nv_sub_u32 {v(tmp[1])}, v0, {v(tmp[1])}")
    k(f"s_and_b32 s{sT0}, s{sRB}, 7\ns_mul_i32 s{sT0}, s{sT0}, 432")
    k(f"v_mul_u32_u24 {v(tmp[2])}, {40*F*2}, {v(tmp[0])}\nv_lshl_add_u32 {v(tmp[2])}, {v(tmp[1])}, 4, {v(tmp[2])}\nv_add_u32 {v(tmp[2])}, s{sT0}, {v(tmp[2])}")
    k("s_waitcnt lgkmcnt(0)")
    k(f"s_cmp_ge_u32 s{sRB}, 8\ns_cselect_b32 s8, s46, s44\ns_cselect_b32 s9, s47, s45\ns_and_b32 s9, s9, 0xffff\ns_mov_b32 s10, {D*F*2}\ns_mov_b32 s11, 0x20000")
    A8 = FA[0][0][0]; LD = A8 + 8
    for i in range(8): k(f"v_mov_b32 {v(A8+i)}, 0")
    Lsk = k.L("cs_skip")
    k(f"v_cmp_gt_u32 vcc, 16, {v(tmp[0])}")
    k(f"s_and_saveexec_b64 s[40:41], vcc\ns_cbranch_execz {Lsk}")
    k(f"s_mov_b32 s{sT1}, 0")
    Lcl = k.L("cs_loop")
    k.label(Lcl)
    for i in range(10):
        k(f"buffer_load_dwordx4 {v(LD+4*i,4)}, {v(tmp[2])}, s[8:11], s{sT1} offen\ns_add_u32 s{sT1}, s{sT1}, {F*2}")
    for i in range(10):
        k(f"s_waitcnt vmcnt({9-i})")
        for q in range(4):
            x = LD + 4 * i + q
            k(f"v_lshlrev_b32 {v(tmp[4])}, 16, {v(x)}\nv_and_b32 {v(tmp[5])}, 0xffff0000, {v(x)}")
            k(f"v_add_f32 {v(A8+2*q)}, {v(A8+2*q)}, {v(tmp[4])}\nv_add_f32 {v(A8+2*q+1)}, {v(A8+2*q+1)}, {v(tmp[5])}")
    k(f"s_cmp_lt_u32 s{sT1}, {40*F*2}\ns_cbranch_scc1 {Lcl}")
    k(f"v_mul_u32_u24 {v(tmp[3])}, 864, {v(tmp[0])}\nv_lshl_add_u32 {v(tmp[3])}, {v(tmp[1])}, 5, {v(tmp[3])}")
    k(f"ds_write_b128 {v(tmp[3])}, {v(A8,4)}\nds_write_b128 {v(tmp[3])}, {v(A8+4,4)} offset:16")
    k.label(Lsk)
    k("s_mov_b64 exec, s[40:41]")
    k("s_waitcnt lgkmcnt(0)\ns_barrier")
    Lsk2 = k.L("cs_skip2")
    k(f"v_cmp_gt_u32 vcc, 216, v0")
    k(f"s_and_saveexec_b64 s[40:41], vcc\ns_cbranch_execz {Lsk2}")
    k(f"v_lshlrev_b32 {v(tmp[3])}, 2, v0")
    for i in range(16): k(f"ds_read_b32 {v(LD+i)}, {v(tmp[3])} offset:{864*i}")
    k("s_waitcnt lgkmcnt(0)")
    for i in range(1, 16): k(f"v_add_f32 {v(LD)}, {v(LD)}, {v(LD+i)}")
    k(f"s_add_u32 s36, s36, {WS_CS}\ns_addc_u32 s37, s37, 0\ns_and_b32 s37, s37, 0xffff\ns_mov_b32 s38, {CS_BYTES}\ns_mov_b32 s39, 0x20000")
    k(f"s_mul_i32 s{sT0}, s{sRB}, 864")
    k(f"buffer_store_dword {v(LD)}, {v(tmp[3])}, s[36:39], s{sT0} offen")
    k.label(Lsk2)
    k("s_endpgm")
    return k, nv, (102 if (prof or tl is not None) else 64)

if __name__ == "__main__":
    k, nv, ns = gen_qkv()
    print("vgprs", nv, "hazards", check_kernel(k), "lines", len(k.lines))
```

```python
from asm import *
from layout import *
def PROF_OFF(k): return PROF_IDX.get(k.name, 0) * 0x40000
import struct
def fbits(x): return struct.unpack("<I", struct.pack("<f", x))[0]

def gen_t2p(mode, prof=False, tl=None, PFC=None, NPRE=2, dbg=('notouch',), pf_code=None):
    name = {"oproj": "oproj_kernel", "down": "down_kernel"}[mode]
    KS = 20 if mode == "oproj" else 54
    if PFC is None: PFC = 2
    NSH = KS // 2
    chunks = []
    s0 = 0
    while s0 < NSH:
        n = min(4, NSH - s0); chunks.append((s0, n)); s0 += n
    NC = len(chunks)
    NSTG = min(PFC + 1, NC)
    STG = 20480
    HALF = NSTG * STG
    LDS = max(2 * HALF, 20480)
    TSTR = KS * 1024
    NRA = min(PFC + 1, NC)
    k = Kernel(name); k.prof = prof; k.tl = tl
    V = Alloc(1, 256)
    lane = V("lane"); tmp = [V(f"t{i}") for i in range(8)]
    vl16 = V("vl16")
    vB = [V(f"vB{h}") for h in range((HALF + 40959) // 40960)]
    res = V("res", 10, 2)
    acc = [V(f"acc{j}", 4, 4) for j in range(5)]
    FA = [[V(f"FA{r}{q}", 4, 4) for q in range(4)] for r in range(NRA)]
    FB = [[V(f"FB{b}{j}", 4, 4) for j in range(5)] for b in range(2)]
    P2 = V("P2", 24, 4)
    nv = V.next
    sW, sRB, sCB, sI, sKH = 16, 17, 18, 19, 27
    sT0, sT1, sT2, sT3 = 20, 21, 22, 23
    sA, sB, sL = 24, 25, 26
    done = k.L("done")
    k(f"s_cmp_ge_u32 s2, 256\ns_cbranch_scc1 {done}")
    k.tl_start()
    k.stamp(0); k.stamp_real(6)
    k(f"s_load_dwordx2 s[4:5], s[0:1], {KA_WS}")
    k(f"s_load_dwordx2 s[28:29], s[0:1], {KA_X if mode == 'oproj' else KA_OUT}")
    k(f"s_and_b32 s{sT0}, s2, 7\ns_lshr_b32 s{sT1}, s2, 3")
    k(f"s_lshr_b32 s{sT2}, s{sT0}, 1\ns_lshl_b32 s{sT2}, s{sT2}, 3\ns_and_b32 s{sT3}, s{sT1}, 7\ns_add_u32 s{sRB}, s{sT2}, s{sT3}")
    k(f"s_and_b32 s{sT2}, s{sT0}, 1\ns_lshl_b32 s{sT2}, s{sT2}, 2\ns_lshr_b32 s{sT3}, s{sT1}, 3\ns_add_u32 s{sCB}, s{sT2}, s{sT3}")
    k(f"v_and_b32 {v(lane)}, 63, v0\nv_lshrrev_b32 {v(tmp[0])}, 6, v0")
    k(f"v_lshlrev_b32 {v(vl16)}, 4, {v(lane)}")
    k(f"v_readfirstlane_b32 s{sW}, {v(tmp[0])}")
    k(f"s_and_b32 s{sI}, s{sW}, 3\ns_lshr_b32 s{sKH}, s{sW}, 2")
    k(f"s_lshl_b32 s{sT0}, s{sRB}, 2\ns_add_u32 s{sT0}, s{sT0}, s{sI}\ns_mul_i32 s{sA}, s{sT0}, {TSTR}\ns_mul_i32 s{sT0}, s{sKH}, {NSH*1024}\ns_add_u32 s{sA}, s{sA}, s{sT0}")
    k(f"s_mul_i32 s{sB}, s{sCB}, {KS*5120}\ns_mul_i32 s{sT0}, s{sKH}, {NSH*5120}\ns_add_u32 s{sB}, s{sB}, s{sT0}\ns_mul_i32 s{sT1}, s{sI}, 5120\ns_add_u32 s{sB}, s{sB}, s{sT1}")
    k(f"s_mul_i32 s{sT2}, s{sKH}, {HALF}\ns_add_u32 s{sL}, s{sT2}, s{sT1}")
    k(f"v_add_u32 {v(vB[0])}, s{sT2}, {v(vl16)}")
    for h in range(1, len(vB)): k(f"v_add_u32 {v(vB[h])}, {h*40960}, {v(vB[0])}")
    k("s_waitcnt lgkmcnt(0)")
    aoff, abytes = (WS_O, O_BYTES) if mode == "oproj" else (WS_HH, HH_BYTES)
    boff, bbytes = (WS_WOP, WOP_BYTES) if mode == "oproj" else (WS_W2P, W2P_BYTES)
    k(f"s_add_u32 s8, s4, {aoff}\ns_addc_u32 s9, s5, 0\ns_and_b32 s9, s9, 0xffff\ns_mov_b32 s10, {abytes}\ns_mov_b32 s11, 0x20000")
    k(f"s_add_u32 s12, s4, {boff}\ns_addc_u32 s13, s5, 0\ns_and_b32 s13, s13, 0xffff\ns_mov_b32 s14, {bbytes}\ns_mov_b32 s15, 0x20000")
    def load_ops(c):
        s0, n = chunks[c]; stg = (c % NSTG) * STG
        ops = []
        for p in range(4):
            pre = f"s_add_u32 m0, s{sL}, {stg}\ns_add_u32 s{sT0}, s{sB}, {s0*5120}\n" if p == 0 else ""
            ops.append(pre + f"buffer_load_dwordx4 {v(vl16)}, s[12:15], s{sT0} offen offset:{p*1024} lds")
        ops.append(f"s_add_u32 m0, s{sL}, {stg+4096}\ns_add_u32 s{sT1}, s{sB}, {s0*5120+4096}\nbuffer_load_dwordx4 {v(vl16)}, s[12:15], s{sT1} offen lds")
        for q in range(n):
            pre = f"s_add_u32 s{sT2}, s{sA}, {s0*1024}\n" if q == 0 else ""
            ops.append(pre + f"buffer_load_dwordx4 {v(FA[c % NRA][q],4)}, {v(vl16)}, s[8:11], s{sT2} offen offset:{q*1024}")
        if 'noA' in dbg: ops = ops[:5]
        if 'noB' in dbg: ops = ops[5:]
        return ops
    nops = [len(load_ops(c)) for c in range(NC)]
    npre = min(NPRE, NC)
    vt = V("vt", 2, 2); vt2 = V("vt2", 3, 2)
    nv = V.next
    ntouch = 0
    for c in range(npre):
        for o in load_ops(c): k(o)
        if c == 0 and 'notouch' not in dbg:
            nl = 32 * TSTR // 128 // 256
            k(f"s_lshr_b32 s{sT0}, s2, 3\ns_lshl_b32 s{sT0}, s{sT0}, 3\ns_add_u32 s{sT0}, s{sT0}, s{sW}\ns_mul_i32 s{sT0}, s{sT0}, {nl*128}")
            k(f"s_bfe_u32 s{sT1}, s2, 0x20001\ns_mul_i32 s{sT1}, s{sT1}, {32*TSTR}\ns_add_u32 s{sT0}, s{sT0}, s{sT1}")
            k(f"v_min_u32 {v(vt)}, {nl-1}, {v(lane)}\nv_lshlrev_b32 {v(vt)}, 7, {v(vt)}")
            k(f"buffer_load_dword {v(vt+1)}, {v(vt)}, s[8:11], s{sT0} offen")
            ntouch = 1
    k.stamp(1)
    if pf_code:
        k.code_prefetch_dist(pf_code, vt2 + 2, vt2, 48, 54)
    tok, G = tmp[4], tmp[5]
    k(f"v_and_b32 {v(tok)}, 15, {v(lane)}\nv_lshrrev_b32 {v(G)}, 4, {v(lane)}")
    k(f"s_lshl_b32 s{sT0}, s{sRB}, 6\ns_lshl_b32 s{sT1}, s{sI}, 4\ns_add_u32 s{sT0}, s{sT0}, s{sT1}\nv_add_u32 {v(tok)}, s{sT0}, {v(tok)}")
    hb = tmp[6]
    k(f"v_lshrrev_b32 {v(tmp[0])}, 5, {v(tok)}\nv_mul_u32_u24 {v(hb)}, 40960, {v(tmp[0])}")
    k(f"v_and_b32 {v(tmp[0])}, 31, {v(tok)}\nv_lshl_add_u32 {v(hb)}, {v(tmp[0])}, 4, {v(hb)}")
    k(f"v_lshrrev_b32 {v(tmp[0])}, 1, {v(G)}\nv_lshl_add_u32 {v(hb)}, {v(tmp[0])}, 9, {v(hb)}")
    k(f"v_and_b32 {v(tmp[0])}, 1, {v(G)}\nv_lshl_add_u32 {v(hb)}, {v(tmp[0])}, 3, {v(hb)}")
    rm = tmp[7]
    k(f"v_mul_u32_u24 {v(rm)}, 1280, {v(tok)}\nv_lshl_add_u32 {v(rm)}, {v(G)}, 3, {v(rm)}")
    k(f"s_add_u32 s32, s4, {WS_H}\ns_addc_u32 s33, s5, 0\ns_and_b32 s33, s33, 0xffff\ns_mov_b32 s34, {H_BYTES}\ns_mov_b32 s35, 0x20000")
    k(f"s_mov_b32 s36, s28\ns_and_b32 s37, s29, 0xffff\ns_mov_b32 s38, {S*D*2}\ns_mov_b32 s39, 0x20000")
    k(f"s_mul_i32 s40, s{sCB}, 5120\ns_mul_i32 s41, s{sCB}, 160\ns_add_u32 s42, s40, 4096")
    def bread(c, q, j):
        off = (c % NSTG) * STG + (q * 5 + j) * 1024
        h = off // 40960
        gs = chunks[c][0] + q
        return f"ds_read_b128 {v(FB[gs & 1][j],4)}, {v(vB[h])} offset:{off - h*40960}"
    pend = []
    for c in range(npre):
        pend += [c] * nops[c]
        if c == 0: pend += [-3] * ntouch
    if pf_code: pend += [-4] * len(pf_code)
    def wait_chunk(c):
        idx = max(i for i, x in enumerate(pend) if x == c)
        k(f"s_waitcnt vmcnt({len(pend) - 1 - idx}) lgkmcnt(0)\ns_barrier")
    wait_chunk(0)
    k.stamp(2)
    for j in range(5): k(bread(0, 0, j))
    nxt_load = npre
    steps = [(c, q) for c in range(NC) for q in range(chunks[c][1])]
    res_issued = False
    for si, (c, q) in enumerate(steps):
        gs = chunks[c][0] + q
        last = si + 1 == len(steps)
        if not last:
            c2, q2 = steps[si + 1]
            if c2 != c: wait_chunk(c2)
        trick = []
        if q == 0:
            todo = []
            while nxt_load < NC and nxt_load <= c + PFC and nxt_load < c + NSTG + (1 if False else 0) and len(todo) < (20 if c == 0 else 9):
                todo += [(nxt_load, o) for o in load_ops(nxt_load)]; nxt_load += 1
            n_ = chunks[c][1]
            per = (len(todo) + n_ - 1) // n_
            sched = [todo[i*per:(i+1)*per] for i in range(n_)]
        trick = sched[q]
        for j in range(5):
            k(f"s_waitcnt lgkmcnt({4 if not last else 4 - j})") if not (last and j == 4) else k("s_waitcnt lgkmcnt(0)")
            cin = v(acc[j], 4) if si > 0 else "0"
            if 'nomfma' not in dbg: k(f"v_mfma_f32_16x16x32_bf16 {v(acc[j],4)}, {v(FB[gs & 1][j],4)}, {v(FA[c % NRA][q],4)}, {cin}")
            if not last: k(bread(c2, q2, j))
            for (cc, o) in trick[j::5]:
                k(o); pend.append(cc)
        if si == len(steps) - 6 or (len(steps) < 6 and si == 0):
            for j in range(5):
                if mode == "oproj": k(f"buffer_load_dwordx2 {v(res+2*j,2)}, {v(rm)}, s[36:39], s41 offen offset:{32*j}")
                else: k(f"buffer_load_dwordx2 {v(res+2*j,2)}, {v(hb)}, s[32:35], {'s40' if j < 4 else 's42'} offen" + (f" offset:{1024*j}" if j < 4 else ""))
                pend.append(-1)
    assert nxt_load == NC
    k.stamp(3)
    Lw = k.L("wr"); Lend = k.L("end")
    k.nop(8)
    k("s_barrier")
    k(f"s_mul_i32 s{sT0}, s{sI}, 5120\nv_add_u32 {v(tmp[1])}, s{sT0}, {v(vl16)}")
    k(f"s_cmp_eq_u32 s{sKH}, 0\ns_cbranch_scc1 {Lw}")
    for j in range(5): k(f"ds_write_b128 {v(tmp[1])}, {v(acc[j],4)} offset:{j*1024}")
    k("s_waitcnt lgkmcnt(0)\ns_barrier")
    k(f"s_branch {Lend}")
    k.label(Lw)
    k("s_barrier")
    P = P2
    for j in range(5): k(f"ds_read_b128 {v(P+4*j,4)}, {v(tmp[1])} offset:{j*1024}")
    k("s_waitcnt lgkmcnt(0)")
    for j in range(5):
        for r in range(4): k(f"v_add_f32 {v(P+4*j+r)}, {v(P+4*j+r)}, {v(acc[j]+r)}")
    k.stamp(4)
    k("s_waitcnt vmcnt(0)")
    U = P + 20
    for j in range(5):
        for q in range(2):
            x = res + 2 * j + q
            k(f"v_lshlrev_b32 {v(U)}, 16, {v(x)}\nv_and_b32 {v(U+1)}, 0xffff0000, {v(x)}")
            k(f"v_add_f32 {v(P+4*j+2*q)}, {v(P+4*j+2*q)}, {v(U)}\nv_add_f32 {v(P+4*j+2*q+1)}, {v(P+4*j+2*q+1)}, {v(U+1)}")
            k(f"v_cvt_pk_bf16_f32 {v(x)}, {v(P+4*j+2*q)}, {v(P+4*j+2*q+1)}")
    if mode == "oproj":
        for j in range(5):
            k(f"buffer_store_dwordx2 {v(res+2*j,2)}, {v(hb)}, s[32:35], {'s40' if j < 4 else 's42'} offen" + (f" offset:{1024*j}" if j < 4 else ""))
        U = FA[0][0]
        sm, sq = U + 2, U + 3
        k(f"v_mov_b32 {v(sm)}, 0\nv_mov_b32 {v(sq)}, 0")
        for x in range(10):
            k(f"v_lshlrev_b32 {v(U)}, 16, {v(res+x)}\nv_and_b32 {v(U+1)}, 0xffff0000, {v(res+x)}")
            k(f"v_add_f32 {v(sm)}, {v(sm)}, {v(U)}\nv_fmac_f32 {v(sq)}, {v(U)}, {v(U)}\nv_add_f32 {v(sm)}, {v(sm)}, {v(U+1)}\nv_fmac_f32 {v(sq)}, {v(U+1)}, {v(U+1)}")
        for sw in ("v_permlane16_swap_b32", "v_permlane32_swap_b32"):
            k(f"v_mov_b32 {v(U+4)}, {v(sm)}\nv_mov_b32 {v(U+5)}, {v(sm)}\nv_mov_b32 {v(U+6)}, {v(sq)}\nv_mov_b32 {v(U+7)}, {v(sq)}")
            k.nop(2)
            k(f"{sw} {v(U+4)}, {v(U+5)}\n{sw} {v(U+6)}, {v(U+7)}")
            k.nop(1)
            k(f"v_add_f32 {v(sm)}, {v(U+4)}, {v(U+5)}\nv_add_f32 {v(sq)}, {v(U+6)}, {v(U+7)}")
        k(f"s_add_u32 s44, s4, {WS_ST}\ns_addc_u32 s45, s5, 0\ns_and_b32 s45, s45, 0xffff\ns_mov_b32 s46, {ST_BYTES}\ns_mov_b32 s47, 0x20000")
        k(f"v_lshlrev_b32 {v(tmp[0])}, 6, {v(tok)}\ns_lshl_b32 s{sT0}, s{sCB}, 3")
        k("s_mov_b64 exec, 0xffff")
        k(f"buffer_store_dwordx2 {v(sm,2)}, {v(tmp[0])}, s[44:47], s{sT0} offen")
        k("s_mov_b64 exec, -1")
    else:
        for j in range(5):
            k(f"buffer_store_dwordx2 {v(res+2*j,2)}, {v(rm)}, s[36:39], s41 offen offset:{32*j}")
    k.label(Lend)
    if prof:
        Lp = k.L("p4")
        k(f"s_cmp_eq_u32 s{sKH}, 0\ns_cbranch_scc1 {Lp}")
        k.stamp(4)
        k.label(Lp)
    k.stamp(5); k.stamp_real(7)
    k.prof_store(8, 4, WS_END + PROF_OFF(k), tmp[0], sW)
    k.tl_end(2)
    k.label(done)
    k("s_endpgm")
    return k, nv, (102 if (prof or tl is not None) else 64), LDS

if __name__ == "__main__":
    for m in ("oproj", "down"):
        k, nv, ns, lds = gen_t2p(m)
        print(m, "vgprs", nv, "hazards", check_kernel(k), "lines", len(k.lines), "lds", lds)
```

```python
import sys
from asm import *
from layout import *
import build as B, k_qkv, k_attn, k_t3, k_ffn, k_t2p
def make(prof=False, tl=False, attn_dbg=(), ffn_dbg=(), qkv_dbg=('notouch',), t2p_kw={}, pf=True):
    T = (lambda i: i) if tl else (lambda i: None)
    k1, nv1, ns1 = k_qkv.gen_qkv(prof=prof, tl=T(0), dbg=qkv_dbg, pf_code=(['qkv_kernel', 'attn_kernel'] if pf else None))
    k2, nv2, ns2 = k_attn.gen_attn(prof=prof, tl=T(1), dbg=attn_dbg, pf_code=(['oproj_kernel'] if pf else None))
    k3, nv3, ns3, l3 = k_t2p.gen_t2p("oproj", prof=prof, tl=T(2), pf_code=(['ffn_kernel'] if pf else None), **t2p_kw)
    k4, nv4, ns4 = k_ffn.gen_ffn(prof=prof, tl=T(3), dbg=ffn_dbg, pf_code=(['down_kernel'] if pf else None))
    k5, nv5, ns5, l5 = k_t2p.gen_t2p("down", prof=prof, tl=T(4), **t2p_kw)
    ks = [(k1, nv1, ns1, 256, 512, k_qkv.LDS_QKV), (k2, nv2, ns2, 256, 512, 163840), (k3, nv3, ns3, 256, 512, l3),
          (k4, nv4, ns4, 256, 512, k_ffn.LDS_FFN), (k5, nv5, ns5, 256, 512, l5)]
    return ks
if __name__ == "__main__":
    out = B.assemble(make(tl=("--tl" in sys.argv)))
    path = sys.argv[1] if len(sys.argv) > 1 else "sequential_preLN__softmax_full_mha__glu_gated_swiglu__prompt.s"
    open(path, "w").write(out)
    print("wrote", path, len(out), "bytes")
```

```python
import re

def v(b, n=1):
    return f"v{b}" if n == 1 else f"v[{b}:{b+n-1}]"
def a(b, n=1):
    return f"a{b}" if n == 1 else f"a[{b}:{b+n-1}]"
def s(b, n=1):
    return f"s{b}" if n == 1 else f"s[{b}:{b+n-1}]"

class Alloc:
    def __init__(self, start=0, limit=256):
        self.next = start; self.limit = limit; self.names = {}
    def __call__(self, name, n=1, align=1):
        b = (self.next + align - 1) // align * align
        self.next = b + n
        assert self.next <= self.limit, f"out of registers allocating {name}: {self.next}"
        self.names[name] = (b, n)
        return b

class Kernel:
    def __init__(self, name):
        self.name = name; self.lines = []; self.uid = 0
    def __call__(self, txt):
        for t in txt.split("\n"):
            t = t.strip()
            if t: self.lines.append(t if t.endswith(":") else "  " + t)
    def label(self, l): self.lines.append(f"{l}:")
    def L(self, base):
        self.uid += 1
        return f"L_{self.name}_{base}_{self.uid}"
    def c(self, txt): self.lines.append(f"  ; {txt}")
    def nop(self, n):
        while n > 0:
            k = min(n, 16); self(f"s_nop {k-1}"); n -= k
    prof = False
    def stamp(self, i):
        if self.prof and self.prof != "light":
            self(f"s_memtime s[{64+2*i}:{65+2*i}]")
    def stamp_real(self, i):
        if self.prof:
            self(f"s_memrealtime s[{64+2*i}:{65+2*i}]")
    def prof_store(self, n, ws_pair, off, vtmp, wave_sgpr):
        if not self.prof: return
        if self.prof == "light":
            self("s_waitcnt lgkmcnt(0)")
            self(f"s_add_u32 s96, s{ws_pair}, {off}\ns_addc_u32 s97, s{ws_pair+1}, 0\ns_and_b32 s97, s97, 0xffff\ns_mov_b32 s98, 0x40000\ns_mov_b32 s99, 0x20000")
            self(f"s_lshl_b32 s62, s2, 4\ns_add_u32 s62, s62, s{wave_sgpr}\ns_lshl_b32 s62, s62, 6")
            self("s_mov_b64 exec, 1")
            self(f"v_mov_b32 v{vtmp}, s76\nv_mov_b32 v{vtmp+1}, s78\nv_mov_b32 v{vtmp+2}, 24")
            self(f"buffer_store_dwordx2 v[{vtmp}:{vtmp+1}], v{vtmp+2}, s[96:99], s62 offen")
            return
        self("s_waitcnt lgkmcnt(0)")
        self(f"s_add_u32 s96, s{ws_pair}, {off}\ns_addc_u32 s97, s{ws_pair+1}, 0\ns_and_b32 s97, s97, 0xffff\ns_mov_b32 s98, 0x40000\ns_mov_b32 s99, 0x20000")
        self(f"s_lshl_b32 s62, s2, 4\ns_add_u32 s62, s62, s{wave_sgpr}\ns_lshl_b32 s62, s62, 6")
        self("s_mov_b64 exec, 1")
        for i in range(n):
            self(f"v_mov_b32 v{vtmp}, s{64+2*i}")
            self(f"v_mov_b32 v{vtmp+1}, {4*i}")
            self(f"buffer_store_dword v{vtmp}, v{vtmp+1}, s[96:99], s62 offen")
            self("s_waitcnt vmcnt(0)")
        self("s_mov_b64 exec, -1")
    tl = None
    def tl_start(self):
        if self.tl is None: return
        self("s_memrealtime s[90:91]\ns_load_dwordx2 s[92:93], s[0:1], 64")
    def tl_end(self, vt):
        if self.tl is None: return
        i = self.tl
        L = self.L("tlskip")
        self("s_waitcnt vmcnt(0) lgkmcnt(0)\ns_memrealtime s[94:95]\ns_waitcnt lgkmcnt(0)")
        self(f"s_cmp_lg_u32 s2, 0\ns_cbranch_scc1 {L}")
        self(f"v_readfirstlane_b32 s95, v0\ns_nop 4\ns_cmp_ge_u32 s95, 64\ns_cbranch_scc1 {L}")
        for tgt in (0, 4):
            d = (tgt - i) * 512
            if d >= 0: self(f"s_add_u32 s96, s92, {d}\ns_addc_u32 s97, s93, 0")
            else: self(f"s_sub_u32 s96, s92, {-d}\ns_subb_u32 s97, s93, 0")
            self("s_and_b32 s97, s97, 0xffff\ns_mov_b32 s98, 256\ns_mov_b32 s99, 0x20000\ns_mov_b64 exec, 1")
            self(f"v_mov_b32 v{vt}, s90\nv_mov_b32 v{vt+1}, s94\nv_mov_b32 v{vt+2}, {8*i}")
            self(f"buffer_store_dwordx2 v[{vt}:{vt+1}], v{vt+2}, s[96:99], 0 offen")
            self("s_waitcnt vmcnt(0)")
        self.label(L)
    def code_prefetch(self, target, vaddr, vdst, spair, swave, lane, stmp):
        Lh = self.L("here")
        self(f"s_getpc_b64 s[{spair}:{spair+1}]")
        self.label(Lh)
        self(f"s_add_u32 s{spair}, s{spair}, {target} - {Lh}\ns_addc_u32 s{spair+1}, s{spair+1}, 0")
        self(f"v_lshlrev_b32 v{vaddr}, 7, v{lane}\ns_lshl_b32 s{stmp}, s{swave}, 13\nv_add_u32 v{vaddr}, s{stmp}, v{vaddr}")
        self(f"v_min_u32 v{vaddr}, {target}_end - {target} - 4, v{vaddr}")
        self(f"global_load_dword v{vdst}, v{vaddr}, s[{spair}:{spair+1}]")
    def code_prefetch_dist(self, targets, vaddr, vdst, spair, stmp):
        Lh = self.L("here")
        self(f"s_getpc_b64 s[{spair}:{spair+1}]")
        self.label(Lh)
        self(f"s_lshr_b32 s{stmp}, s2, 3\ns_and_b32 s{stmp}, s{stmp}, 31\ns_lshl_b32 s{stmp}, s{stmp}, 10")
        self(f"v_lshrrev_b32 v{vaddr}, 6, v0\nv_lshlrev_b32 v{vaddr}, 7, v{vaddr}\nv_add_u32 v{vaddr}, s{stmp}, v{vaddr}")
        self(f"s_mov_b64 s[{spair+2}:{spair+3}], exec\ns_mov_b64 exec, 1")
        self(f"s_sub_u32 s{spair+4}, s{spair}, 0x100000\ns_subb_u32 s{spair+5}, s{spair+1}, 0")
        for t in targets:
            self(f"v_min_u32 v{vdst+1}, {t}_end - {t} - 4, v{vaddr}")
            self(f"v_add_u32 v{vdst+1}, {t} - {Lh} + 0x100000, v{vdst+1}")
            self(f"global_load_dword v{vdst}, v{vdst+1}, s[{spair+4}:{spair+5}]")
        self(f"s_mov_b64 exec, s[{spair+2}:{spair+3}]")
    SN = 100
    def flags_srd(self, ws_pair, off, nbytes, srd=96):
        self(f"s_add_u32 s{srd}, s{ws_pair}, {off}\ns_addc_u32 s{srd+1}, s{ws_pair+1}, 0\ns_and_b32 s{srd+1}, s{srd+1}, 0xffff\ns_mov_b32 s{srd+2}, {nbytes}\ns_mov_b32 s{srd+3}, 0x20000")
    def dbg_srd(self, dbg_pair, srd):
        self(f"s_mov_b32 s{srd}, s{dbg_pair}\ns_and_b32 s{srd+1}, s{dbg_pair+1}, 0xffff\ns_mov_b32 s{srd+2}, 256\ns_mov_b32 s{srd+3}, 0x20000")
    def nonce_get(self, srd, vt, scnt):
        L = self.L("nonce"); Ld = self.L("nonce_done")
        self(f"s_mov_b32 s{scnt}, 0x40000\nv_mov_b32 v{vt}, 0")
        self.label(L)
        self(f"buffer_load_dword v{vt+1}, v{vt}, s[{srd}:{srd+3}], 0 offen sc1\ns_waitcnt vmcnt(0)")
        self(f"v_readfirstlane_b32 s{self.SN}, v{vt+1}\ns_nop 3\ns_cmp_lg_u32 s{self.SN}, 0\ns_cbranch_scc1 {Ld}")
        self(f"s_sleep 1\ns_sub_u32 s{scnt}, s{scnt}, 1\ns_cmp_lg_u32 s{scnt}, 0\ns_cbranch_scc1 {L}")
        self.label(Ld)
    def poll(self, addrs, vdst, srd, scnt):
        L = self.L("poll"); Ld = self.L("poll_done")
        self(f"s_mov_b32 s{scnt}, 0x40000")
        self.label(L)
        for i, a_ in enumerate(addrs): self(f"buffer_load_dword v{vdst+i}, v{a_}, s[{srd}:{srd+3}], 0 offen sc1")
        self("s_waitcnt vmcnt(0)")
        for i in range(len(addrs)):
            self(f"v_cmp_ne_u32 {'vcc' if i == 0 else 's[94:95]'}, s{self.SN}, v{vdst+i}")
            if i > 0: self("s_nop 3\ns_or_b64 vcc, vcc, s[94:95]")
        self("s_nop 4")
        self(f"s_cbranch_vccz {Ld}")
        self(f"s_sleep 1\ns_sub_u32 s{scnt}, s{scnt}, 1\ns_cmp_lg_u32 s{scnt}, 0\ns_cbranch_scc1 {L}")
        self.label(Ld)
    def poll_issue(self, addrs, vdst, vzero, srd=96, dsrd=88):
        self(f"buffer_load_dword v{vdst}, v{vzero}, s[{dsrd}:{dsrd+3}], 0 offen sc1")
        for i, a_ in enumerate(addrs): self(f"buffer_load_dword v{vdst+1+i}, v{a_}, s[{srd}:{srd+3}], 0 offen sc1")
    def poll_finish(self, addrs, vdst, vzero, n_younger, scnt=87, srd=96, dsrd=88):
        L = self.L("poll"); Lc = self.L("poll_chk"); Ld = self.L("poll_done")
        self(f"s_mov_b32 s{scnt}, 0x40000")
        self(f"s_waitcnt vmcnt({n_younger})\ns_branch {Lc}")
        self.label(L)
        self("s_sleep 1")
        self.poll_issue(addrs, vdst, vzero, srd, dsrd)
        self("s_waitcnt vmcnt(0)")
        self.label(Lc)
        self(f"v_readfirstlane_b32 s{self.SN}, v{vdst}\ns_nop 3")
        self(f"v_cmp_eq_u32 vcc, 0, v{vdst}")
        for i in range(len(addrs)):
            self(f"v_cmp_ne_u32 s[94:95], s{self.SN}, v{vdst+1+i}")
            self("s_nop 3\ns_or_b64 vcc, vcc, s[94:95]")
        self("s_nop 4")
        self(f"s_cbranch_vccz {Ld}")
        self(f"s_sub_u32 s{scnt}, s{scnt}, 1\ns_cmp_lg_u32 s{scnt}, 0\ns_cbranch_scc1 {L}")
        self.label(Ld)
    def signal(self, srd, soff, vt):
        self(f"s_mov_b64 exec, 1\nv_mov_b32 v{vt}, 0\nv_mov_b32 v{vt+1}, s{self.SN}\nbuffer_store_dword v{vt+1}, v{vt}, s[{srd}:{srd+3}], s{soff} offen sc1\ns_mov_b64 exec, -1")
    def mega_ptrs(self):
        self("s_load_dwordx4 s[92:95], s[0:1], 64")
    def mega_setup(self, WS_FL, FL_BYTES):
        self.dbg_srd(92, 88)
        self.flags_srd(94, WS_FL, FL_BYTES, 96)
    def mega_signal(self, WS_FL, FL_BYTES, soff_code, sW, vt, need_nonce=False, nonce_in=None, dsrd=88, ws_pair=None):
        L = self.L("nosig")
        self("s_waitcnt vmcnt(0)\ns_barrier")
        self(f"s_cmp_lg_u32 s{sW}, 0\ns_cbranch_scc1 {L}")
        if nonce_in is not None:
            Lok = self.L("nok")
            self(f"v_readfirstlane_b32 s{self.SN}, v{nonce_in}\ns_nop 3\ns_cmp_lg_u32 s{self.SN}, 0\ns_cbranch_scc1 {Lok}")
            self.nonce_get(dsrd, vt, 87)
            self.label(Lok)
            if ws_pair is not None: self.flags_srd(ws_pair, WS_FL, FL_BYTES, 96)
        if need_nonce:
            self.mega_ptrs(); self("s_waitcnt lgkmcnt(0)")
            self.mega_setup(WS_FL, FL_BYTES)
            self.nonce_get(88, vt, 87)
        self(soff_code)
        self.signal(96, 87, vt)
        self.label(L)
    def body(self):
        return f"{self.name}:\n" + "\n".join(self.lines) + f"\n{self.name}_end:\n"
    def text(self, nvgpr, nsgpr, accum_offset=None, extra=()):
        nv = nvgpr
        ao = accum_offset if accum_offset is not None else (nv + 3) // 4 * 4
        head = f""".text
.globl {self.name}
.p2align 8
.type {self.name},@function
{self.name}:
"""
        tail = f"""
.section .rodata,"a"
.p2align 6
.amdhsa_kernel {self.name}
  .amdhsa_next_free_vgpr {nv}
  .amdhsa_next_free_sgpr {nsgpr}
  .amdhsa_accum_offset {ao}
  .amdhsa_group_segment_fixed_size 0
  .amdhsa_kernarg_size 80
  .amdhsa_user_sgpr_count 2
  .amdhsa_user_sgpr_kernarg_segment_ptr 1
  .amdhsa_system_sgpr_workgroup_id_x 1
  .amdhsa_float_denorm_mode_32 3
  .amdhsa_float_denorm_mode_16_64 3
.end_amdhsa_kernel
"""
        return head + "\n".join(self.lines) + f"\n{self.name}_end:\n" + tail

_reg_re = re.compile(r"\b([vas])(\d+)\b|\b([vas])\[(\d+):(\d+)\]")
def regs_of(op):
    out = []
    op = op.strip()
    m = re.fullmatch(r"-?\|?(?:abs\()?([vas])(\d+)\)?\|?", op)
    if m: return [(m.group(1), int(m.group(2)))]
    m = re.fullmatch(r"-?([vas])\[(\d+):(\d+)\]", op)
    if m: return [(m.group(1), i) for i in range(int(m.group(2)), int(m.group(3)) + 1)]
    if op in ("vcc", "vcc_lo", "vcc_hi"): return [("s", "vcc")]
    if op in ("exec", "exec_lo", "exec_hi"): return [("s", "exec")]
    if op == "m0": return [("s", "m0")]
    return []

TRANS = ("v_exp_f32", "v_log_f32", "v_rcp_f32", "v_rsq_f32", "v_sqrt_f32", "v_sin_f32", "v_cos_f32", "v_exp_f16", "v_rcp_iflag_f32")
def parse(line):
    t = line.split(";")[0].strip()
    if not t or t.endswith(":") or t.startswith("."): return None
    parts = t.split(None, 1)
    opc = parts[0]
    ops = []
    if len(parts) > 1:
        cur = ""; depth = 0
        for ch in parts[1]:
            if ch in "[(": depth += 1
            if ch in "])": depth -= 1
            if ch == "," and depth == 0: ops.append(cur.strip()); cur = ""
            else: cur += ch
        ops.append(cur.strip())
        last = ops[-1].split()
        ops[-1] = last[0]; mods = last[1:]
    else:
        mods = []
    return opc, ops, mods

def passes(opc):
    if "32x32x16" in opc or "32x32x8" in opc: return 8
    if "16x16x32" in opc or "16x16x16" in opc: return 4
    raise ValueError(opc)

class Ins:
    __slots__ = ("opc", "dst", "src", "srcc", "kind", "states", "line", "mods", "ops")

def decode(line):
    p = parse(line)
    if p is None: return None
    opc, ops, mods = p
    I = Ins(); I.opc = opc; I.line = line.strip(); I.mods = mods; I.ops = ops
    I.dst = []; I.src = []; I.srcc = []; I.states = 1
    base = opc.replace("_e32", "").replace("_e64", "").replace("_dpp", "").replace("_sdwa", "")
    if opc == "s_nop":
        I.kind = "nop"; I.states = int(ops[0], 0) + 1; return I
    if opc.startswith("v_mfma"):
        I.kind = "mfma"; I.dst = regs_of(ops[0]); I.src = regs_of(ops[1]) + regs_of(ops[2]); I.srcc = regs_of(ops[3]); return I
    if opc.startswith("v_"):
        I.kind = "valu"
        if base in TRANS: I.kind = "trans"
        if base.startswith("v_cmp"):
            I.dst = regs_of(ops[0]); I.src = sum((regs_of(o) for o in ops[1:]), [])
            if base.startswith("v_cmpx"): I.dst += [("s", "exec")]
        elif base in ("v_readfirstlane_b32", "v_readlane_b32"):
            I.dst = regs_of(ops[0]); I.src = sum((regs_of(o) for o in ops[1:]), []); I.kind = "readlane"
        elif base in ("v_permlane32_swap_b32", "v_permlane16_swap_b32", "v_swap_b32"):
            I.dst = regs_of(ops[0]) + regs_of(ops[1]); I.src = list(I.dst)
            I.kind = "permlane" if "permlane" in base else "valu"
        elif base in ("v_add_co_u32", "v_sub_co_u32", "v_addc_co_u32", "v_subb_co_u32", "v_div_scale_f32", "v_mad_u64_u32"):
            I.dst = regs_of(ops[0]) + regs_of(ops[1]); I.src = sum((regs_of(o) for o in ops[2:]), [])
        else:
            I.dst = regs_of(ops[0]); I.src = sum((regs_of(o) for o in ops[1:]), [])
            if base in ("v_fmac_f32", "v_dot2c_f32_bf16", "v_writelane_b32", "v_pk_fmac_f16") or "UNUSED_PRESERVE" in " ".join(mods):
                I.src += I.dst
            if base == "v_cndmask_b32" and len(ops) == 3: I.src += [("s", "vcc")]
        if "dpp" in opc or any(m.startswith(("quad_perm", "row_", "wave_")) for m in mods):
            I.kind = "dpp" if I.kind == "valu" else I.kind
        return I
    if opc.startswith("ds_"):
        I.kind = "ds"
        if opc.startswith(("ds_read", "ds_bpermute", "ds_permute", "ds_swizzle")):
            I.dst = regs_of(ops[0]); I.src = sum((regs_of(o) for o in ops[1:]), [])
        else:
            I.src = sum((regs_of(o) for o in ops), [])
        return I
    if opc.startswith(("buffer_", "global_")):
        I.kind = "vmem"
        islds = "lds" in mods or "load_lds" in opc
        if "load" in opc and not islds:
            I.dst = regs_of(ops[0]); I.src = sum((regs_of(o) for o in ops[1:]), [])
        else:
            I.src = sum((regs_of(o) for o in ops), [])
        if islds: I.src += [("s", "m0")]; I.kind = "vmem_lds"
        if "store" in opc: I.kind = "vmem_store"
        return I
    if opc.startswith("s_"):
        I.kind = "salu"
        if opc.startswith(("s_cmp", "s_cbranch", "s_branch", "s_waitcnt", "s_barrier", "s_endpgm", "s_setprio", "s_sleep", "s_bitcmp")):
            I.src = sum((regs_of(o) for o in ops), [])
        else:
            I.dst = regs_of(ops[0]) if ops else []; I.src = sum((regs_of(o) for o in ops[1:]), [])
            if "saveexec" in opc: I.dst += [("s", "exec")]
        return I
    raise ValueError("unknown instr: " + line)

def isv(r): return r[0] in ("v", "a")

def check_seq(ins, name, problems):
    n = len(ins)
    for i, I in enumerate(ins):
        dist = 0
        D = set(I.dst)
        for j in range(i + 1, min(n, i + 40)):
            J = ins[j]
            need = 0; why = ""
            Jsrc = set(J.src); Jc = set(J.srcc); Jd = set(J.dst)
            if I.kind == "mfma":
                p = passes(I.opc)
                tbl = {4: (6, 8, 8, 3), 8: (10, 12, 12, 7)}[p]
                if J.kind == "mfma":
                    if D & Jc:
                        exact = (list(I.dst) == list(J.srcc)) and passes(J.opc) == p
                        if not exact: need = max(need, tbl[0]); why = "mfma D->mfma C partial"
                    if D & Jsrc: need = max(need, tbl[1]); why = "mfma D->mfma A/B"
                else:
                    if D & (Jsrc | Jd) and J.kind in ("valu", "trans", "dpp", "permlane", "readlane", "vmem", "vmem_store", "vmem_lds", "ds"):
                        need = max(need, tbl[2]); why = "mfma D->valu/mem"
                    if set(I.srcc) & Jd and J.kind in ("valu", "trans", "dpp", "permlane") :
                        need = max(need, tbl[3]); why = why or "mfma C read -> valu write (WAR)"
            if I.kind in ("valu", "trans", "dpp", "permlane", "readlane"):
                Dv = {r for r in D if isv(r)}; Ds = {r for r in D if not isv(r)}
                if J.kind == "mfma" and Dv & (Jsrc | Jc): need = max(need, 2); why = "valu->mfma operand"
                if I.kind == "trans" and J.kind in ("valu", "dpp", "permlane", "readlane", "mfma") and Dv & (Jsrc | Jc) : need = max(need, 1); why = why or "trans->use"
                if J.kind == "dpp" and Dv & Jsrc: need = max(need, 2); why = "valu->dpp"
                if J.kind == "permlane" and Dv & Jsrc: need = max(need, 2); why = "valu->permlane"
                if J.kind == "readlane" and Dv & Jsrc: need = max(need, 1); why = "valu->readlane"
                if Ds:
                    if J.kind in ("vmem", "vmem_store", "vmem_lds") and Ds & Jsrc: need = max(need, 5); why = "valu sgpr write->vmem"
                    if J.kind in ("valu", "trans", "dpp", "permlane", "mfma") and Ds & Jsrc and ("s", "exec") not in Ds: need = max(need, 2); why = "valu sgpr write->valu read"
                    if J.kind == "readlane" and Ds & Jsrc: need = max(need, 4); why = "valu sgpr->readlane sel"
                    if ("s", "exec") in Ds and J.kind == "mfma": need = max(need, 4); why = "valu exec->mfma"
                    if ("s", "exec") in Ds and J.kind in ("dpp",): need = max(need, 5); why = "valu exec->dpp"
                    if ("s", "exec") in Ds and J.kind in ("readlane", "permlane"): need = max(need, 4); why = "valu exec->lane op"
            if I.kind == "salu" and ("s", "m0") in D and J.kind == "vmem_lds": need = max(need, 1); why = "m0->lds dma"
            if I.kind == "vmem_store" and ("x4" in I.opc or "x3" in I.opc):
                data = set(regs_of(I.ops[0])) if I.opc.startswith("buffer") else set(regs_of(I.ops[1]))
                if data & Jd:
                    need = max(need, 2 if J.kind in ("valu", "trans", "dpp", "permlane") else 1); why = "wide store data WAR"
            if need > dist:
                problems.append(f"[{name}] {why}: need {need} have {dist}\n    {I.line}\n    {J.line}")
            dist += J.states
            if dist >= 21: break

def check_kernel(k):
    items = []
    labels = {}
    for ln in k.lines:
        t = ln.split(";")[0].strip()
        if t.endswith(":"):
            labels[t[:-1]] = len(items); continue
        I = decode(ln)
        if I is not None: items.append(I)
    problems = []
    check_seq(items, k.name + ":linear", problems)
    for i, I in enumerate(items):
        if I.opc.startswith(("s_cbranch", "s_branch")):
            tgt = labels.get(I.ops[0])
            if tgt is None: raise ValueError("label? " + I.line)
            seq = items[max(0, i - 40): i + 1] + items[tgt: tgt + 40]
            check_seq(seq, k.name + f":branch@{I.line}", problems)
    seen = [];
    for p in problems:
        key = p.split("\n", 1)[1]
        if key not in seen: seen.append(key); print("HAZARD", p)
    return len(seen)
```

```python
from asm import *
from layout import *
def PROF_OFF(k): return PROF_IDX.get(k.name, 0) * 0x40000
import struct
def fbits(x): return struct.unpack("<I", struct.pack("<f", x))[0]

def gen_attn(name="attn_kernel", prof=False, tl=None, dbg=(), pf_code=None, mega=False):
    k = Kernel(name); k.prof = prof; k.tl = tl
    V = Alloc(1, 256)
    lane = V("lane"); tmp = [V(f"t{i}") for i in range(8)]
    aK1 = V("aK1"); aK2 = V("aK2"); aV = V("aV"); vl16 = V("lane16")
    oad = [V(f"oad{j}") for j in range(2)]
    QA1 = V("QA1", 4, 4); QA2 = V("QA2", 4, 4); QB1 = V("QB1", 4, 4); QB2 = V("QB2", 4, 4)
    Kf = [(V(f"K{i}f1", 4, 4), V(f"K{i}f2", 4, 4)) for i in range(2)]
    Vf = [(V(f"V{i}f1", 4, 4), V(f"V{i}f2", 4, 4)) for i in range(2)]
    PA = V("PA", 8, 4); PB = V("PB", 8, 4)
    NA = V("negmA", 16, 4); NB = V("negmB", 16, 4)
    SA = V("SA", 16, 4); SB = V("SB", 16, 4)
    OA = V("OA", 16, 4); OB = V("OB", 16, 4)
    PKW = V("PKW", 16, 4); vpk = V("vpk", 6, 2); vpf = V("vpf", 2, 2); vpf2 = V("vpf2", 2, 2); vnon = V("vnon")
    nv = V.next
    sW, sG, sKH, sH, sQB = 16, 17, 18, 19, 20
    sT0, sT1, sT2, sT3 = 21, 22, 23, 28
    sVM = 24
    sIt, sNmax, sBar = 26, 27, 29
    sThr = 30; sT = 31; sLB = 32
    sDG, sDL = 66, 67
    sDG, sDL = 84, 85
    done = k.L("done")
    if not mega: k(f"s_cmp_ge_u32 s2, 256\ns_cbranch_scc1 {done}")
    k.tl_start()
    k.stamp(0); k.stamp_real(6)
    k(f"s_load_dwordx2 s[4:5], s[0:1], {KA_WS}")
    k(f"s_load_dwordx2 s[34:35], s[0:1], {KA_WO}")
    k(f"s_load_dwordx4 s[80:83], s[0:1], {KA_W1}")
    k(f"s_load_dwordx2 s[36:37], s[0:1], {KA_W2}")
    if mega: k.mega_ptrs()
    k(f"v_and_b32 {v(lane)}, 63, v0")
    k(f"v_lshrrev_b32 {v(tmp[0])}, 6, v0")
    k(f"v_lshlrev_b32 {v(vl16)}, 4, {v(lane)}")
    k(f"v_readfirstlane_b32 s{sW}, {v(tmp[0])}")
    k(f"s_and_b32 s{sT0}, s2, 7\ns_lshl_b32 s{sT0}, s{sT0}, 2\ns_lshr_b32 s{sT1}, s2, 6\ns_add_u32 s{sH}, s{sT0}, s{sT1}")
    k(f"s_lshr_b32 s{sT1}, s2, 3\ns_and_b32 s{sQB}, s{sT1}, 7")
    k(f"s_and_b32 s{sG}, s{sW}, 3\ns_lshr_b32 s{sKH}, s{sW}, 2")
    k(f"s_mul_i32 s33, s{sH}, {HEAD_STRIDE}")
    k(f"s_mul_i32 s{sT0}, s{sQB}, {BLK_STRIDE}")
    k(f"s_lshl_b32 s{sT1}, s{sG}, 11\ns_add_u32 s{sT1}, s{sT1}, s{sT0}\ns_add_u32 s38, s{sT1}, {Q1OFF}")
    k(f"s_lshl_b32 s{sT2}, s{sG}, 9\ns_add_u32 s{sT2}, s{sT2}, s{sT0}\ns_add_u32 s39, s{sT2}, {Q2OFF}")
    k(f"s_lshl_b32 s{sT0}, s{sKH}, 2")
    k(f"s_mul_i32 s{sDG}, s{sT0}, {BLK_STRIDE}\ns_mul_i32 s{sT2}, s{sG}, 5120\ns_add_u32 s{sDG}, s{sDG}, s{sT2}")
    k(f"s_mul_i32 s{sLB}, s{sT0}, {LBLK}\ns_add_u32 s{sDL}, s{sLB}, s{sT2}")
    for q in (QA2, QB2):
        k(f"v_pk_mov_b32 {v(q,2)}, 0, 0\nv_pk_mov_b32 {v(q+2,2)}, 0, 0")
    k(f"v_and_b32 {v(tmp[0])}, 31, {v(lane)}\nv_lshlrev_b32 {v(tmp[1])}, 3, {v(tmp[0])}")
    k("s_waitcnt lgkmcnt(0)")
    k(f"s_add_u32 s8, s4, s33\ns_addc_u32 s9, s5, 0\ns_and_b32 s9, s9, 0xffff\ns_mov_b32 s10, {HEAD_STRIDE}\ns_mov_b32 s11, 0x20000")
    if mega:
        k.mega_setup(WS_FL, FL_BYTES)
        k(f"v_mov_b32 {v(vpf2+1)}, 0")
        k(f"buffer_load_dword {v(vnon)}, {v(vpf2+1)}, s[88:91], 0 offen sc1")
        Lnp = k.L("nopoll")
        k(f"s_cmp_lg_u32 s{sW}, 0\ns_cbranch_scc1 {Lnp}")
        k(f"s_mul_i32 s86, s{sH}, 20\ns_lshr_b32 s87, s86, 7\ns_add_u32 s86, s86, 19\ns_lshr_b32 s86, s86, 7")
        k(f"v_lshrrev_b32 {v(tmp[4])}, 4, {v(lane)}\nv_and_b32 {v(tmp[5])}, 15, {v(lane)}")
        k(f"v_and_b32 {v(tmp[6])}, 1, {v(tmp[4])}\nv_cmp_eq_u32 vcc, 0, {v(tmp[6])}\nv_mov_b32 {v(tmp[6])}, s86\nv_mov_b32 {v(tmp[7])}, s87")
        k(f"v_cndmask_b32 {v(tmp[6])}, {v(tmp[6])}, {v(tmp[7])}, vcc")
        k(f"v_lshrrev_b32 {v(tmp[4])}, 1, {v(tmp[4])}\nv_mul_u32_u24 {v(tmp[4])}, 5, {v(tmp[4])}")
        k(f"v_add_u32 {v(tmp[7])}, {v(tmp[6])}, {v(tmp[4])}\nv_add_u32 {v(tmp[7])}, 5, {v(tmp[7])}")
        k(f"v_lshl_add_u32 {v(tmp[7])}, {v(tmp[7])}, 4, {v(tmp[5])}\nv_lshlrev_b32 {v(tmp[7])}, 2, {v(tmp[7])}")
        k(f"v_lshl_add_u32 {v(tmp[6])}, {v(tmp[6])}, 4, {v(tmp[5])}\nv_lshlrev_b32 {v(tmp[6])}, 2, {v(tmp[6])}")
        k.poll_issue([tmp[7], tmp[6]], PKW, vpf2 + 1)
        k.poll_finish([tmp[7], tmp[6]], PKW, vpf2 + 1, 0)
        k.label(Lnp)
        k("s_barrier")
    k(f"buffer_load_dwordx4 {v(QA1,4)}, {v(vl16)}, s[8:11], s38 offen")
    k(f"buffer_load_dwordx4 {v(QB1,4)}, {v(vl16)}, s[8:11], s38 offen offset:1024")
    k("s_mov_b32 exec_hi, 0")
    k(f"buffer_load_dwordx2 {v(QA2,2)}, {v(tmp[1])}, s[8:11], s39 offen")
    k(f"buffer_load_dwordx2 {v(QB2,2)}, {v(tmp[1])}, s[8:11], s39 offen offset:256")
    k("s_mov_b32 exec_hi, -1")
    def dma_ops():
        ops = []
        for i in range(4):
            pre = f"s_mov_b32 m0, s{sDL}\ns_add_u32 s{sT3}, s{sDG}, 4096\n" if i == 0 else ""
            ops.append(pre + f"buffer_load_dwordx4 {v(vl16)}, s[8:11], s{sDG} offen offset:{i*1024} lds")
        ops.append(f"s_add_u32 m0, s{sDL}, 4096\ns_add_u32 s{sDG}, s{sDG}, {BLK_STRIDE}\nbuffer_load_dwordx4 {v(vl16)}, s[8:11], s{sT3} offen lds\ns_add_u32 s{sDL}, s{sDL}, {LBLK}")
        return ops
    for o in dma_ops(): k(o)
    k.stamp(1)
    k(f"s_add_u32 s12, s4, {WS_O}\ns_addc_u32 s13, s5, 0\ns_and_b32 s13, s13, 0xffff\ns_mov_b32 s14, {O_BYTES}\ns_mov_b32 s15, 0x20000")
    k(f"v_add_u32 {v(aK1)}, s{sLB}, {v(vl16)}")
    k(f"s_add_u32 s{sT0}, s{sLB}, {K2OFF}\nv_add_u32 {v(aK2)}, s{sT0}, {v(tmp[1])}")
    k(f"v_lshrrev_b32 {v(tmp[2])}, 5, {v(lane)}")
    k(f"v_mul_u32_u24 {v(tmp[3])}, 320, {v(tmp[2])}")
    k(f"v_lshl_add_u32 {v(tmp[3])}, {v(tmp[0])}, 4, {v(tmp[3])}")
    k(f"s_add_u32 s{sT0}, s{sLB}, {VOFF}\nv_add_u32 {v(aV)}, s{sT0}, {v(tmp[3])}")
    k(f"s_mov_b32 s{sVM}, 0x000fffff\ns_mov_b32 s{sVM+1}, 0x000fffff")
    k(f"s_mov_b32 s{sThr}, 0x5f800000")
    k(f"s_mov_b32 s{sNmax}, 1")
    for b in range(2): k(f"v_pk_mov_b32 {v(Kf[b][1]+2,2)}, 0, 0")
    k(f"s_lshl_b32 s{sT0}, s{sQB}, 8\ns_lshl_b32 s{sT1}, s{sG}, 6\ns_add_u32 s{sT0}, s{sT0}, s{sT1}\ns_lshl_b32 s{sT1}, s{sKH}, 5\ns_add_u32 s{sT0}, s{sT0}, s{sT1}")
    k(f"v_add_u32 {v(tmp[4])}, s{sT0}, {v(tmp[0])}")
    k(f"v_lshrrev_b32 {v(tmp[5])}, 4, {v(tmp[4])}\nv_mul_u32_u24 {v(tmp[5])}, 24576, {v(tmp[5])}")
    k(f"v_and_b32 {v(tmp[4])}, 15, {v(tmp[4])}\nv_lshl_add_u32 {v(tmp[5])}, {v(tmp[4])}, 4, {v(tmp[5])}")
    k(f"s_mul_i32 s{sT0}, s{sH}, 3\nv_add_u32 {v(tmp[7])}, s{sT0}, {v(tmp[2])}")
    k(f"v_lshrrev_b32 {v(tmp[4])}, 2, {v(tmp[7])}\nv_lshl_add_u32 {v(oad[0])}, {v(tmp[4])}, 10, {v(tmp[5])}")
    k(f"v_and_b32 {v(tmp[4])}, 3, {v(tmp[7])}\nv_lshl_add_u32 {v(oad[0])}, {v(tmp[4])}, 8, {v(oad[0])}")
    k(f"s_add_u32 s{sT0}, s{sT0}, 2\ns_lshr_b32 s{sT1}, s{sT0}, 2\ns_lshl_b32 s{sT1}, s{sT1}, 10\ns_and_b32 s{sT0}, s{sT0}, 3\ns_lshl_b32 s{sT0}, s{sT0}, 8\ns_add_u32 s{sT0}, s{sT0}, s{sT1}")
    k(f"v_add_u32 {v(oad[1])}, s{sT0}, {v(tmp[5])}")
    k(f"s_mov_b32 s40, s34\ns_and_b32 s41, s35, 0xffff\ns_mov_b32 s42, {D*D*2}\ns_mov_b32 s43, 0x20000")
    k(f"s_mov_b32 s44, s36\ns_and_b32 s45, s37, 0xffff\ns_mov_b32 s46, {F*D*2}\ns_mov_b32 s47, 0x20000")
    k(f"s_add_u32 s48, s4, {WS_WOP}\ns_addc_u32 s49, s5, 0\ns_and_b32 s49, s49, 0xffff\ns_mov_b32 s50, {WOP_BYTES + W2P_BYTES}\ns_mov_b32 s51, 0x20000")
    k(f"v_lshrrev_b32 {v(vpk)}, 4, {v(lane)}\nv_and_b32 {v(vpk+1)}, 15, {v(lane)}\nv_lshlrev_b32 {v(vpk+1)}, 1, {v(vpk+1)}")
    k(f"s_lshl_b32 s52, s2, 3\ns_add_u32 s52, s52, s{sW}")
    k(f"v_lshrrev_b32 {v(vpf)}, 3, {v(lane)}\nv_mul_u32_u24 {v(vpf)}, {F*2}, {v(vpf)}\nv_and_b32 {v(vpf+1)}, 7, {v(lane)}\nv_lshl_add_u32 {v(vpf)}, {v(vpf+1)}, 7, {v(vpf)}")
    k(f"v_min_u32 {v(vpf)}, {4*F*2 + 7*128}, {v(vpf)}")
    def init_consts():
        ones = tmp[7]
        k(f"v_mov_b32 {v(tmp[6])}, 0x3f803f80\nv_mov_b32 {v(tmp[7])}, 0x3f803f80") if False else None
        if 'vones' in dbg:
            k(f"s_mov_b32 s86, 0x3f803f80\ns_mov_b32 s87, 0x3f803f80")
            for b in range(2):
                for f in range(2):
                    k(f"v_pk_mov_b32 {v(Vf[b][f],2)}, s[86:87], s[86:87]\nv_pk_mov_b32 {v(Vf[b][f]+2,2)}, s[86:87], s[86:87]")
        else:
            k(f"v_and_b32 {v(tmp[6])}, 31, {v(lane)}\nv_cmp_eq_u32 vcc, 20, {v(tmp[6])}\nv_mov_b32 {v(tmp[7])}, 0x3f803f80\nv_mov_b32 {v(tmp[6])}, 0")
            k(f"v_cndmask_b32 {v(tmp[6])}, {v(tmp[6])}, {v(tmp[7])}, vcc\nv_mov_b32 {v(tmp[7])}, {v(tmp[6])}") if False else None
            k(f"s_nop 0\nv_cndmask_b32 {v(tmp[6])}, {v(tmp[6])}, {v(tmp[7])}, vcc")
            k(f"v_mov_b32 {v(tmp[7])}, {v(tmp[6])}")
            for b in range(2):
                for f in range(2):
                    k(f"v_pk_mov_b32 {v(Vf[b][f],2)}, {v(tmp[6],2)}, {v(tmp[6],2)}\nv_pk_mov_b32 {v(Vf[b][f]+2,2)}, {v(tmp[6],2)}, {v(tmp[6],2)}")
        for i in range(0, 12, 2): k(f"v_pk_mov_b32 {v(OA+i,2)}, 0, 0\nv_pk_mov_b32 {v(OB+i,2)}, 0, 0")
        k(f"v_pk_mov_b32 {v(PB+4,2)}, 0, 0\nv_pk_mov_b32 {v(PB+6,2)}, 0, 0")
    init_consts()
    k("s_waitcnt vmcnt(0)")
    if pf_code: k.code_prefetch_dist(pf_code, tmp[2], vpf2, 86, 92)
    k("s_barrier")
    k.stamp(2)
    Lmax = k.L("max"); Lmloop = k.L("mloop")
    k.label(Lmax)
    mA, mB = tmp[4], tmp[5]
    k(f"v_mov_b32 {v(mA)}, 0xff800000\nv_mov_b32 {v(mB)}, 0xff800000")
    k(f"s_mov_b32 s{sT}, 0")
    k.label(Lmloop)
    k(f"s_lshr_b32 s{sT0}, s{sT}, 3\ns_mul_i32 s{sT0}, s{sT0}, {LBLK}\ns_and_b32 s{sT1}, s{sT}, 7")
    k(f"s_lshl_b32 s{sT2}, s{sT1}, 10\ns_add_u32 s{sT2}, s{sT2}, s{sT0}")
    k(f"s_lshl_b32 s{sT3}, s{sT1}, 8\ns_add_u32 s{sT3}, s{sT3}, s{sT0}")
    k(f"v_add_u32 {v(tmp[6])}, s{sT2}, {v(aK1)}\nv_add_u32 {v(tmp[7])}, s{sT3}, {v(aK2)}")
    k(f"ds_read_b128 {v(Kf[1][0],4)}, {v(tmp[6])}\nds_read_b64 {v(Kf[1][1],2)}, {v(tmp[7])}")
    k(f"ds_read_b128 {v(Kf[0][0],4)}, {v(aK1)}\nds_read_b64 {v(Kf[0][1],2)}, {v(aK2)}")
    k(f"s_mov_b64 exec, s[{sVM}:{sVM+1}]")
    k(f"ds_read_b128 {v(Vf[0][0],4)}, {v(aV)}\nds_read_b128 {v(Vf[0][1],4)}, {v(aV)} offset:640")
    k("s_mov_b64 exec, -1")
    k("s_waitcnt lgkmcnt(4)")
    k(f"v_mfma_f32_32x32x16_bf16 {v(SA,16)}, {v(Kf[1][0],4)}, {v(QA1,4)}, 0")
    k(f"v_mfma_f32_32x32x16_bf16 {v(SB,16)}, {v(Kf[1][0],4)}, {v(QB1,4)}, 0")
    k(f"v_mfma_f32_32x32x16_bf16 {v(SA,16)}, {v(Kf[1][1],4)}, {v(QA2,4)}, {v(SA,16)}")
    k(f"v_mfma_f32_32x32x16_bf16 {v(SB,16)}, {v(Kf[1][1],4)}, {v(QB2,4)}, {v(SB,16)}")
    k.nop(11)
    for (m, Sx) in ((mA, SA), (mB, SB)):
        for i in range(8):
            k(f"v_max3_f32 {v(m)}, {v(Sx+2*i)}, {v(Sx+2*i+1)}, {v(m)}")
    k(f"s_add_u32 s{sT}, s{sT}, 1\ns_cmp_lt_u32 s{sT}, s{sNmax}\ns_cbranch_scc1 {Lmloop}")
    k(f"v_mov_b32 {v(tmp[6])}, {v(mA)}\nv_mov_b32 {v(tmp[7])}, {v(mA)}\nv_mov_b32 {v(tmp[2])}, {v(mB)}\nv_mov_b32 {v(tmp[3])}, {v(mB)}")
    k.nop(1)
    k(f"v_permlane32_swap_b32 {v(tmp[6])}, {v(tmp[7])}\nv_permlane32_swap_b32 {v(tmp[2])}, {v(tmp[3])}")
    k.nop(1)
    k(f"v_max_f32 {v(tmp[6])}, {v(tmp[6])}, {v(tmp[7])}\nv_max_f32 {v(tmp[2])}, {v(tmp[2])}, {v(tmp[3])}")
    k(f"v_sub_f32 {v(NA)}, 0, {v(tmp[6])}\nv_sub_f32 {v(NA+1)}, 0, {v(tmp[6])}\nv_sub_f32 {v(NB)}, 0, {v(tmp[2])}\nv_sub_f32 {v(NB+1)}, 0, {v(tmp[2])}")
    for i in range(2, 16, 2): k(f"v_pk_mov_b32 {v(NA+i,2)}, {v(NA,2)}, {v(NA,2)}")
    k("s_waitcnt lgkmcnt(0)")
    k.nop(1)
    k(f"v_mfma_f32_32x32x16_bf16 {v(SA,16)}, {v(Kf[0][0],4)}, {v(QA1,4)}, {v(NA,16)}")
    k(f"v_mfma_f32_32x32x16_bf16 {v(SA,16)}, {v(Kf[0][1],4)}, {v(QA2,4)}, {v(SA,16)}")
    for i in range(2, 16, 2): k(f"v_pk_mov_b32 {v(NB+i,2)}, {v(NB,2)}, {v(NB,2)}")
    k(f"s_mov_b32 s{sIt}, 0")
    k.nop(3)
    k.stamp(3)
    M = lambda d, x, y, c: f"v_mfma_f32_32x32x16_bf16 {v(d,16)}, {v(x,4)}, {v(y,4)}, {v(c,16)}"
    def phase(Sx, Px, mf, pre, side):
        e = lambda i: f"v_exp_f32 {v(Sx+i)}, {v(Sx+i)}"
        if 'x_noexp' in dbg: e = lambda i: f"v_rcp_iflag_f32 {v(tmp[7])}, {v(tmp[6])}" if False else f"v_exp_f32 {v(Sx+i)}, {v(tmp[6])}"
        c = lambda j: f"v_cvt_pk_bf16_f32 {v(Px+j)}, {v(Sx+2*j)}, {v(Sx+2*j+1)}"
        if 'x_nopv' in dbg: mf = [mf[0], "s_nop 1", mf[2], "s_nop 1"]
        if 'x_noqk' in dbg: mf = ["s_nop 1", mf[1], "s_nop 1", mf[3]]
        if 'x_nomf' in dbg: mf = ["s_nop 1"] * 4
        seq = [mf[0]] + pre + [e(0), e(1), e(2), e(3), c(0), mf[1], c(1), e(4), e(5), e(6), e(7), c(2),
               mf[2], c(3), e(8), e(9), e(10), e(11), c(4), mf[3], c(5), e(12), e(13), e(14), "s_waitcnt lgkmcnt(0)", e(15), c(6), c(7)]
        side = list(side)
        for x in seq:
            k(x)
            if side and (x.startswith("v_exp")) :
                k(side.pop(0))
        assert not side
    def pack_ops(slot):
        o = []
        G, I2, VA, VB, X, Y = vpk, vpk + 1, vpk + 2, vpk + 3, vpk + 4, vpk + 5
        pre = f"s_add_u32 s53, s52, {2048*slot}\ns_lshl_b32 s{54+slot}, s53, 10\n"
        if slot == 1: pre += f"s_cmp_ge_u32 s53, {NPACK}\ns_cselect_b32 s55, -1, s55\ns_cselect_b32 s53, s52, s53\n"
        pre += f"s_cmp_lt_u32 s53, {NWOF}\ns_cselect_b32 s56, s40, s44\ns_cselect_b32 s57, s41, s45\ns_cselect_b32 s58, s42, s46\ns_mov_b32 s59, 0x20000\ns_cselect_b64 s[92:93], -1, 0"
        o.append(pre)
        o.append(f"s_cselect_b32 s60, 0, {NWOF}\ns_mov_b32 s61, 270\ns_cselect_b32 s61, 120, s61\ns_mov_b32 s62, {(1<<20)//270+1}\ns_cselect_b32 s62, {(1<<20)//120+1}, s62\ns_sub_u32 s53, s53, s60")
        o.append(f"s_mul_i32 s63, s53, s62\ns_lshr_b32 s63, s63, 20\ns_mul_i32 s60, s63, s61\ns_sub_u32 s53, s53, s60\ns_mul_i32 s60, s53, 52429\ns_lshr_b32 s60, s60, 18")
        o.append(f"s_mul_i32 s61, s60, 5\ns_sub_u32 s53, s53, s61\ns_mul_i32 s63, s63, 160\ns_lshl_b32 s53, s53, 5\ns_add_u32 s61, s63, s53\ns_lshl_b32 s62, s60, 2\ns_lshl_b32 s63, s60, 3")
        o.append(f"v_add_u32 {v(X)}, s62, {v(G)}\nv_mul_u32_u24 {v(Y)}, 43, {v(X)}\nv_lshrrev_b32 {v(Y)}, 7, {v(Y)}\nv_mul_u32_u24 {v(VA)}, 3, {v(Y)}\nv_sub_u32 {v(X)}, {v(X)}, {v(VA)}")
        o.append(f"v_lshlrev_b32 {v(X)}, 2, {v(X)}\nv_mul_u32_u24 {v(Y)}, 5, {v(Y)}\nv_mov_b32 {v(VA)}, 0x410\nv_lshrrev_b32 {v(VA)}, {v(X)}, {v(VA)}\nv_and_b32 {v(VA)}, 7, {v(VA)}\nv_add_u32 {v(VA)}, {v(VA)}, {v(Y)}")
        o.append(f"v_mov_b32 {v(VB)}, 0x432\nv_lshrrev_b32 {v(VB)}, {v(X)}, {v(VB)}\nv_and_b32 {v(VB)}, 7, {v(VB)}\nv_add_u32 {v(VB)}, {v(VB)}, {v(Y)}")
        o.append(f"v_add_u32 {v(X)}, s63, {v(G)}\nv_add_u32 {v(Y)}, 4, {v(X)}\nv_cndmask_b32 {v(VA)}, {v(X)}, {v(VA)}, s[92:93]\nv_cndmask_b32 {v(VB)}, {v(Y)}, {v(VB)}, s[92:93]")
        o.append(f"v_mul_u32_u24 {v(VA)}, 5120, {v(VA)}\nv_mul_u32_u24 {v(VB)}, 5120, {v(VB)}\nv_add_u32 {v(VA)}, {v(VA)}, {v(I2)}\nv_add_u32 {v(VB)}, {v(VB)}, {v(I2)}")
        for sk in range(8):
            op = "buffer_load_short_d16" if sk % 2 == 0 else "buffer_load_short_d16_hi"
            o.append(f"{op} {v(PKW+8*slot+sk//2+4*(sk%2))}, {v(VA if sk < 4 else VB)}, s[56:59], s61 offen offset:{(sk & 3)*1280}")
        return o
    def w13_prefetch():
        t = f"s_and_b32 s{sT0}, s2, 3\ns_mul_i32 s{sT0}, s{sT0}, 27\ns_lshr_b32 s{sT0}, s{sT0}, 2\ns_lshl_b32 s{sT0}, s{sT0}, 7\n"
        t += f"s_lshr_b32 s{sT1}, s2, 3\ns_lshl_b32 s{sT1}, s{sT1}, 3\ns_add_u32 s{sT1}, s{sT1}, s{sW}\n"
        t += f"s_and_b32 s{sT2}, s{sT1}, 127\ns_mul_i32 s{sT2}, s{sT2}, {5*F*2}\ns_add_u32 s{sT0}, s{sT0}, s{sT2}\n"
        t += f"s_cmp_ge_u32 s{sT1}, 128\ns_cselect_b32 s88, s82, s80\ns_cselect_b32 s89, s83, s81\ns_and_b32 s89, s89, 0xffff\ns_mov_b32 s90, {D*F*2}\ns_mov_b32 s91, 0x20000\n"
        t += f"buffer_load_dword {v(vpf+1)}, {v(vpf)}, s[88:91], s{sT0} offen"
        return [t]
    def code_prefetch():
        Lh = k.L("here")
        t = f"s_getpc_b64 s[88:89]\n{Lh}:\ns_add_u32 s88, s88, {pf_code} - {Lh}\ns_addc_u32 s89, s89, 0\nglobal_load_dword {v(vpf+1)}, {v(vpc)}, s[88:89]"
        return [t]
    def tile(tt, sideA=(), sideB=(), pre_hook=None):
        cur = tt & 1; nxt = cur ^ 1
        n1 = tt + 1
        koff1 = n1 * 1024 if n1 < 8 else LBLK
        koff2 = n1 * 256 if n1 < 8 else LBLK
        voff = n1 * 1280 if n1 < 8 else LBLK
        if pre_hook: k(pre_hook)
        pre = [f"ds_read_b128 {v(Kf[nxt][0],4)}, {v(aK1)} offset:{koff1}", f"ds_read_b64 {v(Kf[nxt][1],2)}, {v(aK2)} offset:{koff2}"]
        phase(SA, PA, [M(SB, Kf[cur][0], QB1, NB), M(OB, Vf[nxt][1], PB+4, OB), M(SB, Kf[cur][1], QB2, SB), M(OA, Vf[cur][0], PA, OA)], pre, sideA)
        pre = [f"s_mov_b64 exec, s[{sVM}:{sVM+1}]", f"ds_read_b128 {v(Vf[nxt][0],4)}, {v(aV)} offset:{voff}",
               f"ds_read_b128 {v(Vf[nxt][1],4)}, {v(aV)} offset:{voff+640}", "s_mov_b64 exec, -1"]
        phase(SB, PB, [M(SA, Kf[nxt][0], QA1, NA), M(OA, Vf[cur][1], PA+4, OA), M(SA, Kf[nxt][1], QA2, SA), M(OB, Vf[cur][0], PB, OB)], pre, sideB)
    def iter_end():
        k(f"v_add_u32 {v(aK1)}, {LBLK}, {v(aK1)}\nv_add_u32 {v(aK2)}, {LBLK}, {v(aK2)}\nv_add_u32 {v(aV)}, {LBLK}, {v(aV)}")
    Lloop = k.L("loop"); Lafter = k.L("after")
    if 'solo' in dbg:
        Lgo = k.L("go")
        k(f"s_cmp_eq_u32 s{sKH}, 0\ns_cbranch_scc1 {Lgo}")
        for _ in range(3):
            for o in dma_ops(): k(o)
        k("s_waitcnt vmcnt(0)\ns_barrier\ns_mov_b32 s55, -1\ns_mov_b32 s54, 0")
        k(f"s_branch {Lafter}")
        k.label(Lgo)
    if 'prio1' in dbg:
        Lp1 = k.L("p1")
        k(f"s_cmp_eq_u32 s{sKH}, 0\ns_cbranch_scc1 {Lp1}\ns_setprio 1")
        k.label(Lp1)
    k(f"s_cmp_lg_u32 s{sNmax}, 1\ns_cbranch_scc1 {Lloop}")
    side = dma_ops() + dma_ops() + dma_ops()
    ny = 0
    later = []
    if 'nopack' not in dbg: later += pack_ops(0) + pack_ops(1); ny += 16
    if 'nopf' not in dbg: later += w13_prefetch(); ny += 1
    for tt in range(8):
        if tt < 3: tile(tt, sideA=side[5*tt:5*tt+5])
        elif tt < 7:
            n = (len(later) + (6 - tt)) // (7 - tt)
            mine, later = later[:n], later[n:]
            tile(tt, sideA=mine[:(len(mine)+1)//2], sideB=mine[(len(mine)+1)//2:])
        else: tile(tt, pre_hook=f"s_waitcnt vmcnt({ny})\ns_barrier")
    assert not later
    iter_end()
    k(f"s_mov_b32 s{sIt}, 1")
    k.lines.append(".p2align 6")
    k.label(Lloop)
    for tt in range(8): tile(tt)
    iter_end()
    def pack_stores():
        k("s_waitcnt vmcnt(0)\ns_mov_b32 s53, 0x07060100")
        for slot in range(2):
            Lp = k.L("pks")
            if slot == 1: k(f"s_cmp_eq_u32 s55, -1\ns_cbranch_scc1 {Lp}")
            for q in range(4): k(f"v_perm_b32 {v(PKW+8*slot+q)}, {v(PKW+8*slot+4+q)}, {v(PKW+8*slot+q)}, s53")
            k(f"buffer_store_dwordx4 {v(PKW+8*slot,4)}, {v(vl16)}, s[48:51], s{54+slot} offen{' sc1' if mega else ''}")
            k.label(Lp)
    if mega and 'nopack' not in dbg:
        La = k.L("mp1"); Lb = k.L("mp2")
        k(f"s_cmp_lg_u32 s{sNmax}, 1\ns_cbranch_scc1 {Lb}")
        k(f"s_cmp_lg_u32 s{sIt}, 1\ns_cbranch_scc1 {La}")
        pack_stores()
        k(f"s_branch {Lb}")
        k.label(La)
        k(f"s_cmp_lg_u32 s{sIt}, 2\ns_cbranch_scc1 {Lb}")
        k(f"s_waitcnt vmcnt(0)\nv_readfirstlane_b32 s100, {v(vnon)}\ns_lshl_b32 s87, s52, 2\ns_add_u32 s87, s87, {FL_FP}\ns_nop 2")
        Lnz = k.L("nz")
        k(f"s_cmp_lg_u32 s100, 0\ns_cbranch_scc1 {Lnz}")
        k.mega_ptrs(); k("s_waitcnt lgkmcnt(0)"); k.dbg_srd(92, 88); k.nonce_get(88, vpf2, 86)
        k.label(Lnz)
        k.signal(96, 87, vpf2)
        k.label(Lb)
    k(f"s_add_u32 s{sIt}, s{sIt}, 1\ns_cmp_lt_u32 s{sIt}, 4\ns_cbranch_scc1 {Lloop}")
    k(M(OB, Vf[1][1], PB+4, OB))
    k.label(Lafter)
    k("s_waitcnt lgkmcnt(0)")
    if 'nopack' not in dbg and not mega:
        Lnp = k.L("nopk")
        k(f"s_cmp_lg_u32 s{sNmax}, 1\ns_cbranch_scc1 {Lnp}")
        pack_stores()
        k.label(Lnp)
    k.nop(14)
    k.stamp(4)
    Lok = k.L("ok")
    k(f"v_cmp_ngt_f32 vcc, s{sThr}, {v(OA+8)}")
    k(f"v_cmp_ngt_f32 s[86:87], s{sThr}, {v(OB+8)}")
    k.nop(4)
    k(f"s_or_b32 s{sT0}, s87, vcc_hi")
    k(f"s_cmp_eq_u32 s{sT0}, 0\ns_cbranch_scc1 {Lok}")
    k(f"s_cmp_lg_u32 s{sNmax}, 1\ns_cbranch_scc1 {Lok}")
    k(f"s_mov_b32 s{sNmax}, 32")
    k(f"v_subrev_u32 {v(aK1)}, {4*LBLK}, {v(aK1)}\nv_subrev_u32 {v(aK2)}, {4*LBLK}, {v(aK2)}\nv_subrev_u32 {v(aV)}, {4*LBLK}, {v(aV)}")
    init_consts()
    k(f"s_branch {Lmax}")
    k.label(Lok)
    Lns = k.L("noswap")
    k(f"s_cmp_eq_u32 s{sKH}, 0\ns_cbranch_scc1 {Lns}")
    for i in range(12): k(f"v_swap_b32 {v(OA+i)}, {v(OB+i)}")
    k(f"v_swap_b32 {v(NA)}, {v(NB)}")
    k.label(Lns)
    k(f"s_lshl_b32 s{sT0}, s{sW}, 12\ns_xor_b32 s{sT1}, s{sW}, 4\ns_lshl_b32 s{sT1}, s{sT1}, 12")
    k(f"v_add_u32 {v(tmp[0])}, s{sT0}, {v(vl16)}\nv_add_u32 {v(tmp[1])}, s{sT1}, {v(vl16)}")
    k("s_barrier")
    for j in range(3): k(f"ds_write_b128 {v(tmp[0])}, {v(OB+4*j,4)} offset:{j*1024}")
    k(f"ds_write_b32 {v(tmp[0])}, {v(NB)} offset:3072")
    k("s_waitcnt lgkmcnt(0)\ns_barrier")
    for j in range(3): k(f"ds_read_b128 {v(OB+4*j,4)}, {v(tmp[1])} offset:{j*1024}")
    k(f"ds_read_b32 {v(NB)}, {v(tmp[1])} offset:3072")
    k("s_waitcnt lgkmcnt(0)")
    f1, f2, nm = SA, SA + 1, SA + 2
    k(f"v_min_f32 {v(nm)}, {v(NA)}, {v(NB)}")
    k(f"v_sub_f32 {v(f1)}, {v(nm)}, {v(NA)}\nv_sub_f32 {v(f2)}, {v(nm)}, {v(NB)}")
    k(f"v_exp_f32 {v(f1)}, {v(f1)}\nv_exp_f32 {v(f2)}, {v(f2)}")
    k.nop(1)
    for i in range(12): k(f"v_mul_f32 {v(OA+i)}, {v(OA+i)}, {v(f1)}")
    for i in range(12): k(f"v_fmac_f32 {v(OA+i)}, {v(OB+i)}, {v(f2)}")
    t1, t2 = SA + 4, SA + 5
    k(f"v_mov_b32 {v(t1)}, {v(OA+8)}\nv_mov_b32 {v(t2)}, {v(OA+8)}")
    k.nop(2)
    k(f"v_permlane32_swap_b32 {v(t1)}, {v(t2)}")
    k.nop(1)
    k(f"v_rcp_f32 {v(t2)}, {v(t2)}")
    k.nop(1)
    for i in range(12): k(f"v_mul_f32 {v(OA+i)}, {v(OA+i)}, {v(t2)}")
    for j in range(6): k(f"v_cvt_pk_bf16_f32 {v(PA+j)}, {v(OA+2*j)}, {v(OA+2*j+1)}")
    SC = " sc1" if mega else ""
    k(f"v_pk_mov_b32 {v(PA+6,2)}, 0, 0")
    k(f"buffer_store_dwordx4 {v(PA,4)}, {v(oad[0])}, s[12:15], 0 offen{SC}")
    k("s_mov_b32 exec_hi, 0")
    k(f"buffer_store_dwordx4 {v(PA+4,4)}, {v(oad[1])}, s[12:15], 0 offen{SC}")
    k("s_mov_b64 exec, -1")
    if mega:
        k.mega_signal(WS_FL, FL_BYTES, f"s_lshl_b32 s87, s{sQB}, 5\ns_add_u32 s87, s87, s{sH}\ns_lshl_b32 s87, s87, 2\ns_add_u32 s87, s87, {FL_F2}", sW, tmp[2])
    k.stamp(5); k.stamp_real(7)
    k.prof_store(8, 4, WS_END + PROF_OFF(k), tmp[0], sW)
    k.tl_end(2)
    k.label(done)
    k("s_endpgm")
    return k, nv, 102

if __name__ == "__main__":
    k, nv, ns = gen_attn()
    print("vgprs", nv, "hazards", check_kernel(k))
```

```python
from asm import *
from layout import *
def PROF_OFF(k): return {'qkv_kernel':0,'attn_kernel':1,'oproj_kernel':2,'ffn_kernel':3,'down_kernel':4}.get(k.name, 0) * 0x40000
import struct, math
def fbits(x): return struct.unpack("<I", struct.pack("<f", x))[0]

NCH = 10
LDS_FFN = 163840
def gen_ffn(name="ffn_kernel", prof=False, tl=None, PF=3, dbg=(), pf_code=None, mega=False):
    k = Kernel(name); k.prof = prof; k.tl = tl
    V = Alloc(1, 256)
    lane = V("lane"); tmp = [V(f"t{i}") for i in range(8)]
    dB = V("dB"); vA = V("vA")
    vB = [[V(f"vB{h}{c}") for c in range(2)] for h in range(3)]
    acc = [V(f"acc{i}", 16, 4) for i in range(4)]
    NRA = PF + 1
    FA = [[V(f"FA{r}{q}", 4, 4) for q in range(4)] for r in range(NRA)]
    FB = [[V(f"FB{b}{i}", 4, 4) for i in range(4)] for b in range(2)]
    vcp = V("vcp", 3, 2)
    EX = V("EX", 48, 4)
    assert NRA == 4
    CS0 = FA[2][0]
    CS1 = FA[0][0]
    nv = V.next
    sW, sRB, sCB = 16, 17, 18
    sT0, sT1, sT2, sT3 = 20, 21, 22, 23
    sA, sB, sL = 24, 25, 26
    done = k.L("done")
    k(f"s_cmp_ge_u32 s2, 216\ns_cbranch_scc1 {done}") if False else None
    if not mega: k(f"s_cmp_ge_u32 s2, 256\ns_cbranch_scc1 {done}")
    k.tl_start()
    k.stamp(0); k.stamp_real(6)
    k(f"s_load_dwordx2 s[4:5], s[0:1], {KA_WS}")
    k(f"s_load_dwordx4 s[28:31], s[0:1], {KA_W1}")
    if mega: k.mega_ptrs()
    k(f"s_and_b32 s{sT0}, s2, 7\ns_lshr_b32 s{sT1}, s2, 3")
    Lidle = k.L("idle")
    k(f"s_cmp_ge_u32 s{sT1}, 27\ns_cbranch_scc1 {Lidle}")
    k(f"s_and_b32 s{sT2}, s{sT0}, 3\ns_mul_i32 s{sT2}, s{sT2}, 27\ns_add_u32 s{sT2}, s{sT2}, s{sT1}")
    k(f"s_lshr_b32 s{sCB}, s{sT2}, 2\ns_and_b32 s{sT2}, s{sT2}, 3\ns_lshr_b32 s{sT3}, s{sT0}, 2\ns_lshl_b32 s{sT3}, s{sT3}, 2\ns_add_u32 s{sRB}, s{sT3}, s{sT2}")
    k(f"v_and_b32 {v(lane)}, 63, v0\nv_lshrrev_b32 {v(tmp[0])}, 6, v0")
    k.nop(1)
    k(f"v_readfirstlane_b32 s{sW}, {v(tmp[0])}")
    k(f"v_lshrrev_b32 {v(tmp[0])}, 3, {v(lane)}\ns_lshl_b32 s{sT0}, s{sW}, 3\nv_add_u32 {v(tmp[0])}, s{sT0}, {v(tmp[0])}\nv_mul_u32_u24 {v(tmp[0])}, {F*2}, {v(tmp[0])}")
    k(f"v_bfe_u32 {v(tmp[1])}, {v(lane)}, 2, 1\nv_bfe_u32 {v(tmp[2])}, {v(lane)}, 4, 1\nv_xor_b32 {v(tmp[1])}, {v(tmp[1])}, {v(tmp[2])}")
    k(f"v_and_b32 {v(tmp[2])}, 3, {v(lane)}\nv_lshl_add_u32 {v(tmp[1])}, {v(tmp[1])}, 2, {v(tmp[2])}\nv_lshl_add_u32 {v(dB)}, {v(tmp[1])}, 4, {v(tmp[0])}")
    k(f"v_lshlrev_b32 {v(vA)}, 4, {v(lane)}")
    k(f"s_lshl_b32 s{sT0}, s{sRB}, 3\ns_add_u32 s{sT0}, s{sT0}, s{sW}\ns_mul_i32 s{sA}, s{sT0}, 40960")
    k(f"s_lshl_b32 s{sB}, s{sCB}, 7\ns_lshl_b32 s{sL}, s{sW}, 10")
    k("s_waitcnt lgkmcnt(0)")
    k.stamp(1)
    k(f"s_add_u32 s8, s4, {WS_H}\ns_addc_u32 s9, s5, 0\ns_and_b32 s9, s9, 0xffff\ns_mov_b32 s10, {H_BYTES}\ns_mov_b32 s11, 0x20000")
    k(f"s_mov_b32 s12, s28\ns_and_b32 s13, s29, 0xffff\ns_mov_b32 s14, {D*F*2}\ns_mov_b32 s15, 0x20000")
    k(f"s_mov_b32 s32, s30\ns_and_b32 s33, s31, 0xffff\ns_mov_b32 s34, {D*F*2}\ns_mov_b32 s35, 0x20000")
    def bops(c):
        return [f"s_add_u32 m0, s{sL}, {c*16384}\ns_add_u32 s{sT0}, s{sB}, {c*64*F*2}\nbuffer_load_dwordx4 {v(dB)}, s[12:15], s{sT0} offen lds",
                f"s_add_u32 m0, s{sL}, {c*16384+8192}\ns_nop 0\nbuffer_load_dwordx4 {v(dB)}, s[32:35], s{sT0} offen lds"]
    def aops(c):
        return [(f"s_add_u32 s{sT1}, s{sA}, {c*4096}\n" if q == 0 else "") + f"buffer_load_dwordx4 {v(FA[c % NRA][q],4)}, {v(vA)}, s[8:11], s{sT1} offen offset:{q*1024}" for q in range(4)]
    def load_ops(c): return (bops(c) + aops(c)) if not mega else aops(c)
    NPRE = 2
    if not mega:
        for c in range(NPRE):
            for o in load_ops(c): k(o)
    else:
        k.mega_setup(WS_FL, FL_BYTES)
        pa, pb, pz, pd = EX, EX + 1, EX + 2, EX + 4
        k(f"s_lshl_b32 s86, s{sRB}, 5\nv_and_b32 {v(pa)}, 31, {v(lane)}\nv_add_u32 {v(pa)}, s86, {v(pa)}\nv_lshlrev_b32 {v(pa)}, 2, {v(pa)}\nv_add_u32 {v(pa)}, {FL_F3}, {v(pa)}")
        k(f"v_and_b32 {v(pb)}, 15, {v(lane)}\nv_add_u32 {v(pb)}, 240, {v(pb)}\nv_lshlrev_b32 {v(pb)}, 2, {v(pb)}\nv_add_u32 {v(pb)}, {FL_F1}, {v(pb)}\nv_mov_b32 {v(pz)}, 0")
        L0 = k.L("nop0")
        k(f"s_cmp_lg_u32 s{sW}, 0\ns_cbranch_scc1 {L0}")
        k.poll_issue([pa, pb], pd, pz)
        k.label(L0)
        NB0 = 3
        for c in range(NB0):
            for o in bops(c): k(o)
    k.stamp(2)
    if pf_code: k.code_prefetch_dist(pf_code, vcp + 2, vcp, 56, 62)
    half = tmp[4]
    k(f"v_lshrrev_b32 {v(half)}, 5, {v(lane)}\nv_bfe_u32 {v(tmp[0])}, {v(lane)}, 2, 2\nv_lshl_add_u32 {v(tmp[0])}, {v(half)}, 3, {v(tmp[0])}\nv_lshlrev_b32 {v(tmp[0])}, 7, {v(tmp[0])}")
    k(f"v_bfe_u32 {v(tmp[1])}, {v(lane)}, 3, 1\nv_lshl_add_u32 {v(tmp[0])}, {v(tmp[1])}, 6, {v(tmp[0])}")
    k(f"v_bfe_u32 {v(tmp[1])}, {v(lane)}, 4, 1\nv_lshl_add_u32 {v(tmp[0])}, {v(tmp[1])}, 5, {v(tmp[0])}")
    k(f"v_and_b32 {v(tmp[1])}, 3, {v(lane)}\nv_lshl_add_u32 {v(vB[0][0])}, {v(tmp[1])}, 3, {v(tmp[0])}\nv_xor_b32 {v(vB[0][1])}, 64, {v(vB[0][0])}")
    for h in (1, 2):
        for c in range(2): k(f"v_add_u32 {v(vB[h][c])}, {h*65536}, {v(vB[0][c])}")
    def treads(q):
        c = q >> 2; ks = q & 3; b = q & 1
        base = c * 16384 + ks * 2048
        out = []
        for mt in range(2):
            for ch in range(2):
                for rd in range(2):
                    off = base + mt * 8192 + rd * 512
                    h = off >> 16
                    out.append(f"ds_read_b64_tr_b16 {v(FB[b][2*mt+ch]+2*rd,2)}, {v(vB[h][ch])} offset:{off & 65535}")
        return out
    pend = []
    if not mega:
        for c in range(NPRE): pend += [c] * 6
        if pf_code: pend += [-4] * len(pf_code)
    else:
        for c in range(NB0): pend += [c, c]
        if pf_code: pend += [-4] * len(pf_code)
        L1 = k.L("nop1")
        k(f"s_cmp_lg_u32 s{sW}, 0\ns_cbranch_scc1 {L1}")
        k.poll_finish([pa, pb], pd, pz, 2 * NB0 + (len(pf_code) if pf_code else 0))
        k.label(L1)
        k("s_barrier")
        for c in range(NPRE):
            for o in aops(c): k(o); pend.append(c)
    def wait_chunk(c):
        idx = max(i for i, x in enumerate(pend) if x == c)
        k(f"s_waitcnt vmcnt({len(pend) - 1 - idx})\ns_barrier")
    wait_chunk(0)
    k.stamp(3)
    for x in treads(0): k(x)
    nxt_load = NPRE
    sched = [[], [], [], []]
    for q in range(40):
        c = q >> 2; ks = q & 3
        last = q == 39
        rd = []
        if not last:
            if ks == 3: wait_chunk(c + 1)
            rd = treads(q + 1)
        if ks == 0:
            todo = []
            if not mega:
                while nxt_load < NCH and nxt_load <= c + PF and len(todo) < (2 if c == 0 else 1) * len(load_ops(0)):
                    todo += [(nxt_load, o) for o in load_ops(nxt_load)]; nxt_load += 1
            else:
                while nxt_load < NCH and nxt_load <= c + PF and len(todo) < (2 if c == 0 else 1) * 6:
                    if nxt_load >= NB0: todo += [(nxt_load, o) for o in bops(nxt_load)]
                    todo += [(nxt_load, o) for o in aops(nxt_load)]; nxt_load += 1
            per = (len(todo) + 3) // 4
            sched = [todo[i*per:(i+1)*per] for i in range(4)]
        b = q & 1
        tr = sched[ks]
        for i in range(4):
            k(f"s_waitcnt lgkmcnt({6 if not last else 2*(3-i)})")
            cin = v(acc[i], 16) if q > 0 else "0"
            if 'x16' in dbg:
                for hh in range(2):
                    o = acc[i] + 4 * hh + 8 * (q & 1)
                    k(f"v_mfma_f32_16x16x32_bf16 {v(o,4)}, {v(FB[b][i],4)}, {v(FA[c % NRA][ks],4)}, {v(o,4) if q > 1 else 0}")
            else:
                k(f"v_mfma_f32_32x32x16_bf16 {v(acc[i],16)}, {v(FB[b][i],4)}, {v(FA[c % NRA][ks],4)}, {cin}")
            for x in rd[2*i: 2*i+2]: k(x)
            for (cc, o) in tr[i::4]:
                k(o); pend.append(cc)
        if q == 27:
            tok = tmp[5]
            k(f"v_and_b32 {v(tok)}, 31, {v(lane)}\ns_lshl_b32 s{sT0}, s{sRB}, 8\ns_lshl_b32 s{sT1}, s{sW}, 5\ns_add_u32 s{sT0}, s{sT0}, s{sT1}\nv_add_u32 {v(tok)}, s{sT0}, {v(tok)}")
            k(f"s_add_u32 s44, s4, {WS_ST}\ns_addc_u32 s45, s5, 0\ns_and_b32 s45, s45, 0xffff\ns_mov_b32 s46, {ST_BYTES + HH_BYTES + CS_BYTES}\ns_mov_b32 s47, 0x20000")
            k(f"v_lshlrev_b32 {v(tmp[6])}, 3, {v(tok)}\ns_mov_b32 s50, 0")
            for j in range(8):
                k(f"buffer_load_dwordx2 {v(EX+2*j,2)}, {v(tmp[6])}, s[44:47], s50 offen"); pend.append(-1)
                if j < 7: k("s_add_u32 s50, s50, 16384")
            k(f"s_lshl_b32 s{sT0}, s{sCB}, 8\ns_add_u32 s48, s{sT0}, {ST_BYTES + HH_BYTES}\ns_add_u32 s49, s48, {F*4}")
            k(f"v_lshlrev_b32 {v(tmp[7])}, 4, {v(half)}")
        if q == 35:
            for mt in range(2):
                for j in range(4):
                    k(f"buffer_load_dwordx4 {v(CS0+16*mt+4*j,4)}, {v(tmp[7])}, s[44:47], s{48+mt} offen offset:{32*j}"); pend.append(-2)
    assert nxt_load == NCH
    k.stamp(4)
    for mt in range(2):
        for j in range(4):
            k(f"buffer_load_dwordx4 {v(CS1+16*mt+4*j,4)}, {v(tmp[7])}, s[44:47], s{48+mt} offen offset:{128+32*j}")
    k(f"s_waitcnt vmcnt(16)")
    E = EX
    for i in range(4): k(f"v_add_f32 {v(E+4*i)}, {v(E+4*i)}, {v(E+4*i+2)}\nv_add_f32 {v(E+4*i+1)}, {v(E+4*i+1)}, {v(E+4*i+3)}")
    k(f"v_add_f32 {v(E)}, {v(E)}, {v(E+4)}\nv_add_f32 {v(E+1)}, {v(E+1)}, {v(E+5)}\nv_add_f32 {v(E+8)}, {v(E+8)}, {v(E+12)}\nv_add_f32 {v(E+9)}, {v(E+9)}, {v(E+13)}")
    k(f"v_add_f32 {v(E)}, {v(E)}, {v(E+8)}\nv_add_f32 {v(E+1)}, {v(E+1)}, {v(E+9)}")
    k(f"v_mul_f32 {v(E)}, {fbits(1.0/D)}, {v(E)}\nv_mul_f32 {v(E+1)}, {fbits(1.0/D)}, {v(E+1)}")
    k(f"v_fma_f32 {v(E+1)}, -{v(E)}, {v(E)}, {v(E+1)}\nv_max_f32 {v(E+1)}, 0, {v(E+1)}\nv_add_f32 {v(E+1)}, {fbits(1e-5)}, {v(E+1)}")
    k(f"v_rsq_f32 {v(E+1)}, {v(E+1)}")
    nmean, rstd, rneg, rsq2 = E + 2, E + 1, E + 3, E + 4
    k(f"v_sub_f32 {v(nmean)}, 0, {v(E)}")
    k(f"v_mul_f32 {v(rneg)}, {fbits(-math.log2(math.e))}, {v(rstd)}\nv_mul_f32 {v(rsq2)}, {v(rstd)}, {v(rstd)}")
    tok = tmp[5]
    k(f"v_lshrrev_b32 {v(tmp[0])}, 4, {v(tok)}\nv_mul_u32_u24 {v(tmp[0])}, {F*32}, {v(tmp[0])}\nv_and_b32 {v(tmp[1])}, 15, {v(tok)}\nv_lshl_add_u32 {v(tmp[0])}, {v(tmp[1])}, 4, {v(tmp[0])}")
    k(f"v_lshl_add_u32 {v(tmp[0])}, {v(half)}, 8, {v(tmp[0])}")
    k(f"s_add_u32 s52, s4, {WS_HH}\ns_addc_u32 s53, s5, 0\ns_and_b32 s53, s53, 0xffff\ns_mov_b32 s54, {HH_BYTES}\ns_mov_b32 s55, 0x20000")
    k(f"s_lshl_b32 s{sT0}, s{sCB}, 11")
    Tt = E + 8
    PKo = E + 32
    for ch in range(2):
        k(f"s_waitcnt vmcnt({8 if ch == 0 else 0})" if ch == 0 else "s_waitcnt vmcnt(2)")
        g, u = acc[ch], acc[2 + ch]
        c1, c3 = (CS0, CS0 + 16) if ch == 0 else (CS1, CS1 + 16)
        for r in range(16): k(f"v_fmac_f32 {v(g+r)}, {v(c1+r)}, {v(nmean)}")
        for r in range(16): k(f"v_fmac_f32 {v(u+r)}, {v(c3+r)}, {v(nmean)}")
        for r in range(16): k(f"v_mul_f32 {v(Tt+r)}, {v(g+r)}, {v(rneg)}")
        for r in range(16): k(f"v_exp_f32 {v(Tt+r)}, {v(Tt+r)}")
        for r in range(16): k(f"v_mul_f32 {v(g+r)}, {v(g+r)}, {v(u+r)}")
        for r in range(16): k(f"v_add_f32 {v(Tt+r)}, 1.0, {v(Tt+r)}")
        for r in range(16): k(f"v_rcp_f32 {v(Tt+r)}, {v(Tt+r)}")
        for r in range(16): k(f"v_mul_f32 {v(g+r)}, {v(g+r)}, {v(rsq2)}")
        for r in range(16): k(f"v_mul_f32 {v(g+r)}, {v(g+r)}, {v(Tt+r)}")
        for p in range(2):
            o = PKo + 4 * p + 8 * ch
            for hi in range(2):
                j = p + 2 * hi
                k(f"v_cvt_pk_bf16_f32 {v(o+2*hi)}, {v(g+4*j)}, {v(g+4*j+1)}\nv_cvt_pk_bf16_f32 {v(o+2*hi+1)}, {v(g+4*j+2)}, {v(g+4*j+3)}")
            k(f"buffer_store_dwordx4 {v(o,4)}, {v(tmp[0])}, s[52:55], s{sT0} offen offset:{ch*1024 + p*512}{' sc1' if mega else ''}")
    if mega:
        k.mega_signal(WS_FL, FL_BYTES, f"s_lshl_b32 s87, s{sRB}, 5\ns_add_u32 s87, s87, s{sCB}\ns_lshl_b32 s87, s87, 2\ns_add_u32 s87, s87, {FL_F4}", sW, tmp[2])
    k.stamp(5); k.stamp_real(7)
    k.prof_store(8, 4, WS_END + PROF_OFF(k), tmp[2], sW)
    k.tl_end(2)
    k.label(done)
    k("s_endpgm")
    k.label(Lidle)
    k(f"v_and_b32 {v(lane)}, 63, v0\nv_lshrrev_b32 {v(tmp[0])}, 6, v0")
    k.nop(1)
    k(f"v_readfirstlane_b32 s{sW}, {v(tmp[0])}")
    k(f"s_sub_u32 s{sT1}, s{sT1}, 27\ns_lshl_b32 s{sT1}, s{sT1}, 3\ns_add_u32 s{sT1}, s{sT1}, s{sW}")
    k(f"s_and_b32 s{sT0}, s{sT0}, 1\ns_mul_i32 s{sT0}, s{sT0}, {4*270*1024}\ns_mul_i32 s{sT1}, s{sT1}, 27648\ns_add_u32 s{sT0}, s{sT0}, s{sT1}")
    k(f"v_lshlrev_b32 {v(tmp[1])}, 7, {v(lane)}")
    k("s_waitcnt lgkmcnt(0)")
    k(f"s_add_u32 s8, s4, {WS_W2P}\ns_addc_u32 s9, s5, 0\ns_and_b32 s9, s9, 0xffff\ns_mov_b32 s10, {W2P_BYTES}\ns_mov_b32 s11, 0x20000")
    if mega:
        k.mega_setup(WS_FL, FL_BYTES)
        k.nonce_get(88, tmp[3], 87)
        k(f"s_lshr_b32 s86, s{sT0}, 10\ns_add_u32 s86, s86, {NWOF}")
        k(f"v_min_u32 {v(tmp[3])}, 26, {v(lane)}\nv_add_u32 {v(tmp[3])}, s86, {v(tmp[3])}\nv_subrev_u32 {v(tmp[4])}, 2048, {v(tmp[3])}\nv_min_u32 {v(tmp[3])}, {v(tmp[3])}, {v(tmp[4])}")
        k(f"v_lshlrev_b32 {v(tmp[3])}, 2, {v(tmp[3])}\nv_add_u32 {v(tmp[3])}, {FL_FP}, {v(tmp[3])}")
        k.poll([tmp[3]], tmp[4], 96, 87)
    for i in range(4 if 'nopf2' not in dbg else 0):
        k(f"buffer_load_dword {v(tmp[2])}, {v(tmp[1])}, s[8:11], s{sT0} offen")
        if i < 3: k(f"s_add_u32 s{sT0}, s{sT0}, 8192")
    k("s_waitcnt vmcnt(0)")
    k("s_endpgm")
    return k, nv, (102 if (prof or tl is not None) else 72)

if __name__ == "__main__":
    k, nv, ns = gen_ffn()
    print("vgprs", nv, "hazards", check_kernel(k), "lines", len(k.lines))
```

```python
from asm import *
from layout import *
def PROF_OFF(k): return {'qkv_kernel':0,'attn_kernel':1,'oproj_kernel':2,'ffn_kernel':3,'down_kernel':4}.get(k.name, 0) * 0x40000
import struct
def fbits(x): return struct.unpack("<I", struct.pack("<f", x))[0]

NST = 4
STG = 32768
NCH = 10
L_PS = NST * STG
L_PQ = L_PS + 4096
L_PC = L_PQ + 4096
L_RS = L_PC + 2048
L_MR = L_RS + 512
L_CS = L_MR + 512
LDS_QKV = L_CS + 512

def gen_qkv(name="qkv_kernel", prof=False, tl=None, dbg=(), pf_code=None, mega=False):
    k = Kernel(name); k.prof = prof; k.tl = tl
    V = Alloc(1, 256)
    lane = V("lane"); tmp = [V(f"t{i}") for i in range(10)]
    dA0 = V("dA0"); dA1 = V("dA1"); dB = V("dB")
    vA = [[V(f"vA{h}{j}") for j in range(4)] for h in range(2)]
    vB = [[V(f"vB{h}{j}") for j in range(4)] for h in range(2)]
    st = V("st", 8, 2)
    cs4 = V("cs4", 4, 4); sel = V("sel", 4, 4); rs4 = [V("rs4a", 4, 4), V("rs4b", 4, 4)]
    vtch = V("vtch", 2, 2); vcp = V("vcp", 3, 2)
    AD = V("AD", 8); vl16 = V("vl16"); TL = V("TL", 4, 4); vnon = V("vnon", 2, 2)
    ut = V("ut", 8, 2)
    acc = [V("acc0", 16, 4), V("acc1", 16, 4)]
    FA = [[[V(f"FA{b}{j}{i}", 4, 4) for i in range(2)] for j in range(4)] for b in range(2)]
    FB = [[V(f"FB{b}{j}", 4, 4) for j in range(4)] for b in range(2)]
    nv = V.next
    sW, sM, sN, sRB, sCB, sSec = 16, 17, 18, 19, 20, 21
    sT0, sT1, sT2, sT3 = 22, 23, 24, 25
    sAo, sBo, sLw, sOnes = 26, 27, 28, 29
    sX, sY = 30, 31
    done = k.L("done")
    if not mega: k(f"s_cmp_ge_u32 s2, 256\ns_cbranch_scc1 {done}")
    k.tl_start()
    k.stamp(0); k.stamp_real(6)
    k(f"s_load_dwordx4 s[4:7], s[0:1], {KA_X}")
    if pf_code: k.code_prefetch_dist(pf_code, vcp + 2, vcp, 48, 54)
    k(f"s_load_dwordx2 s[36:37], s[0:1], {KA_WS}")
    if mega:
        k("s_load_dwordx2 s[34:35], s[0:1], 64")
        Lnn = k.L("nononce")
        k(f"s_cmp_lg_u32 s2, 0\ns_cbranch_scc1 {Lnn}")
        k(f"v_readfirstlane_b32 s56, v0\ns_nop 3\ns_cmp_ge_u32 s56, 64\ns_cbranch_scc1 {Lnn}")
        k("s_memrealtime s[56:57]\ns_load_dwordx2 s[58:59], s[0:1], 64\ns_waitcnt lgkmcnt(0)")
        k("s_or_b32 s100, s56, 1\ns_mov_b32 s60, s58\ns_and_b32 s61, s59, 0xffff\ns_mov_b32 s62, 256\ns_mov_b32 s63, 0x20000")
        k(f"s_mov_b64 exec, 1\nv_mov_b32 {v(tmp[8])}, 0\nv_mov_b32 {v(tmp[9])}, s100\nbuffer_store_dword {v(tmp[9])}, {v(tmp[8])}, s[60:63], 0 offen sc1\ns_waitcnt vmcnt(0)\ns_mov_b64 exec, -1")
        k.label(Lnn)
    k(f"s_and_b32 s{sT0}, s2, 7\ns_lshr_b32 s{sT1}, s2, 3")
    k(f"s_lshr_b32 s{sT2}, s{sT0}, 1\ns_lshl_b32 s{sT2}, s{sT2}, 2\ns_and_b32 s{sT3}, s{sT1}, 3\ns_add_u32 s{sRB}, s{sT2}, s{sT3}")
    k(f"s_and_b32 s{sT2}, s{sT0}, 1\ns_lshl_b32 s{sT2}, s{sT2}, 3\ns_lshr_b32 s{sT3}, s{sT1}, 2\ns_add_u32 s{sCB}, s{sT2}, s{sT3}")
    Lcs = k.L("colsum")
    k(f"s_cmp_ge_u32 s{sCB}, 15\ns_cbranch_scc1 {Lcs}")
    k(f"v_and_b32 {v(lane)}, 63, v0\nv_lshrrev_b32 {v(tmp[0])}, 6, v0")
    k.nop(1)
    k(f"v_readfirstlane_b32 s{sW}, {v(tmp[0])}")
    k(f"v_lshrrev_b32 {v(tmp[0])}, 3, {v(lane)}")
    k(f"v_lshrrev_b32 {v(tmp[1])}, 4, {v(lane)}")
    k(f"v_and_b32 {v(tmp[2])}, 7, {v(lane)}")
    k(f"v_xor_b32 {v(tmp[3])}, {v(tmp[2])}, {v(tmp[1])}")
    k(f"v_xor_b32 {v(tmp[4])}, 4, {v(tmp[3])}")
    k(f"s_lshl_b32 s{sT0}, s{sW}, 4")
    k(f"v_add_u32 {v(tmp[0])}, s{sT0}, {v(tmp[0])}\nv_mul_u32_u24 {v(tmp[0])}, 1280, {v(tmp[0])}")
    k(f"v_lshl_add_u32 {v(dA0)}, {v(tmp[3])}, 4, {v(tmp[0])}")
    k(f"v_lshl_add_u32 {v(dA1)}, {v(tmp[4])}, 4, {v(tmp[0])}\nv_add_u32 {v(dA1)}, {8*1280}, {v(dA1)}")
    k(f"v_bfe_u32 {v(tmp[2])}, {v(lane)}, 2, 2\nv_and_b32 {v(tmp[3])}, 3, {v(tmp[1])}\nv_xor_b32 {v(tmp[2])}, {v(tmp[2])}, {v(tmp[3])}")
    k(f"v_and_b32 {v(tmp[3])}, 3, {v(lane)}\nv_lshl_add_u32 {v(tmp[2])}, {v(tmp[2])}, 2, {v(tmp[3])}")
    k(f"s_lshl_b32 s{sT0}, s{sW}, 3")
    k(f"v_add_u32 {v(tmp[1])}, s{sT0}, {v(tmp[1])}\nv_mul_u32_u24 {v(tmp[1])}, 3840, {v(tmp[1])}")
    k(f"v_lshl_add_u32 {v(dB)}, {v(tmp[2])}, 4, {v(tmp[1])}")
    k(f"s_mul_i32 s{sAo}, s{sRB}, {128*1280}\ns_lshl_b32 s{sBo}, s{sCB}, 8\ns_lshl_b32 s{sLw}, s{sW}, 11")
    k(f"s_lshr_b32 s{sM}, s{sW}, 2\ns_and_b32 s{sN}, s{sW}, 3")
    k("s_waitcnt lgkmcnt(0)")
    k(f"s_mov_b32 s8, s4\ns_and_b32 s9, s5, 0xffff\ns_mov_b32 s10, {S*D*2}\ns_mov_b32 s11, 0x20000")
    if mega: k.dbg_srd(34, 56)
    k(f"s_mov_b32 s12, s6\ns_and_b32 s13, s7, 0xffff\ns_mov_b32 s14, {D*3*D*2}\ns_mov_b32 s15, 0x20000")
    def dma_ops(c):
        stg = (c % NST) * STG
        return [f"s_add_u32 m0, s{sLw}, {stg}\ns_add_u32 s{sX}, s{sAo}, {c*128}\nbuffer_load_dwordx4 {v(dA0)}, s[8:11], s{sX} offen lds",
                f"s_add_u32 m0, s{sLw}, {stg+1024}\ns_add_u32 s{sY}, s{sBo}, {c*64*3840}\nbuffer_load_dwordx4 {v(dA1)}, s[8:11], s{sX} offen lds",
                f"s_add_u32 m0, s{sLw}, {stg+16384}\ns_add_u32 s{sX}, s{sY}, {4*3840}\nbuffer_load_dwordx4 {v(dB)}, s[12:15], s{sY} offen lds",
                f"s_add_u32 m0, s{sLw}, {stg+16384+1024}\ns_nop 0\nbuffer_load_dwordx4 {v(dB)}, s[12:15], s{sX} offen lds"]
    pend0 = [-9] * (len(pf_code) if pf_code else 0)
    for c in range(2):
        for o in dma_ops(c): k(o); pend0.append(c)
    if 'notouch' not in dbg:
        Lt1 = k.L("t1"); Lt2 = k.L("t2")
        k(f"s_lshr_b32 s{sT0}, s2, 3\ns_lshl_b32 s{sT0}, s{sT0}, 3\ns_add_u32 s{sT0}, s{sT0}, s{sW}")
        k(f"s_cmp_ge_u32 s{sT0}, 80\ns_cbranch_scc1 {Lt1}")
        k(f"s_lshl_b32 s{sT0}, s{sT0}, 6\nv_add_u32 {v(vtch)}, s{sT0}, {v(lane)}")
        k(f"v_mul_u32_u24 {v(vtch+1)}, 6554, {v(vtch)}\nv_lshrrev_b32 {v(vtch+1)}, 16, {v(vtch+1)}")
        k(f"v_mul_u32_u24 {v(tmp[5])}, 10, {v(vtch+1)}\nv_sub_u32 {v(vtch)}, {v(vtch)}, {v(tmp[5])}")
        k(f"v_mul_u32_u24 {v(vtch+1)}, 1280, {v(vtch+1)}\nv_lshl_add_u32 {v(vtch)}, {v(vtch)}, 7, {v(vtch+1)}")
        k(f"s_and_b32 s{sT1}, s2, 6\ns_mul_i32 s{sT1}, s{sT1}, {256*1280}")
        k(f"buffer_load_dword {v(vtch+1)}, {v(vtch)}, s[8:11], s{sT1} offen\nbuffer_load_dword {v(vtch+1)}, {v(vtch)}, s[8:11], s{sT1} offen")
        k(f"s_branch {Lt2}")
        k.label(Lt1)
        k(f"s_sub_u32 s{sT0}, s{sT0}, 80\ns_min_u32 s{sT0}, s{sT0}, 79\ns_mul_i32 s{sT0}, s{sT0}, {8*3840}")
        k(f"v_lshrrev_b32 {v(vtch)}, 4, {v(lane)}\nv_mul_u32_u24 {v(vtch)}, 3840, {v(vtch)}\nv_and_b32 {v(vtch+1)}, 15, {v(lane)}\nv_lshl_add_u32 {v(vtch)}, {v(vtch+1)}, 7, {v(vtch)}")
        k(f"s_and_b32 s{sT1}, s2, 1\ns_lshl_b32 s{sT1}, s{sT1}, 11\ns_add_u32 s{sT0}, s{sT0}, s{sT1}\ns_add_u32 s{sT1}, s{sT0}, {4*3840}")
        k(f"buffer_load_dword {v(vtch+1)}, {v(vtch)}, s[12:15], s{sT0} offen\nbuffer_load_dword {v(vtch+1)}, {v(vtch)}, s[12:15], s{sT1} offen")
        k.label(Lt2)
        pend0 += [-1, -1]
    k.stamp(1)
    k(f"s_add_u32 s36, s36, {WS_QKV}\ns_addc_u32 s37, s37, 0\ns_and_b32 s37, s37, 0xffff\ns_mov_b32 s38, {QKV_BYTES}\ns_mov_b32 s39, 0x20000")
    k(f"s_lshl_b32 s{sT0}, s{sM}, 1\ns_add_u32 s{sT0}, s{sT0}, s{sN}")
    k(f"v_and_b32 {v(tmp[0])}, 31, {v(lane)}\nv_lshrrev_b32 {v(tmp[1])}, 5, {v(lane)}")
    k(f"s_lshl_b32 s{sT1}, s{sM}, 6\nv_add_u32 {v(tmp[2])}, s{sT1}, {v(tmp[0])}\nv_lshlrev_b32 {v(tmp[2])}, 7, {v(tmp[2])}")
    k(f"v_bfe_u32 {v(tmp[3])}, {v(lane)}, 1, 3")
    k(f"v_bfe_u32 {v(tmp[4])}, {v(lane)}, 2, 2")
    k(f"v_lshl_add_u32 {v(tmp[5])}, {v(tmp[1])}, 3, {v(tmp[4])}\nv_lshlrev_b32 {v(tmp[5])}, 8, {v(tmp[5])}")
    k(f"v_xor_b32 {v(tmp[4])}, s{sN}, {v(tmp[4])}\nv_lshl_add_u32 {v(tmp[5])}, {v(tmp[4])}, 6, {v(tmp[5])}")
    k(f"v_bfe_u32 {v(tmp[4])}, {v(lane)}, 4, 1\nv_lshl_add_u32 {v(tmp[5])}, {v(tmp[4])}, 5, {v(tmp[5])}")
    k(f"v_and_b32 {v(tmp[4])}, 3, {v(lane)}\nv_lshl_add_u32 {v(tmp[5])}, {v(tmp[4])}, 3, {v(tmp[5])}")
    k(f"v_add_u32 {v(tmp[5])}, 16384, {v(tmp[5])}")
    for j in range(4):
        k(f"s_add_u32 s{sT1}, s{sT0}, {j}\ns_and_b32 s{sT1}, s{sT1}, 3\ns_lshl_b32 s{sT2}, s{sT1}, 1\ns_lshl_b32 s{sT3}, s{sT1}, 12")
        k(f"v_add_u32 {v(tmp[4])}, s{sT2}, {v(tmp[1])}\nv_xor_b32 {v(tmp[4])}, {v(tmp[4])}, {v(tmp[3])}")
        k(f"v_lshl_add_u32 {v(vA[0][j])}, {v(tmp[4])}, 4, {v(tmp[2])}\nv_add_u32 {v(vA[1][j])}, 0x10000, {v(vA[0][j])}")
        k(f"v_add_u32 {v(vB[0][j])}, s{sT3}, {v(tmp[5])}\nv_add_u32 {v(vB[1][j])}, 0x10000, {v(vB[0][j])}")
    for i in range(8): k(f"v_mov_b32 {v(st+i)}, 0")
    k(f"v_bfe_u32 {v(tmp[4])}, {v(lane)}, 4, 1\nv_bfe_u32 {v(tmp[6])}, {v(lane)}, 3, 1")
    k(f"v_cmp_eq_u32 vcc, {v(tmp[4])}, {v(tmp[6])}")
    k(f"v_mov_b32 {v(tmp[4])}, 0x3f803f80\nv_mov_b32 {v(tmp[6])}, 0")
    for i in range(4): k(f"v_cndmask_b32 {v(sel+i)}, {v(tmp[6])}, {v(tmp[4])}, vcc")
    k(f"s_mov_b32 s{sOnes}, 0xffff0000")
    k(f"s_mul_i32 s{sSec}, s{sCB}, 52\ns_lshr_b32 s{sSec}, s{sSec}, 8")
    LV = k.L("vpath"); Lepi = k.L("epi")
    k(f"s_cmp_eq_u32 s{sSec}, 2\ns_cbranch_scc1 {LV}")

    POS = {19: [4, 0, 1, 2, 3], 25: [0, 1, 4, 2, 3]}
    def qk_tab():
        quad = []; cpy = []
        for cbp in range(5):
            hf = (32 * cbp) // 5
            for n in range(4):
                for hl in range(2):
                    for j in range(4):
                        Qd = 32 * cbp + 8 * n + 2 * j + hl
                        h_, dq = Qd // 5, Qd % 5
                        pq = POS.get(h_, [0, 1, 2, 3, 4])[dq]
                        off = (h_ - hf) * 5120 + ((pq >> 1) * 512 + (pq & 1) * 8 if pq < 4 else 4096)
                        quad.append(off | ((1 << 31) if pq == 4 else 0))
            for p in range(40):
                h_ = hf + p // 5; pc = p % 5
                if h_ >= 32: cpy += [0, 0, 0, 0]; continue
                P_ = POS.get(h_, [0, 1, 2, 3, 4]); inv = [P_.index(x) for x in range(5)]
                ok = lambda pos: 32 * cbp <= 5 * h_ + inv[pos] < 32 * cbp + 32
                if pc < 4: cpy += [h_ * HEAD_STRIDE + pc * 1024, 4096, 0xffffffff if ok(0) else 0, 0xffffffff if ok(2) else 0]
                else: cpy += [h_ * HEAD_STRIDE + 8192, 1024, 0xffffffff if ok(4) else 0, 0xffffffff if ok(4) else 0]
        return quad, cpy
    def v_tab():
        cpy = []
        for cbp in range(5):
            hf = (128 * cbp) // 20
            for p in range(40):
                h_ = hf + p // 5; pc = p % 5
                if h_ >= 32: cpy += [0, 0, 0, 0]; continue
                m = 0
                for l in range(64):
                    d_ = (pc * 64 + l) % 20
                    if 128 * cbp <= 20 * h_ + d_ < 128 * cbp + 128: m |= 1 << l
                cpy += [h_ * HEAD_STRIDE + pc * 1024, 5120, m & 0xffffffff, m >> 32]
        return cpy
    TQ, TCQ = qk_tab(); TCV = v_tab()
    tab_words = TCQ + TCV + TQ
    Ltab = f"L_{name}_tab"
    def precompute(vorient):
        r_, half = tmp[0], tmp[1]
        k(f"v_and_b32 {v(r_)}, 31, {v(lane)}\nv_lshrrev_b32 {v(half)}, 5, {v(lane)}\nv_lshlrev_b32 {v(vl16)}, 4, {v(lane)}")
        k(f"s_mul_i32 s42, s{sSec}, 5\ns_sub_u32 s42, s{sCB}, s42")
        Lh = k.L("here")
        k(f"s_getpc_b64 s[44:45]")
        k.label(Lh)
        k(f"s_add_u32 s44, s44, {Ltab} - {Lh}\ns_addc_u32 s45, s45, 0")
        k(f"s_mul_i32 s46, s42, 640\ns_lshl_b32 s47, s{sW}, 4\ns_add_u32 s46, s46, s47\ns_add_u32 s46, s44, s46\ns_addc_u32 s47, s45, 0")
        for rd in range(5): k(f"s_load_dwordx4 s[{80+4*rd}:{83+4*rd}], s[46:47], {(3200 if vorient else 0) + 128*rd}")
        if not vorient:
            k(f"s_lshl_b32 s48, s42, 2\ns_add_u32 s48, s48, s{sN}\ns_lshl_b32 s48, s48, 5\nv_lshlrev_b32 {v(tmp[2])}, 4, {v(half)}\nv_add_u32 {v(tmp[2])}, s48, {v(tmp[2])}")
            k(f"global_load_dwordx4 {v(TL,4)}, {v(tmp[2])}, s[44:45] offset:0") if False else None
            k(f"s_add_u32 s44, s44, 6400\ns_addc_u32 s45, s45, 0")
            k(f"global_load_dwordx4 {v(TL,4)}, {v(tmp[2])}, s[44:45]")
        else:
            k(f"s_mul_i32 s40, s42, {32*205}\ns_lshr_b32 s40, s40, 10")
            k(f"s_lshl_b32 s{sT0}, s42, 7\ns_lshl_b32 s{sT1}, s{sN}, 5\ns_add_u32 s{sT0}, s{sT0}, s{sT1}")
            k(f"v_add_u32 {v(tmp[3])}, s{sT0}, {v(r_)}")
            k(f"v_mul_u32_u24 {v(tmp[5])}, 3277, {v(tmp[3])}\nv_lshrrev_b32 {v(tmp[5])}, 16, {v(tmp[5])}")
            k(f"v_mul_u32_u24 {v(tmp[6])}, 20, {v(tmp[5])}\nv_sub_u32 {v(tmp[3])}, {v(tmp[3])}, {v(tmp[6])}")
            k(f"v_subrev_u32 {v(tmp[5])}, s40, {v(tmp[5])}\nv_mul_u32_u24 {v(tmp[5])}, 5120, {v(tmp[5])}\nv_lshl_add_u32 {v(tmp[5])}, {v(tmp[3])}, 4, {v(tmp[5])}")
            k(f"v_mul_u32_u24 {v(tmp[6])}, 320, {v(half)}\nv_add_u32 {v(tmp[5])}, {v(tmp[5])}, {v(tmp[6])}")
            k(f"s_mul_i32 s{sT0}, s{sM}, {4*640}\nv_add_u32 {v(AD)}, s{sT0}, {v(tmp[5])}")
    def finish_pre(vorient):
        k("s_waitcnt lgkmcnt(0)")
        k(f"s_lshr_b32 s43, s{sRB}, 1\ns_mul_i32 s43, s43, {BLK_STRIDE}\ns_and_b32 s41, s{sRB}, 1")
        if vorient: k(f"s_add_u32 s43, s43, {VOFF}")
        else: k(f"s_cmp_eq_u32 s{sSec}, 0\ns_cselect_b32 s{sT1}, {Q1OFF}, {K1OFF}\ns_add_u32 s43, s43, s{sT1}")
        for rd in range(5):
            b = 80 + 4 * rd
            k(f"s_mul_i32 s{b+1}, s{b+1}, s41\ns_add_u32 s{b}, s{b}, s{b+1}\ns_add_u32 s{b}, s{b}, s43")
        if not vorient:
            r_ = tmp[0]
            k(f"v_and_b32 {v(tmp[8])}, 31, {v(lane)}\ns_lshl_b32 s{sT0}, s{sM}, 11\nv_lshl_add_u32 {v(tmp[9])}, {v(tmp[8])}, 4, s{sT0}")
            k(f"s_lshl_b32 s{sT0}, s{sM}, 9\nv_lshl_add_u32 {v(tmp[8])}, {v(tmp[8])}, 3, s{sT0}")
            for j in range(4):
                k(f"v_cmp_gt_i32 vcc, 0, {v(TL+j)}\nv_and_b32 {v(TL+j)}, 0xffff, {v(TL+j)}\nv_mov_b32 {v(tmp[2])}, 1024\nv_mov_b32 {v(tmp[3])}, 256")
                k(f"v_cndmask_b32 {v(AD+2*j)}, {v(tmp[9])}, {v(tmp[8])}, vcc\nv_cndmask_b32 {v(tmp[2])}, {v(tmp[2])}, {v(tmp[3])}, vcc")
                k(f"v_add_u32 {v(AD+2*j)}, {v(AD+2*j)}, {v(TL+j)}\nv_add_u32 {v(AD+2*j+1)}, {v(AD+2*j)}, {v(tmp[2])}")
    def reads(c):
        b = c & 1; stg = c % NST; hi = stg >> 1; so = (stg & 1) * STG
        out = []
        for j in range(4):
            out.append(f"ds_read_b128 {v(FA[b][j][0],4)}, {v(vA[hi][j])} offset:{so}")
            out.append(f"ds_read_b64_tr_b16 {v(FB[b][j],2)}, {v(vB[hi][j])} offset:{so}")
            out.append(f"ds_read_b64_tr_b16 {v(FB[b][j]+2,2)}, {v(vB[hi][j])} offset:{so+1024}")
            out.append(f"ds_read_b128 {v(FA[b][j][1],4)}, {v(vA[hi][j])} offset:{so+4096}")
        return out
    def mainloop(vorient):
        pend = list(pend0) + ([] if vorient else [-8])
        nxt_load = 2
        for c in range(-1, NCH):
            if c + 1 < NCH:
                idx = max(i for i, x in enumerate(pend) if x == c + 1)
                k(f"s_waitcnt vmcnt({len(pend) - 1 - idx})\ns_barrier")
            if c == -1: k.stamp(2)
            todo = []
            if c >= 0:
                while nxt_load < NCH and nxt_load - 4 <= c and len(todo) < 8 and (nxt_load <= c + 4):
                    todo += [(nxt_load, o) for o in dma_ops(nxt_load)]; nxt_load += 1
            rd = reads(c + 1) if (c + 1 < NCH and 'noread' not in dbg) else []
            mf = []; dots = [[] for _ in range(4)]
            if c >= 0:
                b = c & 1
                for j in range(4):
                    for i in range(2):
                        cin = v(acc[i], 16) if not (c == 0 and j == 0) else "0"
                        x, w_ = v(FA[b][j][i], 4), v(FB[b][j], 4)
                        if vorient: mf.append(f"v_mfma_f32_32x32x16_bf16 {v(acc[i],16)}, {x}, {w_}, {cin}")
                        else: mf.append(f"v_mfma_f32_32x32x16_bf16 {v(acc[i],16)}, {w_}, {x}, {cin}")
                dl = []
                g = []
                for i in range(2):
                    for r in range(4):
                        x = FA[b][0][i] + r; u = ut + 2 * ((4 * i + r) % 4)
                        g.append([f"v_lshlrev_b32 {v(u)}, 16, {v(x)}", f"v_and_b32 {v(u+1)}, s{sOnes}, {v(x)}",
                                  f"v_fmac_f32 {v(st+i)}, {v(u)}, {v(u)}", f"v_fmac_f32 {v(st+2+i)}, {v(u+1)}, {v(u+1)}"])
                dl += g[0][:2]
                for e in range(8):
                    if e + 1 < 8: dl += g[e+1][:2]
                    dl += g[e][2:]
                for i in range(2):
                    cin = v(rs4[i], 4) if c > 0 else "0"
                    mf.insert(1 + 5 * i, f"v_mfma_f32_16x16x32_bf16 {v(rs4[i],4)}, {v(sel,4)}, {v(FA[b][0][i],4)}, {cin}")
                for j in range(2):
                    cin = v(cs4, 4) if not (c == 0 and j == 0) else "0"
                    mf.insert(3 + 5 * j, f"v_mfma_f32_16x16x32_bf16 {v(cs4,4)}, {v(sel,4)}, {v(FB[b][j],4)}, {cin}")
            else:
                dl = []
            if 'novalu' in dbg: dl = []
            if 'nosel' in dbg and c >= 0: mf = [x for x in mf if '16x16' not in x]
            if 'nodot' in dbg and c >= 0: dl = []; mf = [x for x in mf if '16x16' not in x]
            if 'nomfma' in dbg: mf = []; rd = rd + dl
            if mf:
                nm = len(mf); ri = 0; di = 0; ti = 0
                per_d = (len(dl) + nm - 1) // nm
                for q in range(nm):
                    k(mf[q])
                    for x in rd[ri: ri+2]: k(x)
                    ri += 2
                    if ti < len(todo): k(todo[ti][1]); pend.append(todo[ti][0]); ti += 1
                    for x in dl[di: di+per_d]: k(x)
                    di += per_d
                assert ri >= len(rd) and di >= len(dl) and ti == len(todo)
            else:
                for x in rd: k(x)
            if rd: k("s_waitcnt lgkmcnt(0)")
    precompute(False)
    mainloop(False)
    k(f"s_branch {Lepi}")
    k.label(LV)
    precompute(True)
    mainloop(True)
    k.label(Lepi)
    k.stamp(3)
    if mega: k(f"v_mov_b32 {v(vnon+1)}, 0\nbuffer_load_dword {v(vnon)}, {v(vnon+1)}, s[56:59], 0 offen sc1")
    k.nop(8)
    for i in range(2): k(f"v_add_f32 {v(st+i)}, {v(st+i)}, {v(st+2+i)}")
    r_, half = tmp[0], tmp[1]
    k(f"v_and_b32 {v(r_)}, 31, {v(lane)}\nv_lshrrev_b32 {v(half)}, 5, {v(lane)}")
    k(f"s_lshl_b32 s{sT0}, s{sM}, 11\ns_lshl_b32 s{sT1}, s{sN}, 3\ns_add_u32 s{sT0}, s{sT0}, s{sT1}\ns_add_u32 s{sT0}, s{sT0}, {L_PQ}")
    k(f"v_lshlrev_b32 {v(tmp[2])}, 5, {v(r_)}\nv_lshl_add_u32 {v(tmp[2])}, {v(half)}, 2, {v(tmp[2])}\nv_add_u32 {v(tmp[2])}, s{sT0}, {v(tmp[2])}")
    k(f"ds_write_b32 {v(tmp[2])}, {v(st)}\nds_write_b32 {v(tmp[2])}, {v(st+1)} offset:1024")
    k(f"s_lshl_b32 s{sT0}, s{sM}, 10\ns_lshl_b32 s{sT1}, s{sN}, 2\ns_add_u32 s{sT0}, s{sT0}, s{sT1}\ns_add_u32 s{sT0}, s{sT0}, {L_PS}")
    k(f"v_and_b32 {v(tmp[3])}, 15, {v(lane)}\nv_lshl_add_u32 {v(tmp[3])}, {v(half)}, 4, {v(tmp[3])}\nv_lshlrev_b32 {v(tmp[4])}, 4, {v(tmp[3])}\nv_add_u32 {v(tmp[4])}, s{sT0}, {v(tmp[4])}")
    k(f"ds_write_b32 {v(tmp[4])}, {v(rs4[0])}\nds_write_b32 {v(tmp[4])}, {v(rs4[1])} offset:512")
    k(f"s_lshl_b32 s{sT0}, s{sN}, 8\ns_lshl_b32 s{sT1}, s{sM}, 2\ns_add_u32 s{sT0}, s{sT0}, s{sT1}\ns_add_u32 s{sT0}, s{sT0}, {L_PC}")
    k(f"v_lshlrev_b32 {v(tmp[3])}, 3, {v(tmp[3])}\nv_add_u32 {v(tmp[3])}, s{sT0}, {v(tmp[3])}")
    k(f"ds_write_b32 {v(tmp[3])}, {v(cs4)}")
    k("s_waitcnt lgkmcnt(0)\ns_barrier")
    Lr2 = k.L("red2"); Lr3 = k.L("red3")
    T = FA[0][0][0]
    k(f"s_cmp_ge_u32 s{sW}, 2\ns_cbranch_scc1 {Lr2}")
    k(f"v_lshlrev_b32 {v(tmp[2])}, 5, v0\nv_add_u32 {v(tmp[2])}, {L_PQ}, {v(tmp[2])}\nv_lshlrev_b32 {v(tmp[3])}, 4, v0\nv_add_u32 {v(tmp[3])}, {L_PS}, {v(tmp[3])}")
    k(f"ds_read_b128 {v(T,4)}, {v(tmp[3])}")
    k(f"ds_read_b128 {v(T+8,4)}, {v(tmp[2])}\nds_read_b128 {v(T+12,4)}, {v(tmp[2])} offset:16")
    k("s_waitcnt lgkmcnt(0)")
    k(f"v_add_f32 {v(T)}, {v(T)}, {v(T+1)}\nv_add_f32 {v(T+2)}, {v(T+2)}, {v(T+3)}\nv_add_f32 {v(T)}, {v(T)}, {v(T+2)}")
    base = T + 8
    k(f"v_add_f32 {v(base)}, {v(base)}, {v(base+1)}\nv_add_f32 {v(base+2)}, {v(base+2)}, {v(base+3)}\nv_add_f32 {v(base+4)}, {v(base+4)}, {v(base+5)}\nv_add_f32 {v(base+6)}, {v(base+6)}, {v(base+7)}")
    k(f"v_add_f32 {v(base)}, {v(base)}, {v(base+2)}\nv_add_f32 {v(base+4)}, {v(base+4)}, {v(base+6)}\nv_add_f32 {v(base)}, {v(base)}, {v(base+4)}")
    k(f"v_mul_f32 {v(T)}, {fbits(1.0/D)}, {v(T)}\nv_mul_f32 {v(T+8)}, {fbits(1.0/D)}, {v(T+8)}")
    k(f"v_fma_f32 {v(T+8)}, -{v(T)}, {v(T)}, {v(T+8)}\nv_max_f32 {v(T+8)}, 0, {v(T+8)}\nv_add_f32 {v(T+8)}, {fbits(1e-5)}, {v(T+8)}")
    k(f"v_rsq_f32 {v(T+8)}, {v(T+8)}")
    k(f"s_cmp_eq_u32 s{sSec}, 0\ns_cselect_b32 s{sT0}, {fbits(QSCALE)}, 1.0")
    k(f"v_mul_f32 {v(T+8)}, s{sT0}, {v(T+8)}\nv_sub_f32 {v(T)}, 0, {v(T)}")
    k(f"v_lshlrev_b32 {v(tmp[2])}, 2, v0\nv_add_u32 {v(tmp[2])}, {L_RS}, {v(tmp[2])}")
    k(f"ds_write_b32 {v(tmp[2])}, {v(T+8)}\nds_write_b32 {v(tmp[2])}, {v(T)} offset:512")
    k(f"s_branch {Lr3}")
    k.label(Lr2)
    k(f"s_cmp_ge_u32 s{sW}, 4\ns_cbranch_scc1 {Lr3}")
    k(f"v_subrev_u32 {v(tmp[2])}, 128, v0\nv_lshlrev_b32 {v(tmp[3])}, 3, {v(tmp[2])}\nv_add_u32 {v(tmp[3])}, {L_PC}, {v(tmp[3])}")
    k(f"ds_read_b64 {v(T,2)}, {v(tmp[3])}\ns_waitcnt lgkmcnt(0)")
    k(f"v_add_f32 {v(T)}, {v(T)}, {v(T+1)}")
    k(f"v_lshlrev_b32 {v(tmp[2])}, 2, {v(tmp[2])}\nv_add_u32 {v(tmp[2])}, {L_CS}, {v(tmp[2])}\nds_write_b32 {v(tmp[2])}, {v(T)}")
    k.label(Lr3)
    k("s_waitcnt lgkmcnt(0)\ns_barrier")
    k.stamp(4)
    LVe = k.L("vepi")
    SC = " sc1" if mega else ""
    k(f"s_cmp_eq_u32 s{sSec}, 2\ns_cbranch_scc1 {LVe}")
    finish_pre(False)
    CSr = T
    RS0, MR0, RS1, MR1 = tmp[4], tmp[5], tmp[6], tmp[7]
    k(f"s_lshl_b32 s{sT0}, s{sM}, 8\ns_add_u32 s{sT0}, s{sT0}, {L_RS}")
    k(f"v_lshl_add_u32 {v(tmp[2])}, {v(r_)}, 2, s{sT0}")
    k(f"ds_read_b32 {v(RS0)}, {v(tmp[2])}\nds_read_b32 {v(MR0)}, {v(tmp[2])} offset:512\nds_read_b32 {v(RS1)}, {v(tmp[2])} offset:128\nds_read_b32 {v(MR1)}, {v(tmp[2])} offset:{512+128}")
    k(f"s_lshl_b32 s{sT0}, s{sN}, 7\ns_add_u32 s{sT0}, s{sT0}, {L_CS}")
    k(f"v_lshl_add_u32 {v(tmp[2])}, {v(half)}, 4, s{sT0}")
    for j in range(4): k(f"ds_read_b128 {v(CSr+4*j,4)}, {v(tmp[2])} offset:{32*j}")
    k("s_waitcnt lgkmcnt(0)")
    PK = T + 24
    for i in range(2):
        RS, MR = (RS0, MR0) if i == 0 else (RS1, MR1)
        for r in range(16): k(f"v_fmac_f32 {v(acc[i]+r)}, {v(CSr+r)}, {v(MR)}")
        for r in range(16): k(f"v_mul_f32 {v(acc[i]+r)}, {v(acc[i]+r)}, {v(RS)}")
        for j in range(4):
            p = PK + 8 * i + 2 * j
            k(f"v_cvt_pk_bf16_f32 {v(p)}, {v(acc[i]+4*j)}, {v(acc[i]+4*j+1)}\nv_cvt_pk_bf16_f32 {v(p+1)}, {v(acc[i]+4*j+2)}, {v(acc[i]+4*j+3)}")
            k(f"ds_write_b64 {v(AD+2*j+i)}, {v(p,2)}")
    Lcp = k.L("copy")
    k(f"s_branch {Lcp}")
    k.label(LVe)
    finish_pre(True)
    CSv = tmp[4]
    k(f"s_lshl_b32 s{sT0}, s{sN}, 7\ns_add_u32 s{sT0}, s{sT0}, {L_CS}")
    k(f"v_lshl_add_u32 {v(tmp[2])}, {v(r_)}, 2, s{sT0}\nds_read_b32 {v(CSv)}, {v(tmp[2])}")
    k(f"s_lshl_b32 s{sT0}, s{sM}, 8\ns_add_u32 s{sT0}, s{sT0}, {L_RS}")
    k(f"v_lshl_add_u32 {v(tmp[2])}, {v(half)}, 4, s{sT0}")
    RSv = T; MRv = T + 32
    for i in range(2):
        for j in range(4):
            k(f"ds_read_b128 {v(RSv+16*i+4*j,4)}, {v(tmp[2])} offset:{128*i+32*j}")
            k(f"ds_read_b128 {v(MRv+16*i+4*j,4)}, {v(tmp[2])} offset:{512+128*i+32*j}")
    k("s_waitcnt lgkmcnt(0)")
    PK = T + 64
    for i in range(2):
        for r in range(16): k(f"v_fmac_f32 {v(acc[i]+r)}, {v(CSv)}, {v(MRv+16*i+r)}")
        for r in range(16): k(f"v_mul_f32 {v(acc[i]+r)}, {v(acc[i]+r)}, {v(RSv+16*i+r)}")
        for g in range(2):
            p = PK + 8 * i + 4 * g
            for q in range(4):
                k(f"v_cvt_pk_bf16_f32 {v(p+q)}, {v(acc[i]+8*g+2*q)}, {v(acc[i]+8*g+2*q+1)}")
            k(f"ds_write_b128 {v(AD)}, {v(p,4)} offset:{(2*i+g)*640}")
    k.label(Lcp)
    k("s_waitcnt lgkmcnt(0)\ns_barrier")
    CP = T + 44
    k(f"s_lshl_b32 s52, s{sW}, 10\nv_add_u32 {v(tmp[2])}, s52, {v(vl16)}")
    for rd in range(5): k(f"ds_read_b128 {v(CP+4*rd,4)}, {v(tmp[2])} offset:{8192*rd}")
    for rd in range(5):
        k(f"s_waitcnt lgkmcnt({4-rd})")
        k(f"s_mov_b64 exec, s[{82+4*rd}:{83+4*rd}]")
        k(f"buffer_store_dwordx4 {v(CP+4*rd,4)}, {v(vl16)}, s[36:39], s{80+4*rd} offen{SC}")
    k("s_mov_b64 exec, -1")
    k.label("L_qkv_end")
    if mega:
        k.mega_signal(WS_FL, FL_BYTES, f"s_lshl_b32 s87, s{sCB}, 4\ns_add_u32 s87, s87, s{sRB}\ns_lshl_b32 s87, s87, 2\ns_add_u32 s87, s87, {FL_F1}", sW, tmp[2], nonce_in=vnon, dsrd=56, ws_pair=36)
    if prof:
        k.stamp(5); k.stamp_real(7)
        k("s_sub_u32 s36, s36, 0")
        k.prof_store(8, 36, WS_END + PROF_OFF(k), tmp[0], sW)
    k.tl_end(2)
    k.label(done)
    k("s_endpgm")
    k.label(Lcs)
    k(f"s_load_dwordx4 s[44:47], s[0:1], {KA_W1}")
    k(f"v_mul_u32_u24 {v(tmp[0])}, 2428, v0\nv_lshrrev_b32 {v(tmp[0])}, 16, {v(tmp[0])}")
    k(f"v_mul_u32_u24 {v(tmp[1])}, 27, {v(tmp[0])}\nv_sub_u32 {v(tmp[1])}, v0, {v(tmp[1])}")
    k(f"s_and_b32 s{sT0}, s{sRB}, 7\ns_mul_i32 s{sT0}, s{sT0}, 432")
    k(f"v_mul_u32_u24 {v(tmp[2])}, {40*F*2}, {v(tmp[0])}\nv_lshl_add_u32 {v(tmp[2])}, {v(tmp[1])}, 4, {v(tmp[2])}\nv_add_u32 {v(tmp[2])}, s{sT0}, {v(tmp[2])}")
    k("s_waitcnt lgkmcnt(0)")
    k(f"s_cmp_ge_u32 s{sRB}, 8\ns_cselect_b32 s8, s46, s44\ns_cselect_b32 s9, s47, s45\ns_and_b32 s9, s9, 0xffff\ns_mov_b32 s10, {D*F*2}\ns_mov_b32 s11, 0x20000")
    A8 = FA[0][0][0]; LD = A8 + 8
    for i in range(8): k(f"v_mov_b32 {v(A8+i)}, 0")
    Lsk = k.L("cs_skip")
    k(f"v_cmp_gt_u32 vcc, 16, {v(tmp[0])}")
    k(f"s_and_saveexec_b64 s[40:41], vcc\ns_cbranch_execz {Lsk}")
    k(f"s_mov_b32 s{sT1}, 0")
    Lcl = k.L("cs_loop")
    k.label(Lcl)
    for i in range(10):
        k(f"buffer_load_dwordx4 {v(LD+4*i,4)}, {v(tmp[2])}, s[8:11], s{sT1} offen\ns_add_u32 s{sT1}, s{sT1}, {F*2}")
    for i in range(10):
        k(f"s_waitcnt vmcnt({9-i})")
        for q in range(4):
            x = LD + 4 * i + q
            k(f"v_lshlrev_b32 {v(tmp[4])}, 16, {v(x)}\nv_and_b32 {v(tmp[5])}, 0xffff0000, {v(x)}")
            k(f"v_add_f32 {v(A8+2*q)}, {v(A8+2*q)}, {v(tmp[4])}\nv_add_f32 {v(A8+2*q+1)}, {v(A8+2*q+1)}, {v(tmp[5])}")
    k(f"s_cmp_lt_u32 s{sT1}, {40*F*2}\ns_cbranch_scc1 {Lcl}")
    k(f"v_mul_u32_u24 {v(tmp[3])}, 864, {v(tmp[0])}\nv_lshl_add_u32 {v(tmp[3])}, {v(tmp[1])}, 5, {v(tmp[3])}")
    k(f"ds_write_b128 {v(tmp[3])}, {v(A8,4)}\nds_write_b128 {v(tmp[3])}, {v(A8+4,4)} offset:16")
    k.label(Lsk)
    k("s_mov_b64 exec, s[40:41]")
    k("s_waitcnt lgkmcnt(0)\ns_barrier")
    Lsk2 = k.L("cs_skip2")
    k(f"v_cmp_gt_u32 vcc, 216, v0")
    k(f"s_and_saveexec_b64 s[40:41], vcc\ns_cbranch_execz {Lsk2}")
    k(f"v_lshlrev_b32 {v(tmp[3])}, 2, v0")
    for i in range(16): k(f"ds_read_b32 {v(LD+i)}, {v(tmp[3])} offset:{864*i}")
    k("s_waitcnt lgkmcnt(0)")
    for i in range(1, 16): k(f"v_add_f32 {v(LD)}, {v(LD)}, {v(LD+i)}")
    k(f"s_add_u32 s36, s36, {WS_CS}\ns_addc_u32 s37, s37, 0\ns_and_b32 s37, s37, 0xffff\ns_mov_b32 s38, {CS_BYTES}\ns_mov_b32 s39, 0x20000")
    k(f"s_mul_i32 s{sT0}, s{sRB}, 864")
    k(f"buffer_store_dword {v(LD)}, {v(tmp[3])}, s[36:39], s{sT0} offen{' sc1' if mega else ''}")
    k.label(Lsk2)
    if mega:
        k("s_mov_b64 exec, -1")
        k(f"v_lshrrev_b32 {v(tmp[6])}, 6, v0\ns_nop 1\nv_readfirstlane_b32 s{sW}, {v(tmp[6])}\ns_nop 3")
        k.mega_signal(WS_FL, FL_BYTES, f"s_add_u32 s87, s{sRB}, 240\ns_lshl_b32 s87, s87, 2\ns_add_u32 s87, s87, {FL_F1}", sW, tmp[2], need_nonce=True)
    k("s_endpgm")
    k.lines.append(".p2align 4")
    k.lines.append(f"{Ltab}:")
    for i in range(0, len(tab_words), 8): k.lines.append("  .long " + ", ".join(hex(x) for x in tab_words[i:i+8]))
    return k, nv, 102

if __name__ == "__main__":
    k, nv, ns = gen_qkv()
    print("vgprs", nv, "hazards", check_kernel(k), "lines", len(k.lines))
```

```python
from asm import *
from layout import *
def PROF_OFF(k): return PROF_IDX.get(k.name, 0) * 0x40000
import struct
def fbits(x): return struct.unpack("<I", struct.pack("<f", x))[0]

def gen_t2p(mode, prof=False, tl=None, PFC=None, NPRE=2, dbg=('notouch',), pf_code=None, mega=False):
    name = {"oproj": "oproj_kernel", "down": "down_kernel"}[mode]
    KS = 24 if mode == "oproj" else 54
    if PFC is None: PFC = 2
    if mega and mode == "down": NSTG_M = 4
    NSH = KS // 2
    chunks = []
    s0 = 0
    while s0 < NSH:
        n = min(4, NSH - s0); chunks.append((s0, n)); s0 += n
    NC = len(chunks)
    NSTG = min(PFC + 1, NC) if not mega else min(4, NC)
    STG = 20480
    HALF = NSTG * STG
    LDS = max(2 * HALF, 20480)
    TSTR = KS * 1024
    NRA = min(PFC + 1, NC)
    k = Kernel(name); k.prof = prof; k.tl = tl
    V = Alloc(1, 256)
    lane = V("lane"); tmp = [V(f"t{i}") for i in range(8)]
    vl16 = V("vl16")
    vB = [V(f"vB{h}") for h in range((HALF + 40959) // 40960)]
    res = V("res", 10, 2)
    acc = [V(f"acc{j}", 4, 4) for j in range(5)]
    FA = [[V(f"FA{r}{q}", 4, 4) for q in range(4)] for r in range(NRA)]
    FB = [[V(f"FB{b}{j}", 4, 4) for j in range(5)] for b in range(2)]
    P2 = V("P2", 24, 4)
    nv = V.next
    sW, sRB, sCB, sI, sKH = 16, 17, 18, 19, 27
    sT0, sT1, sT2, sT3 = 20, 21, 22, 23
    sA, sB, sL = 24, 25, 26
    done = k.L("done")
    if not mega: k(f"s_cmp_ge_u32 s2, 256\ns_cbranch_scc1 {done}")
    k.tl_start()
    k.stamp(0); k.stamp_real(6)
    k(f"s_load_dwordx2 s[4:5], s[0:1], {KA_WS}")
    k(f"s_load_dwordx2 s[28:29], s[0:1], {KA_X if mode == 'oproj' else KA_OUT}")
    if mega: k.mega_ptrs()
    k(f"s_and_b32 s{sT0}, s2, 7\ns_lshr_b32 s{sT1}, s2, 3")
    k(f"s_lshr_b32 s{sT2}, s{sT0}, 1\ns_lshl_b32 s{sT2}, s{sT2}, 3\ns_and_b32 s{sT3}, s{sT1}, 7\ns_add_u32 s{sRB}, s{sT2}, s{sT3}")
    k(f"s_and_b32 s{sT2}, s{sT0}, 1\ns_lshl_b32 s{sT2}, s{sT2}, 2\ns_lshr_b32 s{sT3}, s{sT1}, 3\ns_add_u32 s{sCB}, s{sT2}, s{sT3}")
    k(f"v_and_b32 {v(lane)}, 63, v0\nv_lshrrev_b32 {v(tmp[0])}, 6, v0")
    k(f"v_lshlrev_b32 {v(vl16)}, 4, {v(lane)}")
    k(f"v_readfirstlane_b32 s{sW}, {v(tmp[0])}")
    k(f"s_and_b32 s{sI}, s{sW}, 3\ns_lshr_b32 s{sKH}, s{sW}, 2")
    k(f"s_lshl_b32 s{sT0}, s{sRB}, 2\ns_add_u32 s{sT0}, s{sT0}, s{sI}\ns_mul_i32 s{sA}, s{sT0}, {TSTR}\ns_mul_i32 s{sT0}, s{sKH}, {NSH*1024}\ns_add_u32 s{sA}, s{sA}, s{sT0}")
    k(f"s_mul_i32 s{sB}, s{sCB}, {KS*5120}\ns_mul_i32 s{sT0}, s{sKH}, {NSH*5120}\ns_add_u32 s{sB}, s{sB}, s{sT0}\ns_mul_i32 s{sT1}, s{sI}, 5120\ns_add_u32 s{sB}, s{sB}, s{sT1}")
    k(f"s_mul_i32 s{sT2}, s{sKH}, {HALF}\ns_add_u32 s{sL}, s{sT2}, s{sT1}")
    k(f"v_add_u32 {v(vB[0])}, s{sT2}, {v(vl16)}")
    for h in range(1, len(vB)): k(f"v_add_u32 {v(vB[h])}, {h*40960}, {v(vB[0])}")
    k("s_waitcnt lgkmcnt(0)")
    aoff, abytes = (WS_O, O_BYTES) if mode == "oproj" else (WS_HH, HH_BYTES)
    boff, bbytes = (WS_WOP, WOP_BYTES) if mode == "oproj" else (WS_W2P, W2P_BYTES)
    k(f"s_add_u32 s8, s4, {aoff}\ns_addc_u32 s9, s5, 0\ns_and_b32 s9, s9, 0xffff\ns_mov_b32 s10, {abytes}\ns_mov_b32 s11, 0x20000")
    k(f"s_add_u32 s12, s4, {boff}\ns_addc_u32 s13, s5, 0\ns_and_b32 s13, s13, 0xffff\ns_mov_b32 s14, {bbytes}\ns_mov_b32 s15, 0x20000")
    def load_ops(c):
        s0, n = chunks[c]; stg = (c % NSTG) * STG
        ops = []
        for p in range(4):
            pre = f"s_add_u32 m0, s{sL}, {stg}\ns_add_u32 s{sT0}, s{sB}, {s0*5120}\n" if p == 0 else ""
            ops.append(pre + f"buffer_load_dwordx4 {v(vl16)}, s[12:15], s{sT0} offen offset:{p*1024} lds")
        ops.append(f"s_add_u32 m0, s{sL}, {stg+4096}\ns_add_u32 s{sT1}, s{sB}, {s0*5120+4096}\nbuffer_load_dwordx4 {v(vl16)}, s[12:15], s{sT1} offen lds")
        for q in range(n):
            pre = f"s_add_u32 s{sT2}, s{sA}, {s0*1024}\n" if q == 0 else ""
            ops.append(pre + f"buffer_load_dwordx4 {v(FA[c % NRA][q],4)}, {v(vl16)}, s[8:11], s{sT2} offen offset:{q*1024}")
        if 'noA' in dbg: ops = ops[:5]
        if 'noB' in dbg: ops = ops[5:]
        return ops
    nops = [len(load_ops(c)) for c in range(NC)]
    npre = min(NPRE, NC)
    vt = V("vt", 2, 2); vt2 = V("vt2", 3, 2)
    nv = V.next
    ntouch = 0
    def bops(c): return load_ops(c)[:5]
    def aops(c): return load_ops(c)[5:]
    if not mega:
        for c in range(npre):
            for o in load_ops(c): k(o)
    else:
        k.mega_setup(WS_FL, FL_BYTES)
        nfr, base = (120, 0) if mode == "oproj" else (270, NWOF)
        nl = (nfr + 63) // 64
        k(f"s_mul_i32 s86, s{sCB}, {nfr}\ns_add_u32 s86, s86, {base}")
        ad = [FB[0][0] + i for i in range(nl)]
        for i in range(nl):
            k(f"v_add_u32 {v(ad[i])}, {64*i}, {v(lane)}\nv_min_u32 {v(ad[i])}, {nfr-1}, {v(ad[i])}\nv_add_u32 {v(ad[i])}, s86, {v(ad[i])}")
            if mode == "down":
                k(f"v_subrev_u32 {v(tmp[0])}, 2048, {v(ad[i])}\nv_min_u32 {v(ad[i])}, {v(ad[i])}, {v(tmp[0])}")
            k(f"v_lshlrev_b32 {v(ad[i])}, 2, {v(ad[i])}\nv_add_u32 {v(ad[i])}, {FL_FP}, {v(ad[i])}")
        fa = FB[0][0] + 8; vz = FB[0][0] + 9
        k(f"s_lshr_b32 s86, s{sRB}, 2\ns_lshl_b32 s86, s86, 5\nv_mov_b32 {v(vz)}, 0")
        if mode == "oproj": k(f"v_and_b32 {v(fa)}, 31, {v(lane)}")
        else: k(f"v_min_u32 {v(fa)}, 26, {v(lane)}")
        k(f"v_add_u32 {v(fa)}, s86, {v(fa)}\nv_lshlrev_b32 {v(fa)}, 2, {v(fa)}\nv_add_u32 {v(fa)}, {FL_F2 if mode == 'oproj' else FL_F4}, {v(fa)}")
        k.poll_issue(ad, FB[1][0], vz)
        k.poll_finish(ad, FB[1][0], vz, 0)
        L0 = k.L("nop0")
        k(f"s_cmp_lg_u32 s{sW}, 0\ns_cbranch_scc1 {L0}")
        k.poll_issue([fa], FB[1][0] + 8, vz)
        k.label(L0)
        nb = 0
        for c in range(NSTG):
            for o in bops(c): k(o); nb += 1
    if not mega: k.stamp(1)
    if pf_code:
        k.code_prefetch_dist(pf_code, vt2 + 2, vt2, 48, 54)
    tok, G = tmp[4], tmp[5]
    k(f"v_and_b32 {v(tok)}, 15, {v(lane)}\nv_lshrrev_b32 {v(G)}, 4, {v(lane)}")
    k(f"s_lshl_b32 s{sT0}, s{sRB}, 6\ns_lshl_b32 s{sT1}, s{sI}, 4\ns_add_u32 s{sT0}, s{sT0}, s{sT1}\nv_add_u32 {v(tok)}, s{sT0}, {v(tok)}")
    hb = tmp[6]
    k(f"v_lshrrev_b32 {v(tmp[0])}, 5, {v(tok)}\nv_mul_u32_u24 {v(hb)}, 40960, {v(tmp[0])}")
    k(f"v_and_b32 {v(tmp[0])}, 31, {v(tok)}\nv_lshl_add_u32 {v(hb)}, {v(tmp[0])}, 4, {v(hb)}")
    k(f"v_lshrrev_b32 {v(tmp[0])}, 1, {v(G)}\nv_lshl_add_u32 {v(hb)}, {v(tmp[0])}, 9, {v(hb)}")
    k(f"v_and_b32 {v(tmp[0])}, 1, {v(G)}\nv_lshl_add_u32 {v(hb)}, {v(tmp[0])}, 3, {v(hb)}")
    rm = tmp[7]
    k(f"v_mul_u32_u24 {v(rm)}, 1280, {v(tok)}\nv_lshl_add_u32 {v(rm)}, {v(G)}, 3, {v(rm)}")
    k(f"s_add_u32 s32, s4, {WS_H}\ns_addc_u32 s33, s5, 0\ns_and_b32 s33, s33, 0xffff\ns_mov_b32 s34, {H_BYTES}\ns_mov_b32 s35, 0x20000")
    k(f"s_mov_b32 s36, s28\ns_and_b32 s37, s29, 0xffff\ns_mov_b32 s38, {S*D*2}\ns_mov_b32 s39, 0x20000")
    k(f"s_mul_i32 s40, s{sCB}, 5120\ns_mul_i32 s41, s{sCB}, 160\ns_add_u32 s42, s40, 4096")
    def bread(c, q, j):
        off = (c % NSTG) * STG + (q * 5 + j) * 1024
        h = off // 40960
        gs = chunks[c][0] + q
        return f"ds_read_b128 {v(FB[gs & 1][j],4)}, {v(vB[h])} offset:{off - h*40960}"
    pend = []
    if not mega:
        for c in range(npre): pend += [c] * nops[c]
        if pf_code: pend += [-4] * len(pf_code)
    else:
        for c in range(NSTG): pend += [c] * 5
        if pf_code: pend += [-4] * len(pf_code)
        L1 = k.L("nop1")
        k(f"s_cmp_lg_u32 s{sW}, 0\ns_cbranch_scc1 {L1}")
        k.poll_finish([fa], FB[1][0] + 8, vz, nb + (len(pf_code) if pf_code else 0))
        k.label(L1)
        k("s_barrier")
        k.stamp(1)
        for c in range(npre):
            for o in aops(c): k(o); pend.append(c)
    def wait_chunk(c):
        idx = max(i for i, x in enumerate(pend) if x == c)
        k(f"s_waitcnt vmcnt({len(pend) - 1 - idx}) lgkmcnt(0)\ns_barrier")
    wait_chunk(0)
    k.stamp(2)
    for j in range(5): k(bread(0, 0, j))
    nxt_load = npre
    steps = [(c, q) for c in range(NC) for q in range(chunks[c][1])]
    res_issued = False
    for si, (c, q) in enumerate(steps):
        gs = chunks[c][0] + q
        last = si + 1 == len(steps)
        if not last:
            c2, q2 = steps[si + 1]
            if c2 != c: wait_chunk(c2)
        trick = []
        if q == 0:
            todo = []
            if not mega:
                while nxt_load < NC and nxt_load <= c + PFC and nxt_load < c + NSTG and len(todo) < (20 if c == 0 else 9):
                    todo += [(nxt_load, o) for o in load_ops(nxt_load)]; nxt_load += 1
            else:
                if c + npre < NC: todo += [(c + npre, o) for o in aops(c + npre)]
                X = c + NSTG - 1
                if c >= 1 and X < NC: todo += [(X, o) for o in bops(X)]
                nxt_load = NC
            n_ = chunks[c][1]
            per = (len(todo) + n_ - 1) // n_
            sched = [todo[i*per:(i+1)*per] for i in range(n_)]
        trick = sched[q]
        for j in range(5):
            k(f"s_waitcnt lgkmcnt({4 if not last else 4 - j})") if not (last and j == 4) else k("s_waitcnt lgkmcnt(0)")
            cin = v(acc[j], 4) if si > 0 else "0"
            if 'nomfma' not in dbg: k(f"v_mfma_f32_16x16x32_bf16 {v(acc[j],4)}, {v(FB[gs & 1][j],4)}, {v(FA[c % NRA][q],4)}, {cin}")
            if not last: k(bread(c2, q2, j))
            for (cc, o) in trick[j::5]:
                k(o); pend.append(cc)
        if si == len(steps) - 6 or (len(steps) < 6 and si == 0):
            for j in range(5):
                if mode == "oproj": k(f"buffer_load_dwordx2 {v(res+2*j,2)}, {v(rm)}, s[36:39], s41 offen offset:{32*j}")
                else: k(f"buffer_load_dwordx2 {v(res+2*j,2)}, {v(hb)}, s[32:35], {'s40' if j < 4 else 's42'} offen" + (f" offset:{1024*j}" if j < 4 else ""))
                pend.append(-1)
    assert nxt_load == NC
    k.stamp(3)
    Lw = k.L("wr"); Lend = k.L("end")
    k.nop(8)
    k("s_barrier")
    k(f"s_mul_i32 s{sT0}, s{sI}, 5120\nv_add_u32 {v(tmp[1])}, s{sT0}, {v(vl16)}")
    k(f"s_cmp_eq_u32 s{sKH}, 0\ns_cbranch_scc1 {Lw}")
    for j in range(5): k(f"ds_write_b128 {v(tmp[1])}, {v(acc[j],4)} offset:{j*1024}")
    k("s_waitcnt lgkmcnt(0)\ns_barrier")
    k(f"s_branch {Lend}")
    k.label(Lw)
    k("s_barrier")
    P = P2
    for j in range(5): k(f"ds_read_b128 {v(P+4*j,4)}, {v(tmp[1])} offset:{j*1024}")
    k("s_waitcnt lgkmcnt(0)")
    for j in range(5):
        for r in range(4): k(f"v_add_f32 {v(P+4*j+r)}, {v(P+4*j+r)}, {v(acc[j]+r)}")
    k.stamp(4)
    k("s_waitcnt vmcnt(0)")
    U = P + 20
    for j in range(5):
        for q in range(2):
            x = res + 2 * j + q
            k(f"v_lshlrev_b32 {v(U)}, 16, {v(x)}\nv_and_b32 {v(U+1)}, 0xffff0000, {v(x)}")
            k(f"v_add_f32 {v(P+4*j+2*q)}, {v(P+4*j+2*q)}, {v(U)}\nv_add_f32 {v(P+4*j+2*q+1)}, {v(P+4*j+2*q+1)}, {v(U+1)}")
            k(f"v_cvt_pk_bf16_f32 {v(x)}, {v(P+4*j+2*q)}, {v(P+4*j+2*q+1)}")
    SC = " sc1" if mega else ""
    if mode == "oproj":
        HU = FB[0][0]
        for jp in range(2):
            A_, B_ = res + 4 * jp, res + 4 * jp + 2
            for q in range(4): k(f"v_mov_b32 {v(HU+4*jp+q)}, {v(res+4*jp+q)}")
        k(f"v_mov_b32 {v(HU+8)}, {v(res+8)}\nv_mov_b32 {v(HU+9)}, {v(res+9)}\nv_mov_b32 {v(HU+10)}, {v(res+8)}\nv_mov_b32 {v(HU+11)}, {v(res+9)}")
        k.nop(2)
        for jp in range(3):
            k(f"v_permlane16_swap_b32 {v(HU+4*jp)}, {v(HU+4*jp+2)}\nv_permlane16_swap_b32 {v(HU+4*jp+1)}, {v(HU+4*jp+3)}")
        k(f"v_lshrrev_b32 {v(tmp[0])}, 5, {v(tok)}\nv_mul_u32_u24 {v(hb)}, 40960, {v(tmp[0])}\nv_and_b32 {v(tmp[0])}, 31, {v(tok)}\nv_lshl_add_u32 {v(hb)}, {v(tmp[0])}, 4, {v(hb)}")
        k(f"v_and_b32 {v(tmp[0])}, 1, {v(G)}\nv_lshl_add_u32 {v(hb)}, {v(tmp[0])}, 10, {v(hb)}\nv_lshrrev_b32 {v(tmp[0])}, 1, {v(G)}\nv_lshl_add_u32 {v(hb)}, {v(tmp[0])}, 9, {v(hb)}")
        k(f"buffer_store_dwordx4 {v(HU,4)}, {v(hb)}, s[32:35], s40 offen{SC}")
        k(f"buffer_store_dwordx4 {v(HU+4,4)}, {v(hb)}, s[32:35], s40 offen offset:2048{SC}")
        k("s_mov_b32 exec_lo, 0x0000ffff\ns_mov_b32 exec_hi, 0x0000ffff")
        k(f"buffer_store_dwordx4 {v(HU+8,4)}, {v(hb)}, s[32:35], s42 offen{SC}")
        k("s_mov_b64 exec, -1")
        U = FA[0][0]
        sm, sq = U + 2, U + 3
        k(f"v_mov_b32 {v(sm)}, 0\nv_mov_b32 {v(sq)}, 0")
        for x in range(10):
            k(f"v_lshlrev_b32 {v(U)}, 16, {v(res+x)}\nv_and_b32 {v(U+1)}, 0xffff0000, {v(res+x)}")
            k(f"v_add_f32 {v(sm)}, {v(sm)}, {v(U)}\nv_fmac_f32 {v(sq)}, {v(U)}, {v(U)}\nv_add_f32 {v(sm)}, {v(sm)}, {v(U+1)}\nv_fmac_f32 {v(sq)}, {v(U+1)}, {v(U+1)}")
        for sw in ("v_permlane16_swap_b32", "v_permlane32_swap_b32"):
            k(f"v_mov_b32 {v(U+4)}, {v(sm)}\nv_mov_b32 {v(U+5)}, {v(sm)}\nv_mov_b32 {v(U+6)}, {v(sq)}\nv_mov_b32 {v(U+7)}, {v(sq)}")
            k.nop(2)
            k(f"{sw} {v(U+4)}, {v(U+5)}\n{sw} {v(U+6)}, {v(U+7)}")
            k.nop(1)
            k(f"v_add_f32 {v(sm)}, {v(U+4)}, {v(U+5)}\nv_add_f32 {v(sq)}, {v(U+6)}, {v(U+7)}")
        k(f"s_add_u32 s44, s4, {WS_ST}\ns_addc_u32 s45, s5, 0\ns_and_b32 s45, s45, 0xffff\ns_mov_b32 s46, {ST_BYTES}\ns_mov_b32 s47, 0x20000")
        k(f"v_lshlrev_b32 {v(tmp[0])}, 3, {v(tok)}\ns_lshl_b32 s{sT0}, s{sCB}, 14")
        k("s_mov_b64 exec, 0xffff")
        k(f"buffer_store_dwordx2 {v(sm,2)}, {v(tmp[0])}, s[44:47], s{sT0} offen{SC}")
        k("s_mov_b64 exec, -1")
    else:
        for j in range(5):
            k(f"buffer_store_dwordx2 {v(res+2*j,2)}, {v(rm)}, s[36:39], s41 offen offset:{32*j}")
    k.label(Lend)
    if mega and mode == "oproj":
        k.mega_signal(WS_FL, FL_BYTES, f"s_lshr_b32 s87, s{sRB}, 2\ns_lshl_b32 s87, s87, 5\ns_and_b32 s86, s{sRB}, 3\ns_lshl_b32 s86, s86, 3\ns_add_u32 s87, s87, s86\ns_add_u32 s87, s87, s{sCB}\ns_lshl_b32 s87, s87, 2\ns_add_u32 s87, s87, {FL_F3}", sW, tmp[2])
    if prof:
        Lp = k.L("p4")
        k(f"s_cmp_eq_u32 s{sKH}, 0\ns_cbranch_scc1 {Lp}")
        k.stamp(4)
        k.label(Lp)
    k.stamp(5); k.stamp_real(7)
    k.prof_store(8, 4, WS_END + PROF_OFF(k), tmp[0], sW)
    k.tl_end(2)
    k.label(done)
    k("s_endpgm")
    return k, nv, (102 if (prof or tl is not None) else 64), LDS

if __name__ == "__main__":
    for m in ("oproj", "down"):
        k, nv, ns, lds = gen_t2p(m)
        print(m, "vgprs", nv, "hazards", check_kernel(k), "lines", len(k.lines), "lds", lds)
```

```python
S = 2048; D = 640; H = 32; DH = 20; F = 1728
HEAD_STRIDE = 245760
BLK_STRIDE = 30720
K1OFF = 0; K2OFF = 8192; VOFF = 10240; Q1OFF = 20480; Q2OFF = 28672
LBLK = 20480
WS_QKV = 0
QKV_BYTES = 32 * HEAD_STRIDE
WS_O = QKV_BYTES
O_BYTES = 128 * 24 * 1024
WS_H = WS_O + O_BYTES
H_BYTES = S * D * 2
WS_ST = WS_H + H_BYTES
ST_BYTES = S * 8 * 2 * 4
WS_HH = WS_ST + ST_BYTES
HH_BYTES = S * F * 2
WS_CS = WS_HH + HH_BYTES
CS_BYTES = 2 * F * 4
WS_WOP = (WS_CS + CS_BYTES + 1023) // 1024 * 1024
WOP_BYTES = 960 * 1024
WS_W2P = WS_WOP + WOP_BYTES
W2P_BYTES = 2160 * 1024
WS_FL = WS_W2P + W2P_BYTES
FL_F1, FL_F2, FL_F3, FL_F4, FL_FP = 0, 1024, 2048, 3072, 4096
FL_BYTES = 4096 + 8192
NWOF = 960; NPACK = 960 + 2160
WS_END = WS_FL + FL_BYTES
PROF_IDX = {'qkv_kernel':0,'attn_kernel':1,'oproj_kernel':2,'ffn_kernel':3,'down_kernel':4}
KA_X = 0; KA_WQKV = 8; KA_WO = 16; KA_BX = 24; KA_W1 = 32; KA_W3 = 40; KA_W2 = 48; KA_OUT = 56; KA_DBG = 64; KA_WS = 72
import math
QSCALE = (DH ** -0.5) * math.log2(math.e)
```

```python
import sys
from asm import *
from layout import *
import build as B, k_qkv, k_attn, k_t3, k_ffn, k_t2p
def make(prof=False, tl=False, attn_dbg=(), ffn_dbg=(), qkv_dbg=('notouch',), t2p_kw={}, pf=True):
    T = (lambda i: i) if tl else (lambda i: None)
    k1, nv1, ns1 = k_qkv.gen_qkv(prof=prof, tl=T(0), dbg=qkv_dbg, pf_code=(['qkv_kernel', 'attn_kernel'] if pf else None))
    k2, nv2, ns2 = k_attn.gen_attn(prof=prof, tl=T(1), dbg=attn_dbg, pf_code=(['oproj_kernel'] if pf else None))
    k3, nv3, ns3, l3 = k_t2p.gen_t2p("oproj", prof=prof, tl=T(2), pf_code=(['ffn_kernel'] if pf else None), **t2p_kw)
    k4, nv4, ns4 = k_ffn.gen_ffn(prof=prof, tl=T(3), dbg=ffn_dbg, pf_code=(['down_kernel'] if pf else None))
    k5, nv5, ns5, l5 = k_t2p.gen_t2p("down", prof=prof, tl=T(4), **t2p_kw)
    ks = [(k1, nv1, ns1, 256, 512, k_qkv.LDS_QKV), (k2, nv2, ns2, 256, 512, 163840), (k3, nv3, ns3, 256, 512, l3),
          (k4, nv4, ns4, 256, 512, k_ffn.LDS_FFN), (k5, nv5, ns5, 256, 512, l5)]
    return ks

def make_mega(prof=False, pf=True, **kw):
    name = "sequential_preLN__softmax_full_mha__glu_gated_swiglu__prompt_kernel"
    k1, nv1, _ = k_qkv.gen_qkv(prof=prof, dbg=('notouch',), pf_code=(['qkv_kernel', 'attn_kernel'] if pf else None), mega=True)
    k2, nv2, _ = k_attn.gen_attn(prof=prof, pf_code=(['oproj_kernel'] if pf else None), mega=True)
    k3, nv3, _, l3 = k_t2p.gen_t2p("oproj", prof=prof, pf_code=(['ffn_kernel'] if pf else None), mega=True)
    k4, nv4, _ = k_ffn.gen_ffn(prof=prof, pf_code=(['down_kernel'] if pf else None), mega=True)
    k5, nv5, _, l5 = k_t2p.gen_t2p("down", prof=prof, mega=True)
    roles = [k1, k2, k3, k4, k5]
    for r in roles:
        assert check_kernel(r) == 0
    K = Kernel(name)
    K(f"s_cmp_ge_u32 s2, 1280\ns_cbranch_scc1 L_mega_exit")
    K("s_lshr_b32 s3, s2, 8\ns_and_b32 s2, s2, 255")
    for i, r in enumerate(roles[1:], 1):
        K(f"s_cmp_eq_u32 s3, {i}\ns_cbranch_scc1 L_mega_j{i}")
    K(f"s_branch {roles[0].name}")
    for i, r in enumerate(roles[1:], 1):
        K.label(f"L_mega_j{i}"); K(f"s_branch {r.name}")
    K.label("L_mega_exit"); K("s_endpgm")
    for r in roles:
        K.lines.append(".p2align 8")
        K.lines.append(r.body())
    return K, max(nv1, nv2, nv3, nv4, nv5)
def mega_text(prof=False, **kw):
    K, nv = make_mega(prof=prof, **kw)
    out = B.HEADER + "; @launch grid=(1280,1,1) block=(512,1,1) lds=163840\n" + '.amdgcn_target "amdgcn-amd-amdhsa--gfx950"\n'
    out += K.text(256, 102, 256)
    return out, K.name

if __name__ == "__main__":
    out = mega_text()[0] if "--mega" in sys.argv else B.assemble(make(tl=("--tl" in sys.argv)))
    path = sys.argv[1] if (len(sys.argv) > 1 and not sys.argv[1].startswith("--")) else "sequential_preLN__softmax_full_mha__glu_gated_swiglu__prompt.s"
    open(path, "w").write(out)
    print("wrote", path, len(out), "bytes")
```
